```python
import torch

def _softmax(x, axis=-1):
    return torch.softmax(x, dim=axis)

def _gelu(x):
    return torch.nn.functional.gelu(x, approximate='tanh')

def _silu(x):
    return torch.nn.functional.silu(x)

def _sigmoid(x):
    return torch.sigmoid(x)

def _layernorm(x, axis=-1, eps=1e-05):
    m = x.mean(dim=axis, keepdim=True)
    v = x.var(dim=axis, keepdim=True, unbiased=False)
    return (x - m) / torch.sqrt(v + eps)

def _scatter_add(tgt, idx, src, axis=0):
    return tgt.clone().index_add_(axis, idx, src)

def _segment_sum(src, seg, n):
    out = torch.zeros((n,) + src.shape[1:], dtype=src.dtype)
    return out.index_add_(0, seg, src)

def _pad(x, pw):
    flat = tuple((v for pair in reversed(pw) for v in pair))
    return torch.nn.functional.pad(x, flat)
kernel_name = 'standalone__video_video_swin__vision'

def setup_inputs():

    _w = lambda a: (lambda t: t.to(torch.bfloat16) if t.is_floating_point() else t)(torch.as_tensor(a))
    T = 4
    H = W = 224 // 7 * 7
    C, win = (96, 7)
    return {'x': _w((lambda *s: torch.randn(*s, dtype=torch.bfloat16) * 0.1)(1, T, H, W, C)), 'wqkv_t': _w((lambda *s: torch.randn(*s, dtype=torch.bfloat16) * 0.1)(C, 3 * C)), 'wo_t': _w((lambda *s: torch.randn(*s, dtype=torch.bfloat16) * 0.1)(C, C)), 'wqkv_s': _w((lambda *s: torch.randn(*s, dtype=torch.bfloat16) * 0.1)(C, 3 * C)), 'wo_s': _w((lambda *s: torch.randn(*s, dtype=torch.bfloat16) * 0.05)(C, C))}

def reference(x, wqkv_t, wo_t, wqkv_s, wo_s):
    B, T, H, W, C = x.shape
    win = 7
    scale = C ** (-0.5)
    h = _layernorm(x, axis=-1)
    ht = (lambda x, *d: x.permute(*d))(h, 0, 2, 3, 1, 4).reshape(B * H * W, T, C)
    qkv = ht @ wqkv_t
    q, k, v = (qkv[..., :C].clone(), qkv[..., C:2 * C].clone(), qkv[..., 2 * C:].clone())
    p = _softmax(torch.einsum('btc,bsc->bts', q, k) * scale, axis=-1)
    ot = torch.einsum('bts,bsc->btc', p, v) @ wo_t
    ot = (lambda x, *d: x.permute(*d))(ot.reshape(B, H, W, T, C), 0, 3, 1, 2, 4)
    x = x + ot
    h = _layernorm(x, axis=-1)
    nh, nw = (H // win, W // win)
    hs = h.reshape(B * T, nh, win, nw, win, C)
    hw = (lambda x, *d: x.permute(*d))(hs, 0, 1, 3, 2, 4, 5).reshape(B * T * nh * nw, win * win, C)
    qkv = hw @ wqkv_s
    q, k, v = (qkv[..., :C].clone(), qkv[..., C:2 * C].clone(), qkv[..., 2 * C:].clone())
    p = _softmax(torch.einsum('bqc,bkc->bqk', q, k) * scale, axis=-1)
    os = torch.einsum('bqk,bkc->bqc', p, v) @ wo_s
    os = (lambda x, *d: x.permute(*d))(os.reshape(B * T, nh, nw, win, win, C), 0, 1, 3, 2, 4, 5)
    os = os.reshape(B, T, H, W, C)
    return x + os
```

```python
import sys

class R:
    __slots__ = ('f', 'i', 'n')
    def __init__(s, f, i, n=1):
        s.f = f; s.i = i; s.n = n
    def __str__(s):
        return f"{s.f}{s.i}" if s.n == 1 else f"{s.f}[{s.i}:{s.i+s.n-1}]"
    __repr__ = __str__
    def regs(s):
        return [f"{s.f}{s.i+k}" for k in range(s.n)]
    def __getitem__(s, k):
        if isinstance(k, slice):
            a = k.start or 0; b = k.stop if k.stop is not None else s.n
            assert 0 <= a < b <= s.n, (s, k)
            return R(s.f, s.i + a, b - a)
        assert 0 <= k < s.n, (s, k)
        return R(s.f, s.i + k, 1)

def V(i, n=1): return R('v', i, n)
def A(i, n=1): return R('a', i, n)
def S(i, n=1): return R('s', i, n)

def regs_of(x):
    if isinstance(x, R): return x.regs()
    if isinstance(x, str):
        t = x.lstrip('-|').rstrip('|')
        if t in ('vcc', 'exec', 'm0', 'scc'): return [t]
    return []

class Neg:
    def __init__(s, r): s.r = r
    def __str__(s): return f"-{s.r}"
    def regs(s): return s.r.regs()
class Abs:
    def __init__(s, r): s.r = r
    def __str__(s): return f"|{s.r}|"
    def regs(s): return s.r.regs()

def rg(x):
    if isinstance(x, (R, Neg, Abs)): return x.regs()
    if isinstance(x, str) and x in ('vcc', 'exec', 'm0', 'scc'): return [x]
    return []

COST = dict(mfma=8, valu=4, trans=8, perm=8, ldsr=4, ldsw=4, vmld=4, vmst=4, dma=4, salu=4, smem=4,
            wait=1, nop=4, br=4, label=0, bar=4, raw=4)
VALUK = ('valu', 'trans', 'perm')

class Ins:
    __slots__ = ('txt', 'kind', 'rd', 'wr', 'dpp', 'cregs', 'dregs', 'wide', 'id', 'nops', 'prio', 'cost', 'rfl', 'tag')
    def __init__(s, txt, kind, rd=(), wr=(), dpp=False, cregs=(), dregs=(), wide=False, prio=0, rfl=False, tag=None):
        s.txt = txt; s.kind = kind; s.rd = list(rd); s.wr = list(wr); s.dpp = dpp
        s.cregs = list(cregs); s.dregs = list(dregs); s.wide = wide; s.prio = prio; s.rfl = rfl
        s.cost = COST[kind]; s.tag = tag
    def __repr__(s): return s.txt

class Prog:
    def __init__(s):
        s.L = []
    def add(s, ins):
        s.L.append(ins); return ins
    def mfma(s, D, Aop, Bop, C):
        crd = rg(C)
        return s.add(Ins(f"v_mfma_f32_16x16x32_bf16 {D}, {Aop}, {Bop}, {C}", 'mfma',
                         rd=rg(Aop) + rg(Bop) + crd, wr=rg(D), cregs=crd, dregs=rg(D)))
    def v(s, op, dst, *src, mod='', kind=None, rmw=False, extra_rd=(), extra_wr=()):
        dpp = ('dpp' in op)
        if kind is None:
            base = op.replace('_e64', '').replace('_e32', '')
            if base in ('v_exp_f32', 'v_rcp_f32', 'v_rsq_f32', 'v_log_f32', 'v_sqrt_f32'): kind = 'trans'
            elif base.startswith('v_permlane'): kind = 'perm'
            else: kind = 'valu'
        rd = []
        for x in src: rd += rg(x)
        if rmw or op.startswith('v_fmac') or op.startswith('v_permlane'): rd += rg(dst)
        wr = rg(dst)
        if op.startswith('v_permlane'): wr += rg(src[0])
        rd += list(extra_rd); wr += list(extra_wr)
        txt = f"{op} {dst}" + ''.join(f", {x}" for x in src) + (' ' + mod if mod else '')
        return s.add(Ins(txt, kind, rd=rd, wr=wr, dpp=dpp, rfl=op.startswith('v_readfirstlane') or op.startswith('v_readlane')))
    def cvt(s, d, a, b): return s.v('v_cvt_pk_bf16_f32', d, a, b)
    def s(s_, op, dst, *src, scc_w=True, scc_r=False):
        rd = []
        for x in src: rd += rg(x)
        wr = rg(dst)
        if op in ('s_mov_b32', 's_mov_b64', 's_mul_i32', 's_cselect_b32', 's_cselect_b64', 's_getpc_b64'): scc_w = False
        if op.startswith('s_cselect') or op.startswith('s_addc') or op.startswith('s_subb'): scc_r = True
        if op.startswith('s_cmp'):
            rd = rg(dst) + rd; wr = []
        if scc_w: wr = wr + ['scc']
        if scc_r: rd = rd + ['scc']
        txt = f"{op} {dst}" + ''.join(f", {x}" for x in src)
        return s_.add(Ins(txt, 'salu', rd=rd, wr=wr))
    def dsr(s, op, dst, addr, off=0, mrd=()):
        assert 0 <= off < 65536, off
        return s.add(Ins(f"{op} {dst}, {addr}" + (f" offset:{off}" if off else ''), 'ldsr',
                         rd=rg(addr) + list(mrd), wr=rg(dst)))
    def dsw(s, op, addr, data, off=0, mwr=(), mrd=()):
        assert 0 <= off < 65536, off
        return s.add(Ins(f"{op} {addr}, {data}" + (f" offset:{off}" if off else ''), 'ldsw',
                         rd=rg(addr) + rg(data) + list(mrd), wr=list(mwr)))
    def bload(s, op, dst, voff, srd, soff, off=0):
        assert 0 <= off < 4096
        return s.add(Ins(f"{op} {dst}, {voff}, {srd}, {soff} offen" + (f" offset:{off}" if off else ''), 'vmld',
                         rd=rg(voff) + rg(srd) + rg(soff), wr=rg(dst)))
    def dma(s, voff, srd, soff, off, tag):
        assert 0 <= off < 4096
        return s.add(Ins(f"buffer_load_dwordx4 {voff}, {srd}, {soff} offen" + (f" offset:{off}" if off else '') + " lds", 'dma',
                         rd=rg(voff) + rg(srd) + rg(soff) + ['m0'], wr=[tag]))
    def bstore(s, op, data, voff, srd, soff, off=0, mod=''):
        assert 0 <= off < 4096
        return s.add(Ins(f"{op} {data}, {voff}, {srd}, {soff} offen" + (f" offset:{off}" if off else '') + mod, 'vmst',
                         rd=rg(data) + rg(voff) + rg(srd) + rg(soff), wr=[], wide=(data.n >= 3), dregs=rg(data)))
    def raw(s, txt, kind='raw', rd=(), wr=()):
        return s.add(Ins(txt, kind, rd=rd, wr=wr))
    def label(s, name): return s.add(Ins(f"{name}:", 'label'))

def raw_edge(p, c, reg):
    pk, ck = p.kind, c.kind
    if reg.startswith('m:') or reg.startswith('o:'): return (4, 0)
    if pk == 'mfma':
        if ck == 'mfma' and reg in c.cregs and reg not in [r for r in c.rd if r not in c.cregs] :
            if c.cregs == p.dregs: return (8, 0)
            return (24, 6)
        return (28, 8)
    if pk in VALUK:
        ws = 0; lat = 8 if pk in ('trans', 'perm') else 4
        if reg[0] == 's' or reg == 'vcc':
            if ck in VALUK: ws = 2
            elif ck in ('vmld', 'vmst', 'dma'): ws = 5
            else: ws = 2
        else:
            if ck == 'mfma': ws = 2; lat += 4
            elif ck in VALUK:
                if c.dpp or ck == 'perm': ws = 2
                elif c.rfl: ws = 1
                elif pk == 'trans': ws = 1
        return (lat, ws)
    if pk == 'ldsr': return (LDS_LAT, 0)
    if pk in ('vmld', 'dma'): return (VM_LAT, 0)
    if pk == 'smem': return (200, 0)
    if pk == 'salu':
        if reg == 'm0' and ck == 'dma': return (4, 1)
        return (4, 0)
    return (4, 0)
LDS_LAT = 128
VM_LAT = 1500

def war_edge(p, c, reg):
    if p.kind == 'mfma' and reg in p.cregs and c.kind in VALUK: return (8, 3)
    if p.kind == 'vmst' and p.wide and reg in p.dregs:
        return (4, 2 if c.kind in VALUK else 1)
    return (p.cost if p.kind != 'mfma' else 8, 0)

def waw_edge(p, c, reg):
    pk = p.kind
    if reg[1] == ':': return (4, 0)
    if pk == 'mfma':
        if c.kind == 'mfma': return (8, 0)
        return (28, 8)
    if pk == 'ldsr': return (LDS_LAT, 0)
    if pk in ('vmld', 'dma'): return (VM_LAT, 0)
    return (4, 0)

def build_dag(L):
    n = len(L)
    preds = [dict() for _ in range(n)]
    lastw = {}; readers = {}
    def add(i, j, e):
        if i == j: return
        o = preds[j].get(i)
        if o is None: preds[j][i] = e
        else: preds[j][i] = (max(o[0], e[0]), max(o[1], e[1]))
    last_lds_dma = None
    for j, c in enumerate(L):
        for r in c.rd:
            if r in lastw: add(lastw[r], j, raw_edge(L[lastw[r]], c, r))
        for r in c.wr:
            if r in lastw: add(lastw[r], j, waw_edge(L[lastw[r]], c, r))
            for i in readers.get(r, ()): add(i, j, war_edge(L[i], c, r))
        for r in c.rd: readers.setdefault(r, []).append(j)
        for r in c.wr:
            lastw[r] = j; readers[r] = []
    return preds

def schedule(L, verbose=True, name='', window=None):
    n = len(L)
    preds = build_dag(L)
    succs = [[] for _ in range(n)]
    for j in range(n):
        for i, e in preds[j].items(): succs[i].append((j, e))
    height = [0] * n
    for i in range(n - 1, -1, -1):
        h = 0
        for j, e in succs[i]:
            h = max(h, e[0] + height[j])
        height[i] = h + L[i].cost + L[i].prio
    npred = [len(preds[j]) for j in range(n)]
    rtime = [0] * n
    ready = set(j for j in range(n) if npred[j] == 0)
    out = []; pos = [None] * n
    t = 0; mf = 0; idx = 0; stall = 0; nopc = 0
    lo = 0; done = [False] * n
    while ready:
        best = None; bk = None
        while lo < n and done[lo]: lo += 1
        for c in ready:
            if window is not None and c > lo + window: continue
            ins = L[c]
            est = max(rtime[c], t)
            if ins.kind == 'mfma': est = max(est, mf)
            need = 0
            for i, e in preds[c].items():
                if e[1]:
                    d = e[1] - (idx - pos[i] - 1)
                    if d > need: need = d
            if need > 0: est = max(est, t + 4 * need)
            now = est <= t
            if now:
                key = (0, 0 if ins.kind == 'mfma' else 1, -height[c], c)
            else:
                key = (1, est, -height[c], c)
            if bk is None or key < bk:
                bk = key; best = (c, est, need)
        c, est, need = best
        ins = L[c]
        if need > 0:
            out.append(Ins(f"s_nop {need-1}", 'nop')); idx += need; nopc += 1
        if est > t: stall += est - t
        t = est
        if ins.kind == 'mfma': mf = t + 16
        pos[c] = idx; idx += 1
        out.append(ins)
        ready.discard(c); done[c] = True
        for j, e in succs[c]:
            rtime[j] = max(rtime[j], t + e[0])
            npred[j] -= 1
            if npred[j] == 0: ready.add(j)
        t += ins.cost
    assert len([x for x in out if x.kind != 'nop']) == n
    if verbose:
        nm = sum(1 for x in L if x.kind == 'mfma')
        tot = sum(x.cost for x in L)
        print(f"[sched {name}] n={n} mfma={nm} (pipe {16*nm}) issue={tot} est={max(t,mf)} stall={stall} nops={nopc}", file=sys.stderr)
    return out

def strip_nops(L):
    return [x for x in L if x.kind != 'nop']

def insert_waits(L, vm0=(), lg0=()):
    vm = [list(x) for x in vm0]; lg = [list(x) for x in lg0]
    out = []
    for ins in L:
        if ins.kind in ('label',):
            out.append(ins); continue
        touched = set(ins.rd) | set(r for r in ins.wr if r[1] != ':')
        nv = None; nl = None
        for k, regs in enumerate(vm):
            if touched.intersection(regs):
                need = len(vm) - 1 - k
                nv = need if nv is None else min(nv, need)
        for k, regs in enumerate(lg):
            if touched.intersection(regs):
                need = len(lg) - 1 - k
                nl = need if nl is None else min(nl, need)
        if ins.kind == 'wait':
            a, b = ins.tag
            if a is not None: vm = vm[len(vm) - a:] if a < len(vm) else vm; vm = vm if a else []
            if b is not None: lg = lg[len(lg) - b:] if b < len(lg) else lg; lg = lg if b else []
            out.append(ins); continue
        if nv is not None or nl is not None:
            parts = []
            if nv is not None:
                nv = min(nv, 63); parts.append(f"vmcnt({nv})")
                vm = vm[len(vm) - nv:] if nv else []
            if nl is not None:
                nl = min(nl, 15); parts.append(f"lgkmcnt({nl})")
                lg = lg[len(lg) - nl:] if nl else []
            out.append(Ins("s_waitcnt " + ' '.join(parts), 'wait', tag=(nv, nl)))
        out.append(ins)
        if ins.kind in ('vmld', 'dma'): vm.append([r for r in ins.wr if not r.startswith('o:')])
        elif ins.kind == 'vmst': vm.append([])
        elif ins.kind == 'ldsr': lg.append([r for r in ins.wr if not r.startswith('m:')])
        elif ins.kind == 'ldsw': lg.append([])
        elif ins.kind == 'smem':
            raise Exception("smem only in fixed prologue")
        assert len(vm) <= 63, "vmcnt overflow"
    return out, vm, lg

def wait(P, vm=None, lg=None):
    parts = []
    if vm is not None: parts.append(f"vmcnt({vm})")
    if lg is not None: parts.append(f"lgkmcnt({lg})")
    return P.add(Ins("s_waitcnt " + ' '.join(parts), 'wait', tag=(vm, lg)))

def insert_nops(L, hist0=()):
    out = list(hist0)
    base = len(out)
    W = 12
    for c in L:
        if c.kind == 'label':
            out.append(c); continue
        need = 0
        dist = 0
        k = len(out) - 1
        rd = set(c.rd); wr = set(c.wr)
        while k >= 0 and dist < W:
            p = out[k]; k -= 1
            if p.kind == 'label': continue
            if p.kind == 'nop':
                dist += int(p.txt.split()[1]) + 1; continue
            ws = 0
            for r in p.wr:
                if r[1] == ':': continue
                if r in rd: ws = max(ws, raw_edge(p, c, r)[1])
                if r in wr: ws = max(ws, waw_edge(p, c, r)[1])
                if p.kind == 'mfma' and r in wr and c.kind in ('ldsr', 'vmld'): ws = max(ws, 8)
            for r in p.rd:
                if r in wr: ws = max(ws, war_edge(p, c, r)[1])
            if ws > dist: need = max(need, ws - dist)
            dist += 1
        while need > 0:
            m = min(need, 16)
            out.append(Ins(f"s_nop {m-1}", 'nop')); need -= m
        out.append(c)
    return out[base:]

class Pool:
    def __init__(s, f, start, size, count):
        s.f = f; s.start = start; s.size = size; s.count = count; s.k = 0
        s.end = start + size * count
    def get(s):
        r = R(s.f, s.start + s.size * s.k, s.size); s.k = (s.k + 1) % s.count
        return r
```

```python
import sys, struct, math
from core import *

DEBUG = None
for a in sys.argv[1:]:
    if a.startswith('--debug='): DEBUG = a.split('=')[1]

def f2u(x): return struct.unpack('<I', struct.pack('<f', x))[0]
def hx(x): return f"0x{x & 0xffffffff:x}"

TPL = 9633792
ROWB = 43008
WREG = 39936
EXO = 21504
SPARE = 4 * WREG
LDS_TOTAL = 163840
NPRE = 7

def pos0(tau): return 48 if tau == 0 else 4 * (tau - 1)
def goff(pos): return pos * 192 + (pos // 7) * 41664

sKA = S(0, 2); sWG = S(2)
sX = S(4, 4); sO = S(8, 4); sW = S(12, 4); sWo = S(16, 4)
sWave = S(20); sWin = S(21); sWB = S(22); sT0 = S(23)
sIT = [S(24 + i) for i in range(6)]
sMt = [None, S(30, 2), S(32, 2), S(34, 2)]
sValid = S(36, 2)
sG0 = S(38, 2)
sCross = {}
_i = 40
for k in range(3):
    for th in (1, 2, 3):
        sCross[(k, th)] = S(_i, 2); _i += 2
s96 = S(58); sC = S(59); sK41664 = S(60)
sSo = [S(61 + i) for i in range(4)]
sTmp = [S(65 + i) for i in range(16)]
sPtr = S(84, 12)
sDbg = S(96, 4)

VM1 = 224
def frag(mat, j, s):
    k = 3 * j + s
    if mat == 'M2': return A(4 * k, 4)
    if mat == 'W2': return A(72 + 4 * k, 4)
    if mat == 'W1': return A(144 + 4 * k, 4)
    if mat == 'M1': return A(216 + 4 * k, 4) if k < 10 else V(VM1 + 4 * (k - 10), 4)

vL = V(1); vN = V(2); vG = V(3)
vXA = V(4); vTR = V(5); vST = V(6)
vCst = [V(7), V(8), V(9)]; vCstX = [V(10), V(11), V(12)]
vEPS = V(13)
vOnes = V(16, 4)
vG16 = V(14)
vZero = V(15)

def setup(P):
    P.raw(f"s_cmp_ge_u32 s2, 256", 'salu', rd=['s2'], wr=['scc'])
    P.raw("s_cbranch_scc1 L_END", 'br', rd=['scc'])
    P.raw(f"s_load_dwordx8 s[84:91], s[0:1], 0", 'raw', wr=S(84, 8).regs())
    P.raw(f"s_load_dwordx4 s[92:95], s[0:1], 32", 'raw', wr=S(92, 4).regs())
    if DEBUG:
        P.raw(f"s_load_dwordx2 s[96:97], s[0:1], 56", 'raw', wr=S(96, 2).regs())
    P.v('v_and_b32', vL, 63, V(0))
    P.v('v_lshrrev_b32', V(20), 6, V(0))
    P.v('v_and_b32', vN, 15, V(0))
    P.v('v_readfirstlane_b32', sWave, V(20))
    P.v('v_lshrrev_b32', vG, 4, vL)
    P.v('v_lshlrev_b32', vG16, 4, vG)
    P.v('v_mov_b32', vZero, 0)
    P.s('s_lshl_b32', sT0, sWG, 2)
    P.s('s_add_u32', sT0, sT0, sWave)
    P.s('s_lshr_b32', sTmp[0], sT0, 5)
    P.s('s_and_b32', sTmp[1], sT0, 31)
    P.s('s_mul_i32', sTmp[0], sTmp[0], 301056)
    P.s('s_mul_i32', sTmp[1], sTmp[1], 1344)
    P.s('s_add_u32', sWin, sTmp[0], sTmp[1])
    P.s('s_mul_i32', sWB, sWave, WREG)
    for i in range(6): P.s('s_mov_b32', sIT[i], 9216 * i)
    P.s('s_mov_b32', s96, hx(f2u(1.0 / 96)))
    P.s('s_mov_b32', sC, hx(f2u(96 ** -0.5 * math.log2(math.e))))
    P.s('s_mov_b32', sK41664, 41664)
    P.raw("s_waitcnt lgkmcnt(0)", 'raw')
    x, wt, wot, wsp, wos, out = [sPtr[2 * i:2 * i + 2] for i in range(6)]
    P.s('s_mov_b32', sX[0], x[0]); P.s('s_mov_b32', sX[1], x[1]); P.s('s_mov_b32', sX[2], 38535168); P.s('s_mov_b32', sX[3], '0x20000')
    P.s('s_mov_b32', sO[0], out[0]); P.s('s_mov_b32', sO[1], out[1]); P.s('s_mov_b32', sO[2], 38535168); P.s('s_mov_b32', sO[3], '0x20000')
    P.s('s_cmp_lt_u32', sWave, 2)
    P.s('s_cselect_b32', sW[0], wt[0], wsp[0]); P.s('s_cselect_b32', sW[1], wt[1], wsp[1])
    P.s('s_mov_b32', sW[2], 55296); P.s('s_mov_b32', sW[3], '0x20000')
    P.s('s_cselect_b32', sWo[0], wot[0], wos[0]); P.s('s_cselect_b32', sWo[1], wot[1], wos[1])
    P.s('s_mov_b32', sWo[2], 18432); P.s('s_mov_b32', sWo[3], '0x20000')
    if DEBUG:
        P.s('s_mov_b32', sDbg[2], hx(268435456)); P.s('s_mov_b32', sDbg[3], '0x20000')

def dma_consts(P):
    u, rho, q, t, p, c, tmp = [V(20 + i) for i in range(7)]
    P.s('s_mov_b32', sTmp[2], 43691)
    P.s('s_mov_b32', sTmp[3], TPL)
    for k in range(3):
        P.v('v_add_u32', u, 64 * k if 64 * k <= 64 else hx(64 * k), vL)
        P.v('v_mul_u32_u24', rho, sTmp[2], u)
        P.v('v_lshrrev_b32', rho, 19, rho)
        P.v('v_mul_u32_u24', q, 12, rho)
        P.v('v_sub_u32', q, u, q)
        P.v('v_lshrrev_b32', t, 2, rho)
        P.v('v_and_b32', p, 3, rho)
        P.v('v_xor_b32', c, q, t)
        P.v('v_lshlrev_b32', c, 4, c)
        P.v('v_mul_lo_u32', tmp, t, sTmp[3])
        P.v('v_add_u32', c, c, tmp)
        P.v('v_mul_u32_u24', tmp, hx(192), p)
        P.v('v_add_u32', c, c, tmp)
        if k: P.v('v_subrev_u32', vCst[k], hx(1024 * k), c)
        else: P.v('v_mov_b32', vCst[k], c)
        P.v('v_add_u32', vCstX[k], hx(41664), vCst[k])
        for th in (1, 2, 3):
            P.v('v_cmp_le_u32_e64', sCross[(k, th)], th, p)

def dma_slot(P, tau, tmp):
    p0 = pos0(tau)
    th = None
    if tau != 0:
        for p in range(1, 4):
            if (p0 + p) // 7 != p0 // 7: th = p; break
    so = sTmp[8 + (tau % 4)]
    P.s('s_add_u32', so, sWin, hx(goff(p0)))
    P.s('s_add_u32', 'm0', sWB, hx(3072 * tau))
    for k in range(3):
        if th is None: vo = vCst[k]
        else:
            vo = tmp[k]
            P.v('v_cndmask_b32_e64', vo, vCst[k], vCstX[k], sCross[(k, th)])
        P.dma(vo, sX, so, 1024 * k, f"d:{tau}").rd.append('o:ord')

def lane_consts(P):
    t, p, r, c, tmp, tmp2 = [V(20 + i) for i in range(6)]
    P.v('v_and_b32', t, 3, vN)
    P.v('v_lshrrev_b32', p, 2, vN)
    P.v('v_lshl_add_u32', tmp, t, 2, p)
    P.v('v_mul_u32_u24', tmp, hx(192), tmp)
    P.v('v_xor_b32', tmp2, vG, t)
    P.v('v_lshl_add_u32', tmp, tmp2, 4, tmp)
    P.v('v_add_u32', vXA, sWB, tmp)
    P.v('v_lshrrev_b32', r, 2, vN)
    P.v('v_and_b32', c, 3, vN)
    P.v('v_lshl_add_u32', tmp, r, 2, vG)
    P.v('v_mul_u32_u24', tmp, hx(192), tmp)
    P.v('v_xor_b32', tmp2, c, r)
    P.v('v_lshl_add_u32', tmp, tmp2, 4, tmp)
    P.v('v_add_u32', vTR, sWB, tmp)
    for e in (1, 2, 3): P.v('v_cmp_eq_u32_e64', sMt[e], e, t)
    P.v('v_cmp_eq_u32_e64', sValid, vG, p)
    P.v('v_cmp_eq_u32_e64', sG0, 0, vG)
    P.v('v_mul_u32_u24', tmp, hx(768), t)
    P.v('v_lshl_add_u32', tmp, p, 2, tmp)
    P.v('v_add_u32', tmp, sWB, tmp)
    P.v('v_add_u32', tmp, hx(384), tmp)
    P.v('v_lshlrev_b32', tmp2, 2, vL)
    P.v('v_add_u32', tmp2, hx(SPARE), tmp2)
    P.v('v_cndmask_b32_e64', vST, tmp2, tmp, sValid)
    P.v('v_mov_b32', vEPS, hx(f2u(1e-5)))
    for i in range(4): P.v('v_mov_b32', vOnes[i], hx(0x3f803f80))

XD = 32
RB = 176
def xd(it, ot): return V(XD + (it * 6 + ot) * 4, 4)
def rb(ot, sg): return V(RB + (ot * 3 + sg) * 4, 4)

def fold_loads(P, isM):
    vA = V(20);
    P.v('v_mul_u32_u24', vA, hx(576), vN)
    P.v('v_add_u32', vA, vA, vG16)
    aoff = 0 if isM else 384
    for it in range(6):
        for s in range(3):
            P.bload('buffer_load_dwordx4', A((it * 3 + s) * 4, 4), vA, sW, sIT[it], aoff + 64 * s).wr.append('o:ord')
    if isM:
        for ot in range(6):
            for s in range(3):
                P.bload('buffer_load_dwordx4', A(72 + (ot * 3 + s) * 4, 4), vA, sW, sIT[ot], 192 + 64 * s).wr.append('o:ord')
    else:
        vB = V(21)
        P.v('v_lshlrev_b32', vB, 4, vL)
        P.s('s_add_u32', sTmp[4], sWB, hx(EXO))
        for k in range(18):
            g4 = k // 4
            if k % 4 == 0:
                P.s('s_add_u32', 'm0', sTmp[4], hx(4096 * g4))
                P.s('s_mov_b32', sTmp[5 + (g4 & 1)], hx(4096 * g4))
            P.dma(vB, sWo, sTmp[5 + (g4 & 1)], 1024 * (k % 4), f"d:wo{k}").wr.append('o:ord')

def fold_compute(P, isM):
    vW = V(22); vT = V(23); tmp = V(24); tmp2 = V(25); tmp3 = V(26)
    P.v('v_bfe_u32', tmp, vN, 2, 1)
    P.v('v_mul_u32_u24', vW, hx(3072), tmp)
    P.v('v_lshrrev_b32', tmp, 3, vN)
    P.v('v_lshlrev_b32', tmp, 6, tmp)
    P.v('v_add_u32', vW, vW, tmp)
    P.v('v_and_b32', tmp, 3, vN)
    P.v('v_lshl_add_u32', vW, tmp, 4, vW)
    P.v('v_lshrrev_b32', tmp, 1, vG)
    P.v('v_lshl_add_u32', vW, tmp, 8, vW)
    P.v('v_and_b32', tmp, 1, vG)
    P.v('v_lshl_add_u32', vW, tmp, 3, vW)
    P.v('v_add_u32', vW, sWB, vW)
    P.v('v_add_u32', vW, hx(EXO), vW)
    def woff(it, ot): return 6 * (ot >> 1) * 1024 + (ot & 1) * 128 + (it >> 1) * 1024 + (it & 1) * 512
    r = V(27); c = V(28)
    P.v('v_lshrrev_b32', r, 2, vN); P.v('v_and_b32', c, 3, vN)
    if not isM:
        P.v('v_lshl_add_u32', tmp, vG, 3, r)
        P.v('v_mul_u32_u24', tmp, hx(192), tmp)
        P.v('v_lshl_add_u32', vT, c, 3, tmp)
        P.v('v_add_u32', vT, sWB, vT)
        P.v('v_add_u32', vT, hx(EXO), vT)
        allwo = [f"d:wo{k}" for k in range(18)]
        for ot in range(6):
            for s in range(3):
                for hh in range(2):
                    rows = [32 * s + 4 * hh, 32 * s + 4 * hh + 24 + 3]
                    tags = [f"d:wo{k}" for k in range(rows[0] * 192 // 1024, min(17, ((rows[1] + 1) * 192 - 1) // 1024) + 1)]
                    P.dsr('ds_read_b64_tr_b16', A(72 + (ot * 3 + s) * 4 + 2 * hh, 2), vT, (32 * s + 4 * hh) * 192 + 32 * ot, mrd=tags + ['m:ex'])
    else:
        P.v('v_lshl_add_u32', tmp, vG, 2, r)
        P.v('v_lshlrev_b32', vT, 4, tmp)
        P.v('v_lshrrev_b32', tmp, 1, c)
        P.v('v_lshl_add_u32', vT, tmp, 8, vT)
        P.v('v_and_b32', tmp, 1, c)
        P.v('v_lshl_add_u32', vT, tmp, 3, vT)
        P.v('v_add_u32', vT, sWB, vT)
        P.v('v_add_u32', vT, hx(EXO), vT)
    for ot in range(6):
        for it in range(6):
            D = xd(it, ot)
            for s in range(3):
                P.mfma(D, A((it * 3 + s) * 4, 4), A(72 + (ot * 3 + s) * 4, 4), D if s else 0)
    for ot in range(6):
        for it in range(6):
            D = xd(it, ot); B = rb(ot, it >> 1)
            P.cvt(B[2 * (it & 1)], D[0], D[1]); P.cvt(B[2 * (it & 1) + 1], D[2], D[3])
    aD = [V(248, 4) if ot % 2 == 0 else V(252, 4) for ot in range(6)]
    aV = [V(20 + 0) for _ in range(6)]
    aS = [V(29), V(30), V(31), V(21), V(20), V(26)]
    for ot in range(6):
        D = aD[ot]
        for sg in range(3):
            P.mfma(D, vOnes, rb(ot, sg), D if sg else 0)
        P.v('v_mov_b32', aS[ot], D[0])
    UV = A(144, 48)
    for i in range(48):
        if i % 4: P.v('v_accvgpr_write_b32', UV[i], 0)
    sNeg96 = sTmp[7]; sI9216 = sTmp[12]
    P.s('s_mov_b32', sNeg96, hx(f2u(-1.0 / 96)))
    one = '1.0'
    if isM:
        for ot in range(6):
            for it in range(6):
                B = rb(ot, it >> 1)
                P.dsw('ds_write_b64', vW, B[2 * (it & 1):2 * (it & 1) + 2], woff(it, ot), mwr=['m:ex'])
        for it in range(6):
            for so in range(3):
                B = V(RB + (it * 3 + so) * 4, 4)
                for hh in range(2):
                    P.dsr('ds_read_b64_tr_b16', B[2 * hh:2 * hh + 2], vT, (6 * so + 3 * hh + (it >> 1)) * 1024 + (it & 1) * 512, mrd=['m:ex'])
        cs = tmp
        P.v('v_add_f32', cs, aS[0], aS[1]); P.v('v_add_f32', tmp2, aS[2], aS[3]); P.v('v_add_f32', tmp2, tmp2, aS[4])
        P.v('v_add_f32', cs, cs, tmp2); P.v('v_add_f32', cs, cs, aS[5])
        for sh in (8, 4, 2, 1):
            P.v('v_add_f32_dpp', cs, cs, cs, mod=f"row_ror:{sh} row_mask:0xf bank_mask:0xf")
        P.s('s_mov_b32', sI9216, hx(f2u(1.0 / 9216)))
        P.v('v_mul_f32', cs, sI9216, cs)
        for ot in range(6):
            P.v('v_fma_f32', aS[ot], aS[ot], sNeg96, cs)
            P.cvt(aS[ot], aS[ot], one)
            P.v('v_accvgpr_write_b32', UV[24 + 4 * ot], aS[ot])
        for it in range(6):
            D = aD[it]
            for so in range(3):
                P.mfma(D, vOnes, V(RB + (it * 3 + so) * 4, 4), D if so else 0)
            u = V(25) if it % 2 else V(27)
            P.v('v_mul_f32', u, sNeg96, D[0])
            P.cvt(u, one, u)
            P.v('v_cndmask_b32_e64', u, 0, u, sG0)
            P.v('v_accvgpr_write_b32', UV[4 * it], u)
        Uf = lambda it: UV[4 * it:4 * it + 4]
    else:
        for ot in range(6):
            P.v('v_mul_f32', aS[ot], sNeg96, aS[ot])
            P.cvt(aS[ot], aS[ot], vZero)
            P.v('v_accvgpr_write_b32', UV[24 + 4 * ot], aS[ot])
        u = V(25)
        P.v('v_mov_b32', u, hx(0x3f80))
        P.v('v_cndmask_b32_e64', u, 0, u, sG0)
        P.v('v_accvgpr_write_b32', UV[0], u)
        Uf = lambda it: UV[0:4]
    for ot in range(6):
        for it in range(6):
            D = xd(it, ot)
            P.mfma(D, Uf(it), UV[24 + 4 * ot:28 + 4 * ot], D)
            B = rb(ot, it >> 1)
            P.cvt(B[2 * (it & 1)], D[0], D[1]); P.cvt(B[2 * (it & 1) + 1], D[2], D[3])
            P.dsw('ds_write_b64', vW, B[2 * (it & 1):2 * (it & 1) + 2], woff(it, ot), mwr=['m:ex'])

def read_weights(P):
    va = [V(20), V(21), V(22), V(23)]
    P.v('v_lshlrev_b32', va[0], 4, vL)
    P.v('v_add_u32', va[0], hx(EXO), va[0])
    for w in range(1, 4): P.v('v_add_u32', va[w], hx(WREG * w), va[0])
    for w, mat in ((0, 'M1'), (1, 'W1'), (2, 'M2'), (3, 'W2')):
        for j in range(6):
            for s in range(3):
                P.dsr('ds_read_b128', frag(mat, j, s), va[w], (3 * j + s) * 1024)

class TP: pass
def t_pools():
    T = TP()
    T.xf = Pool('v', 20, 12, 2)
    T.D = Pool('v', 44, 4, 12)
    T.qB = Pool('v', 92, 12, 1)
    T.pvA = Pool('v', 104, 24, 2)
    T.sgm = Pool('v', 152, 12, 2)
    T.pB = Pool('v', 176, 4, 2)
    T.x1f = Pool('v', 184, 12, 1)
    T.tmp = Pool('v', 196, 8, 2)
    T.g2 = Pool('v', 212, 8, 1)
    T.dm = [V(220), V(221), V(222)]
    return T

def stats(P, G, Msum, tmp):
    d, a = tmp[0], tmp[1]
    P.v('v_cndmask_b32_e64', d, G[0], G[1], sMt[1])
    P.v('v_cndmask_b32_e64', d, d, G[2], sMt[2])
    P.v('v_cndmask_b32_e64', d, d, G[3], sMt[3])
    P.v('v_mul_f32', a, s96, Msum)
    P.v('v_fma_f32', d, Neg(a), Msum, d)
    P.v('v_fma_f32', d, d, s96, vEPS)
    P.v('v_rsq_f32', d, d)
    return d

def t_tile(P, T, tau):
    base = 3072 * tau
    xf = T.xf.get()
    for s in range(3):
        P.dsr('ds_read_b128', xf[4 * s:4 * s + 4], vXA, base + 64 * s, mrd=[f"d:{tau}", f"m:{tau}"])
    X = lambda s: xf[4 * s:4 * s + 4]
    sgm = T.sgm.get(); Sd, G, M = sgm[0:4], sgm[4:8], sgm[8:12]
    for s in range(3): P.mfma(G, X(s), X(s), G if s else 0)
    for s in range(3): P.mfma(M, vOnes, X(s), M if s else 0)
    qB = T.qB.get()
    for j in range(6):
        D = T.D.get()
        for s in range(3): P.mfma(D, frag('M1', j, s), X(s), D if s else 0)
        o = 4 * (j >> 1) + 2 * (j & 1)
        P.cvt(qB[o], D[0], D[1]); P.cvt(qB[o + 1], D[2], D[3])
    for s in range(3): P.mfma(Sd, X(s), qB[4 * s:4 * s + 4], Sd if s else 0)
    pvA = T.pvA.get()
    for j in range(6):
        D = T.D.get()
        for s in range(3): P.mfma(D, X(s), frag('W1', j, s), D if s else 0)
        P.cvt(pvA[4 * j], D[0], D[1]); P.cvt(pvA[4 * j + 1], D[2], D[3])
        P.dsr('ds_read_b64_tr_b16', pvA[4 * j + 2:4 * j + 4], vTR, base + 64 * (j >> 1) + 8 * (j & 1), mrd=[f"d:{tau}", f"m:{tau}"])
    tmp = T.tmp.get()
    r = stats(P, G, M[0], tmp)
    m, rq, nm, l, l2 = tmp[2], tmp[3], tmp[4], tmp[5], tmp[6]
    q = lambda e: f"quad_perm:[{e},{e},{e},{e}] row_mask:0xf bank_mask:0xf"
    for e in range(4): P.v('v_mul_f32_dpp', Sd[e], r, Sd[e], mod=q(e))
    P.v('v_max3_f32', m, Sd[0], Sd[1], Sd[2]); P.v('v_max_f32', m, m, Sd[3])
    P.v('v_mul_f32', rq, sC, r)
    P.v('v_mul_f32_e64', nm, Neg(m), rq)
    for e in range(4): P.v('v_fma_f32', Sd[e], Sd[e], rq, nm)
    for e in range(4): P.v('v_exp_f32', Sd[e], Sd[e])
    P.v('v_add_f32', l, Sd[0], Sd[1]); P.v('v_add_f32', l2, Sd[2], Sd[3]); P.v('v_add_f32', l, l, l2)
    P.v('v_rcp_f32', l, l)
    for e in range(4): P.v('v_mul_f32_dpp', Sd[e], r, Sd[e], mod=q(e))
    for e in range(4): P.v('v_mul_f32', Sd[e], Sd[e], l)
    pB = T.pB.get()
    P.cvt(Sd[0], Sd[0], Sd[1]); P.cvt(Sd[2], Sd[2], Sd[3])
    P.v('v_cndmask_b32_e64', pB[0], 0, Sd[0], sValid)
    P.v('v_cndmask_b32_e64', pB[1], 0, Sd[2], sValid)
    x1f = T.x1f.get()
    for j in range(6):
        D = T.D.get()
        P.mfma(D, pvA[4 * j:4 * j + 4], pB, 0)
        o = 4 * (j >> 1) + 2 * (j & 1)
        P.cvt(x1f[o], D[0], D[1]); P.cvt(x1f[o + 1], D[2], D[3])
    for s in range(3):
        P.dsw('ds_write_b128', vXA, x1f[4 * s:4 * s + 4], base + 64 * s, mwr=[f"m:{tau}"])
    g2 = T.g2.get(); G2, M2 = g2[0:4], g2[4:8]
    for s in range(3): P.mfma(G2, x1f[4 * s:4 * s + 4], x1f[4 * s:4 * s + 4], G2 if s else 0)
    for s in range(3): P.mfma(M2, vOnes, x1f[4 * s:4 * s + 4], M2 if s else 0)
    r2 = stats(P, G2, M2[0], [M2[1], M2[2]])
    P.dsw('ds_write_b32', vST, r2, 4 * pos0(tau), mwr=['m:st'], mrd=['m:0'])


sM = S(82, 2)
def onehot_pair(P, dst, d, lo, val, dh):
    P.v('v_and_b32', val, 1, d)
    P.v('v_lshlrev_b32', val, 4, val)
    P.v('v_lshlrev_b32', val, val, vC3f80)
    P.v('v_ashrrev_i32', dh, 1, d)
    P.v('v_cmp_eq_i32_e64', sM, lo // 2, dh)
    P.v('v_cndmask_b32_e64', dst, 0, val, sM)

vC3f80 = V(223)
def t_consts(P, T):
    d = V(220); a = V(221); b = V(222)
    P.v('v_mov_b32', vC3f80, hx(0x3f80))
    P.v('v_lshlrev_b32', d, 2, vG)
    P.v('v_sub_u32', d, vN, d)
    for k in range(2):
        pB = V(176 + 4 * k, 4)
        for h in range(2):
            onehot_pair(P, pB[2 + h], d, 2 * h, a, b)

class SP: pass
def s_pools():
    Q = SP()
    Q.V2A = V(20, 48)
    Q.D = Pool('v', 68, 4, 8)
    Q.XQ = Pool('v', 100, 12, 2)
    Q.qB = Pool('v', 124, 12, 1)
    Q.sD = Pool('v', 136, 16, 2)
    Q.PB = Pool('v', 168, 8, 2)
    Q.RK = V(184, 16)
    Q.tmp = Pool('v', 200, 8, 2)
    Q.outp = Pool('v', 216, 12, 1)
    Q.XK = Pool('a', 144, 48, 2)
    Q.K0 = V(228); Q.Q3 = V(229); Q.TA = [V(230 + j) for j in range(4)]; Q.OA = [V(234 + j) for j in range(4)]
    Q.vRK = V(238); Q.vRQ = V(239); Q.vWB = V(240); Q.XL0 = V(241)
    Q.cL = V(244, 4); Q.cD0 = V(242); Q.cD1 = V(243)
    Q.Kw = Pool('v', 248, 1, 2); Q.XLw = Pool('v', 250, 1, 1); Q.Qw = Pool('v', 251, 1, 2); Q.Tw = Pool('v', 253, 1, 2)
    Q.t0 = V(4); Q.t1 = V(5); Q.t2 = V(6); Q.t3 = V(7); Q.t4 = V(8)
    return Q

def s_consts(P, Q):
    t0, t1, t2, t3, t4 = Q.t0, Q.t1, Q.t2, Q.t3, Q.t4
    P.v('v_mov_b32', Q.vWB, sWB)
    P.v('v_add_u32', Q.XL0, Q.vWB, vG16)
    P.v('v_lshrrev_b32', t0, 2, vN); P.v('v_and_b32', t1, 3, vN)
    P.v('v_mul_u32_u24', t2, hx(3072), t0)
    P.v('v_mul_u32_u24', t3, hx(192), t1)
    P.v('v_add3_u32', t2, t2, t3, Q.XL0)
    P.v('v_add_u32', Q.K0, hx(3072), t2)
    P.v('v_add_u32', t2, hx(27648), Q.K0)
    P.v('v_cmp_le_u32_e64', sM, 12, vN)
    P.v('v_cndmask_b32_e64', Q.Q3, t2, Q.XL0, sM)
    P.v('v_lshl_add_u32', t2, vG, 2, t0)
    P.v('v_add_u32', t3, -1, t2)
    P.v('v_ashrrev_i32', t4, 2, t3)
    P.v('v_mul_i32_i24', t4, hx(3072), t4)
    P.v('v_and_b32', t3, 3, t3)
    P.v('v_mul_u32_u24', t3, hx(192), t3)
    P.v('v_lshl_add_u32', t1, t1, 4, Q.vWB)
    P.v('v_add3_u32', t3, t3, t4, t1)
    P.v('v_add_u32', t3, hx(3072), t3)
    P.v('v_add_u32', t4, hx(192), t1)
    sS0 = S(40, 2); sS13 = S(42, 2)
    P.v('v_cmp_eq_u32_e64', sS0, 0, t2)
    P.v('v_cmp_le_u32_e64', sS13, 13, t2)
    for j in range(4):
        if j: P.v('v_add_u32', t3, hx(9216), t3)
        if j < 3:
            P.v('v_cndmask_b32_e64', Q.TA[j], t3, t4, sS0)
        else:
            P.v('v_cndmask_b32_e64', Q.TA[j], t3, t1, sS13)
            P.v('v_cndmask_b32_e64', Q.TA[j], Q.TA[j], t4, sS0)
    for j in range(4):
        P.v('v_add_u32', t0, 12 * j, vN)
        P.v('v_mul_u32_u24', t2, 37, t0)
        P.v('v_lshrrev_b32', t2, 8, t2)
        P.v('v_mul_u32_u24', t2, sK41664, t2)
        P.v('v_mul_u32_u24', t0, hx(192), t0)
        P.v('v_add3_u32', t0, t0, t2, vG16)
        P.v('v_cmp_gt_u32_e64', sM, 12 if j < 3 else 13, vN)
        P.v('v_mov_b32', t2, hx(0x7f000000))
        P.v('v_cndmask_b32_e64', Q.OA[j], t2, t0, sM)
    P.v('v_add_u32', Q.vRK, hx(384), Q.XL0)
    P.v('v_lshl_add_u32', t0, vN, 2, Q.vWB)
    P.v('v_add_u32', Q.vRQ, hx(384), t0)
    P.v('v_mov_b32', t0, hx(0xff800000))
    P.v('v_cndmask_b32_e64', Q.cL[0], t0, 0, sG0)
    for e in (1, 2, 3): P.v('v_mov_b32', Q.cL[e], 0)
    P.v('v_lshlrev_b32', t0, 2, vG)
    P.v('v_sub_u32', t0, vN, t0)
    P.v('v_add_u32', t0, 1, t0)
    P.v('v_cmp_eq_u32_e64', sM, 0, t0)
    P.v('v_cndmask_b32_e64', t1, 0, 1.0, sM)
    P.v('v_cndmask_b32_e64', Q.cD0, t1, 0, sG0)
    P.v('v_cmp_eq_u32_e64', sM, 1, t0)
    P.v('v_cndmask_b32_e64', Q.cD1, 0, 1.0, sM)
    P.v('v_mov_b32', vC3f80, hx(0x3f80)) if False else None
    P.v('v_mov_b32', t4, hx(0x3f80))
    for k in range(2):
        dst = V(168 + 8 * k + 7)
        P.v('v_and_b32', t1, 1, t0)
        P.v('v_lshlrev_b32', t1, 4, t1)
        P.v('v_lshlrev_b32', t1, t1, t4)
        P.v('v_ashrrev_i32', t2, 1, t0)
        P.v('v_cmp_eq_i32_e64', sM, 1, t2)
        P.v('v_cndmask_b32_e64', dst, 0, t1, sM)
    for w in range(4):
        P.s('s_add_u32', sSo[w], sWin, hx(TPL * w))

def v2l(P, Q):
    t0, t1 = Q.t2, Q.t3
    XL = Q.XQ.get()
    P.v('v_and_b32', t0, 3, vN)
    P.v('v_xor_b32', t1, vG, t0)
    P.v('v_lshlrev_b32', t1, 4, t1)
    P.v('v_mul_u32_u24', t0, hx(768), t0)
    P.v('v_add3_u32', t0, t0, t1, Q.vWB)
    for s in range(3):
        P.dsr('ds_read_b128', XL[4 * s:4 * s + 4], t0, 64 * s, mrd=['m:0'])
    ob = Q.outp.get()
    for j in range(6):
        D = Q.D.get()
        for s in range(3): P.mfma(D, frag('W2', j, s), XL[4 * s:4 * s + 4], D if s else 0)
        o = 4 * (j >> 1) + 2 * (j & 1)
        P.cvt(ob[o], D[0], D[1]); P.cvt(ob[o + 1], D[2], D[3])
    for s in range(3):
        P.dsw('ds_write_b128', t0, ob[4 * s:4 * s + 4], 192 + 64 * s, mwr=['m:v2l'], mrd=['m:0'])

def s_window(P, Q, w):
    XK = Q.XK.get()
    if w:
        Kw = Q.Kw.get(); P.v('v_xor_b32', Kw, 16 * w, Q.K0)
        XLw = Q.XLw.get(); P.v('v_xor_b32', XLw, 16 * w, Q.XL0)
    else:
        Kw = Q.K0; XLw = Q.XL0
    xk = lambda kt, s: XK[12 * kt + 4 * s:12 * kt + 4 * s + 4]
    for kt in range(3):
        for s in range(3):
            P.dsr('ds_read_b128', xk(kt, s), Kw, 768 * w + 12288 * kt + 64 * s, mrd=[f"m:{4*kt+1+i}" for i in range(4)])
    for s in range(3):
        P.dsr('ds_read_b128', xk(3, s), XLw, 768 * w + 64 * s, mrd=['m:0'])
    RK = Q.RK
    for kt in range(3):
        P.dsr('ds_read_b128', RK[4 * kt:4 * kt + 4], Q.vRK, 768 * w + 64 * kt, mrd=['m:st'])
    P.dsr('ds_read_b32', RK[12], Q.vWB, 768 * w + 384 + 192, mrd=['m:st'])
    V2A = Q.V2A
    for kt in range(3):
        for j in range(6):
            D = Q.D.get()
            for s in range(3): P.mfma(D, xk(kt, s), frag('W2', j, s), D if s else 0)
            o = 8 * j + 4 * (kt >> 1) + 2 * (kt & 1)
            P.cvt(V2A[o], D[0], D[1]); P.cvt(V2A[o + 1], D[2], D[3])
    for jq in range(4):
        XQ = Q.XQ.get()
        slots = sorted(set((((min(12 * jq + n, 48)) >> 2) + 1) % 13 for n in range(16)))
        mr = [f"m:{x}" for x in slots]
        if jq < 3:
            qa, qoff = Kw, 9216 * jq
        else:
            qoff = 0
            if w:
                qa = Q.Qw.get(); P.v('v_xor_b32', qa, 16 * w, Q.Q3)
            else: qa = Q.Q3
        for s in range(3):
            P.dsr('ds_read_b128', XQ[4 * s:4 * s + 4], qa, 768 * w + qoff + 64 * s, mrd=mr)
        tmp = Q.tmp.get()
        rq, m, y, nm, l, l2, l3 = tmp[0], tmp[1], tmp[2], tmp[3], tmp[4], tmp[5], tmp[6]
        P.dsr('ds_read_b32', rq, Q.vRQ, 768 * w + 48 * jq, mrd=['m:st'])
        qB = Q.qB.get()
        for j in range(6):
            D = Q.D.get()
            for s in range(3): P.mfma(D, frag('M2', j, s), XQ[4 * s:4 * s + 4], D if s else 0)
            o = 4 * (j >> 1) + 2 * (j & 1)
            P.cvt(qB[o], D[0], D[1]); P.cvt(qB[o + 1], D[2], D[3])
        SD = Q.sD.get()
        for kt in range(4):
            D = SD[4 * kt:4 * kt + 4]
            for s in range(3):
                P.mfma(D, xk(kt, s), qB[4 * s:4 * s + 4], D if s else (Q.cL if kt == 3 else 0))
        if w:
            ta = Q.Tw.get(); P.v('v_xor_b32', ta, 16 * w, Q.TA[jq])
        else: ta = Q.TA[jq]
        for j in range(6):
            P.dsr('ds_read_b64_tr_b16', V2A[8 * j + 6:8 * j + 8], ta, 768 * w + 64 * (j >> 1) + 8 * (j & 1), mrd=mr + ['m:v2l', 'm:0'])
        vals = [SD[i] for i in range(13)]
        rks = [RK[i] for i in range(13)]
        P.v('v_mul_f32', rq, sC, rq)
        for i in range(13): P.v('v_mul_f32', vals[i], vals[i], rks[i])
        P.v('v_max3_f32', m, vals[0], vals[1], vals[2])
        P.v('v_max3_f32', y, vals[3], vals[4], vals[5])
        P.v('v_max3_f32', nm, vals[6], vals[7], vals[8])
        P.v('v_max3_f32', l, vals[9], vals[10], vals[11])
        P.v('v_max3_f32', m, m, y, nm)
        P.v('v_max3_f32', m, m, l, vals[12])
        for op in ('v_permlane32_swap_b32', 'v_permlane16_swap_b32'):
            P.v('v_mov_b32', y, m)
            P.v(op, m, y)
            P.v('v_max_f32', m, m, y)
        P.v('v_mul_f32_e64', nm, Neg(m), rq)
        for i in range(13): P.v('v_fma_f32', vals[i], vals[i], rq, nm)
        for i in range(13): P.v('v_exp_f32', vals[i], vals[i])
        P.v('v_add_f32', l, vals[0], vals[1]); P.v('v_add_f32', l2, vals[2], vals[3]); P.v('v_add_f32', l3, vals[4], vals[5])
        P.v('v_add_f32', m, vals[6], vals[7]); P.v('v_add_f32', y, vals[8], vals[9]); P.v('v_add_f32', nm, vals[10], vals[11])
        P.v('v_add_f32', l, l, l2); P.v('v_add_f32', l3, l3, m); P.v('v_add_f32', y, y, nm)
        P.v('v_add_f32', l, l, l3); P.v('v_add_f32', y, y, vals[12]); P.v('v_add_f32', l, l, y)
        for op in ('v_permlane32_swap_b32', 'v_permlane16_swap_b32'):
            P.v('v_mov_b32', y, l)
            P.v(op, l, y)
            P.v('v_add_f32', l, l, y)
        P.v('v_rcp_f32', l, l)
        for i in range(13): P.v('v_mul_f32', vals[i], vals[i], rks[i])
        for i in range(12): P.v('v_mul_f32', vals[i], vals[i], l)
        P.v('v_fma_f32', vals[12], vals[12], l, Q.cD0)
        PB = Q.PB.get()
        for i in range(6): P.cvt(PB[i], vals[2 * i], vals[2 * i + 1])
        P.cvt(PB[6], vals[12], Q.cD1)
        ob = Q.outp.get()
        for j in range(6):
            D = Q.D.get()
            P.mfma(D, V2A[8 * j:8 * j + 4], PB[0:4], 0)
            P.mfma(D, V2A[8 * j + 4:8 * j + 8], PB[4:8], D)
            o = 4 * (j >> 1) + 2 * (j & 1)
            P.cvt(ob[o], D[0], D[1]); P.cvt(ob[o + 1], D[2], D[3])
        for s in range(3):
            P.bstore('buffer_store_dwordx4', ob[4 * s:4 * s + 4], Q.OA[jq], sO, sSo[w], 64 * s)

def dbg_srd(P):
    P.s('s_mov_b32', sDbg[0], S(96)) if False else None

def dump_regs(P, regs4, slot_bytes):
    va = V(0)
    P.s('s_lshl_b32', sT0, sWG, 2); P.s('s_add_u32', sT0, sT0, sWave)
    P.s('s_mul_i32', sT0, sT0, slot_bytes)
    P.v('v_lshlrev_b32', va, 4, vL)
    for k, r in enumerate(regs4):
        P.s('s_add_u32', sTmp[0], sT0, hx(1024 * k))
        P.bstore('buffer_store_dwordx4', r, va, sDbg, sTmp[0], 0)
        P.raw('s_waitcnt vmcnt(0)', 'raw')

def dump_lds(P, nbytes):
    va = V(0); vb = V(20); d = V(24, 4)
    P.s('s_lshl_b32', sT0, sWG, 2); P.s('s_add_u32', sT0, sT0, sWave)
    P.s('s_mul_i32', sT0, sT0, nbytes)
    P.v('v_lshlrev_b32', va, 4, vL)
    P.v('v_add_u32', vb, sWB, va)
    for k in range(nbytes // 1024):
        P.raw(f"ds_read_b128 {d}, {vb} offset:{1024*k}", 'raw')
        P.raw('s_waitcnt lgkmcnt(0)', 'raw')
        P.s('s_add_u32', sTmp[0], sT0, hx(1024 * k))
        P.raw(f"buffer_store_dwordx4 {d}, {va}, {sDbg}, {sTmp[0]} offen", 'raw')
        P.raw('s_waitcnt vmcnt(0)', 'raw')

def finalize(L, vm0=(), lg0=(), hist=()):
    L = strip_nops(L)
    L, vm, lg = insert_waits(L, vm0, lg0)
    L = insert_nops(L, hist)
    return L, vm, lg

def main():
    out = []
    P = Prog(); setup(P)
    P.s('s_and_b32', sTmp[0], sWave, 1)
    P.s('s_cmp_eq_u32', sTmp[0], 1)
    P.raw("s_cbranch_scc1 L_FOLDW", 'br', rd=['scc'])
    pre, _, _ = finalize(P.L)
    out += pre
    ends = []
    for isM in (True, False):
        P = Prog()
        fold_loads(P, isM)
        dma_consts(P)
        for tau in range(NPRE): dma_slot(P, tau, [V(29), V(30), V(31)])
        lane_consts(P)
        fold_compute(P, isM)
        L = schedule(P.L, name='foldM' if isM else 'foldW')
        P2 = Prog(); wait(P2, lg=0)
        L += P2.L
        if not isM: out.append(Ins("L_FOLDW:", 'label'))
        L, vm, lg = finalize(L, hist=pre[-4:])
        out += L
        ends.append(vm)
        if isM: out.append(Ins("s_branch L_JOIN", 'br'))
    out.append(Ins("L_JOIN:", 'label'))
    vm0 = ends[0] if len(ends[0]) >= len(ends[1]) else ends[1]
    print("pending at join:", ends, file=sys.stderr)
    P = Prog()
    P.raw('s_nop 7', 'raw'); P.raw('s_barrier', 'bar')
    read_weights(P)
    wait(P, lg=0)
    P.raw('s_barrier', 'bar')
    L, vm0, _ = finalize(P.L, vm0=vm0)
    out += L
    if DEBUG == 'fold':
        P = Prog()
        regs = [frag(m, j, s) for m in ('M1', 'W1', 'M2', 'W2') for j in range(6) for s in range(3)]
        dump_regs(P, regs, 72 * 1024)
        out += insert_nops(P.L)
    else:
        P = Prog()
        T = t_pools()
        t_consts(P, T)
        for tau in range(13):
            if tau + NPRE <= 12: dma_slot(P, tau + NPRE, T.dm)
            t_tile(P, T, tau)
        if DEBUG != 'x1':
            Q = s_pools()
            s_consts(P, Q)
            v2l(P, Q)
            for w in range(4): s_window(P, Q, w)
        L = schedule(P.L, name='main', window=WINDOW)
        L, vm, lg = finalize(L, vm0=vm0)
        out += L
        if DEBUG == 'x1':
            P = Prog(); P.raw('s_waitcnt vmcnt(0) lgkmcnt(0)', 'raw')
            dump_lds(P, WREG)
            out += insert_nops(P.L)
    out.append(Ins("L_END:", 'label'))
    out.append(Ins("s_endpgm", 'raw'))
    hdr = open('orig.s').read()
    head = hdr[:hdr.index('; @launch')]
    txt = head + f"; @launch grid=(256,1,1) block=(256,1,1) lds={LDS_TOTAL}\n"
    txt += '.amdgcn_target "amdgcn-amd-amdhsa--gfx950"\n.text\n.globl standalone__video_video_swin__vision_kernel\n.p2align 8\n'
    txt += '.type standalone__video_video_swin__vision_kernel,@function\nstandalone__video_video_swin__vision_kernel:\n'
    for ins in out:
        txt += (ins.txt if ins.kind == 'label' else '  ' + ins.txt) + '\n'
    txt += """.section .rodata,"a"
.p2align 6
.amdhsa_kernel standalone__video_video_swin__vision_kernel
  .amdhsa_next_free_vgpr 512
  .amdhsa_next_free_sgpr 102
  .amdhsa_accum_offset 256
  .amdhsa_group_segment_fixed_size 0
  .amdhsa_kernarg_size 64
  .amdhsa_user_sgpr_count 2
  .amdhsa_user_sgpr_kernarg_segment_ptr 1
  .amdhsa_system_sgpr_workgroup_id_x 1
.end_amdhsa_kernel
"""
    o = [a for a in sys.argv[1:] if not a.startswith('--')]
    open(o[0] if o else 'out.s', 'w').write(txt)
    print("instructions:", len(out), file=sys.stderr)

WINDOW = 700
if __name__ == '__main__': main()
```

```python
import sys, struct, math
from core import *

DEBUG = None
for a in sys.argv[1:]:
    if a.startswith('--debug='): DEBUG = a.split('=')[1]

def f2u(x): return struct.unpack('<I', struct.pack('<f', x))[0]
def hx(x): return f"0x{x & 0xffffffff:x}"

TPL = 9633792
ROWB = 43008
WREG = 39936
EXO = 21504
SPARE = 4 * WREG
LDS_TOTAL = 163840
NPRE = 7

def pos0(tau): return 48 if tau == 0 else 4 * (tau - 1)
def goff(pos): return pos * 192 + (pos // 7) * 41664

sKA = S(0, 2); sWG = S(2)
sX = S(4, 4); sO = S(8, 4); sW = S(12, 4); sWo = S(16, 4)
sWave = S(20); sWin = S(21); sWB = S(22); sT0 = S(23)
sIT = [S(24 + i) for i in range(6)]
sMt = [None, S(30, 2), S(32, 2), S(34, 2)]
sValid = S(36, 2)
sG0 = S(38, 2)
sCross = {}
_i = 40
for k in range(3):
    for th in (1, 2, 3):
        sCross[(k, th)] = S(_i, 2); _i += 2
s96 = S(58); sC = S(59); sK41664 = S(60)
sSo = [S(61 + i) for i in range(4)]
sTmp = [S(65 + i) for i in range(16)]
sPtr = S(84, 12)
sDbg = S(96, 4)

VM1 = 224
def frag(mat, j, s):
    k = 3 * j + s
    if mat == 'M2': return A(4 * k, 4)
    if mat == 'W2': return A(72 + 4 * k, 4)
    if mat == 'W1': return A(144 + 4 * k, 4)
    if mat == 'M1': return A(216 + 4 * k, 4) if k < 10 else V(VM1 + 4 * (k - 10), 4)

vL = V(1); vN = V(2); vG = V(3)
vXA = V(4); vTR = V(5); vST = V(6)
vCst = [V(7), V(8), V(9)]; vCstX = [V(10), V(11), V(12)]
vEPS = V(13)
vOnes = V(16, 4)
vG16 = V(14)
vZero = V(15)

def setup(P):
    P.raw(f"s_cmp_ge_u32 s2, 256", 'salu', rd=['s2'], wr=['scc'])
    P.raw("s_cbranch_scc1 L_END", 'br', rd=['scc'])
    ts(P, 0)
    P.raw(f"s_load_dwordx8 s[84:91], s[0:1], 0", 'raw', wr=S(84, 8).regs())
    P.raw(f"s_load_dwordx4 s[92:95], s[0:1], 32", 'raw', wr=S(92, 4).regs())
    if DEBUG or TIME:
        P.raw(f"s_load_dwordx2 s[96:97], s[0:1], 56", 'raw', wr=S(96, 2).regs())
    P.v('v_and_b32', vL, 63, V(0))
    P.v('v_lshrrev_b32', V(20), 6, V(0))
    P.v('v_and_b32', vN, 15, V(0))
    P.v('v_readfirstlane_b32', sWave, V(20))
    P.v('v_lshrrev_b32', vG, 4, vL)
    P.v('v_lshlrev_b32', vG16, 4, vG)
    P.v('v_mov_b32', vZero, 0)
    P.s('s_lshl_b32', sT0, sWG, 2)
    P.s('s_add_u32', sT0, sT0, sWave)
    P.s('s_lshr_b32', sTmp[0], sT0, 5)
    P.s('s_and_b32', sTmp[1], sT0, 31)
    P.s('s_mul_i32', sTmp[0], sTmp[0], 301056)
    P.s('s_mul_i32', sTmp[1], sTmp[1], 1344)
    P.s('s_add_u32', sWin, sTmp[0], sTmp[1])
    P.s('s_mul_i32', sWB, sWave, WREG)
    for i in range(6): P.s('s_mov_b32', sIT[i], 9216 * i)
    P.s('s_mov_b32', s96, hx(f2u(1.0 / 96)))
    P.s('s_mov_b32', sC, hx(f2u(96 ** -0.5 * math.log2(math.e))))
    P.s('s_mov_b32', sK41664, 41664)
    P.raw("s_waitcnt lgkmcnt(0)", 'raw')
    x, wt, wot, wsp, wos, out = [sPtr[2 * i:2 * i + 2] for i in range(6)]
    P.s('s_mov_b32', sX[0], x[0]); P.s('s_mov_b32', sX[1], x[1]); P.s('s_mov_b32', sX[2], 38535168); P.s('s_mov_b32', sX[3], '0x20000')
    P.s('s_mov_b32', sO[0], out[0]); P.s('s_mov_b32', sO[1], out[1]); P.s('s_mov_b32', sO[2], 38535168); P.s('s_mov_b32', sO[3], '0x20000')
    P.s('s_cmp_lt_u32', sWave, 2)
    P.s('s_cselect_b32', sW[0], wt[0], wsp[0]); P.s('s_cselect_b32', sW[1], wt[1], wsp[1])
    P.s('s_mov_b32', sW[2], 55296); P.s('s_mov_b32', sW[3], '0x20000')
    P.s('s_cselect_b32', sWo[0], wot[0], wos[0]); P.s('s_cselect_b32', sWo[1], wot[1], wos[1])
    P.s('s_mov_b32', sWo[2], 18432); P.s('s_mov_b32', sWo[3], '0x20000')
    if DEBUG or TIME:
        P.s('s_mov_b32', sDbg[2], hx(268435456)); P.s('s_mov_b32', sDbg[3], '0x20000')

def dma_consts(P):
    u, rho, q, t, p, c, tmp = [V(20 + i) for i in range(7)]
    P.s('s_mov_b32', sTmp[2], 43691)
    P.s('s_mov_b32', sTmp[3], TPL)
    for k in range(3):
        P.v('v_add_u32', u, 64 * k if 64 * k <= 64 else hx(64 * k), vL)
        P.v('v_mul_u32_u24', rho, sTmp[2], u)
        P.v('v_lshrrev_b32', rho, 19, rho)
        P.v('v_mul_u32_u24', q, 12, rho)
        P.v('v_sub_u32', q, u, q)
        P.v('v_lshrrev_b32', t, 2, rho)
        P.v('v_and_b32', p, 3, rho)
        P.v('v_xor_b32', c, q, t)
        P.v('v_lshlrev_b32', c, 4, c)
        P.v('v_mul_lo_u32', tmp, t, sTmp[3])
        P.v('v_add_u32', c, c, tmp)
        P.v('v_mul_u32_u24', tmp, hx(192), p)
        P.v('v_add_u32', c, c, tmp)
        if k: P.v('v_subrev_u32', vCst[k], hx(1024 * k), c)
        else: P.v('v_mov_b32', vCst[k], c)
        P.v('v_add_u32', vCstX[k], hx(41664), vCst[k])
        for th in (1, 2, 3):
            P.v('v_cmp_le_u32_e64', sCross[(k, th)], th, p)

def dma_slot(P, tau, tmp):
    p0 = pos0(tau)
    th = None
    if tau != 0:
        for p in range(1, 4):
            if (p0 + p) // 7 != p0 // 7: th = p; break
    so = sTmp[8 + (tau % 4)]
    P.s('s_add_u32', so, sWin, hx(goff(p0)))
    P.s('s_add_u32', 'm0', sWB, hx(3072 * tau))
    for k in range(3):
        if th is None: vo = vCst[k]
        else:
            vo = tmp[k]
            P.v('v_cndmask_b32_e64', vo, vCst[k], vCstX[k], sCross[(k, th)])
        P.dma(vo, sX, so, 1024 * k, f"d:{tau}").rd.append('o:ord')

sTS = [S(66 + 2 * i, 2) for i in range(0)]
TSREG = 100
def ts(P, k, rd=()):
    if DEBUG != 'time' and not TIME: return
    r = TSR[k]
    P.add(Ins(f"s_memtime {r}", 'salu', rd=list(rd), wr=r.regs()))
TIME = '--time' in sys.argv
TSR = {0: S(100, 2), 1: S(84, 2), 2: S(86, 2), 3: S(88, 2), 4: S(90, 2), 5: S(92, 2), 6: S(94, 2), 7: S(78, 2), 8: S(80, 2)}
def lane_consts(P):
    t, p, r, c, tmp, tmp2 = [V(20 + i) for i in range(6)]
    P.v('v_and_b32', t, 3, vN)
    P.v('v_lshrrev_b32', p, 2, vN)
    P.v('v_lshl_add_u32', tmp, t, 2, p)
    P.v('v_mul_u32_u24', tmp, hx(192), tmp)
    P.v('v_xor_b32', tmp2, vG, t)
    P.v('v_lshl_add_u32', tmp, tmp2, 4, tmp)
    P.v('v_add_u32', vXA, sWB, tmp)
    P.v('v_lshrrev_b32', r, 2, vN)
    P.v('v_and_b32', c, 3, vN)
    P.v('v_lshl_add_u32', tmp, r, 2, vG)
    P.v('v_mul_u32_u24', tmp, hx(192), tmp)
    P.v('v_xor_b32', tmp2, c, r)
    P.v('v_lshl_add_u32', tmp, tmp2, 4, tmp)
    P.v('v_add_u32', vTR, sWB, tmp)
    for e in (1, 2, 3): P.v('v_cmp_eq_u32_e64', sMt[e], e, t)
    P.v('v_cmp_eq_u32_e64', sValid, vG, p)
    P.v('v_cmp_eq_u32_e64', sG0, 0, vG)
    P.v('v_mul_u32_u24', tmp, hx(768), t)
    P.v('v_lshl_add_u32', tmp, p, 2, tmp)
    P.v('v_add_u32', tmp, sWB, tmp)
    P.v('v_add_u32', tmp, hx(384), tmp)
    P.v('v_lshlrev_b32', tmp2, 2, vL)
    P.v('v_add_u32', tmp2, hx(SPARE), tmp2)
    P.v('v_cndmask_b32_e64', vST, tmp2, tmp, sValid)
    P.v('v_mov_b32', vEPS, hx(f2u(1e-5)))
    for i in range(4): P.v('v_mov_b32', vOnes[i], hx(0x3f803f80))

XD = 32
RB = 176
def xd(it, ot): return V(XD + (it * 6 + ot) * 4, 4)
def rb(ot, sg): return V(RB + (ot * 3 + sg) * 4, 4)

def fold_loads(P, isM):
    vA = V(20);
    P.v('v_mul_u32_u24', vA, hx(576), vN)
    P.v('v_add_u32', vA, vA, vG16)
    aoff = 0 if isM else 384
    for it in range(6):
        for s in range(3):
            P.bload('buffer_load_dwordx4', A((it * 3 + s) * 4, 4), vA, sW, sIT[it], aoff + 64 * s).wr.append('o:ord')
    if isM:
        for ot in range(6):
            for s in range(3):
                P.bload('buffer_load_dwordx4', A(72 + (ot * 3 + s) * 4, 4), vA, sW, sIT[ot], 192 + 64 * s).wr.append('o:ord')
    else:
        vB = V(21)
        P.v('v_lshlrev_b32', vB, 4, vL)
        P.s('s_add_u32', sTmp[4], sWB, hx(EXO))
        for k in range(18):
            g4 = k // 4
            if k % 4 == 0:
                P.s('s_add_u32', 'm0', sTmp[4], hx(4096 * g4))
                P.s('s_mov_b32', sTmp[5 + (g4 & 1)], hx(4096 * g4))
            P.dma(vB, sWo, sTmp[5 + (g4 & 1)], 1024 * (k % 4), f"d:wo{k}").wr.append('o:ord')

def fold_compute(P, isM):
    vW = V(22); vT = V(23); tmp = V(24); tmp2 = V(25); tmp3 = V(26)
    P.v('v_bfe_u32', tmp, vN, 2, 1)
    P.v('v_mul_u32_u24', vW, hx(3072), tmp)
    P.v('v_lshrrev_b32', tmp, 3, vN)
    P.v('v_lshlrev_b32', tmp, 6, tmp)
    P.v('v_add_u32', vW, vW, tmp)
    P.v('v_and_b32', tmp, 3, vN)
    P.v('v_lshl_add_u32', vW, tmp, 4, vW)
    P.v('v_lshrrev_b32', tmp, 1, vG)
    P.v('v_lshl_add_u32', vW, tmp, 8, vW)
    P.v('v_and_b32', tmp, 1, vG)
    P.v('v_lshl_add_u32', vW, tmp, 3, vW)
    P.v('v_add_u32', vW, sWB, vW)
    P.v('v_add_u32', vW, hx(EXO), vW)
    def woff(it, ot): return 6 * (ot >> 1) * 1024 + (ot & 1) * 128 + (it >> 1) * 1024 + (it & 1) * 512
    r = V(27); c = V(28)
    P.v('v_lshrrev_b32', r, 2, vN); P.v('v_and_b32', c, 3, vN)
    if not isM:
        P.v('v_lshl_add_u32', tmp, vG, 3, r)
        P.v('v_mul_u32_u24', tmp, hx(192), tmp)
        P.v('v_lshl_add_u32', vT, c, 3, tmp)
        P.v('v_add_u32', vT, sWB, vT)
        P.v('v_add_u32', vT, hx(EXO), vT)
        allwo = [f"d:wo{k}" for k in range(18)]
        for ot in range(6):
            for s in range(3):
                for hh in range(2):
                    rows = [32 * s + 4 * hh, 32 * s + 4 * hh + 24 + 3]
                    tags = [f"d:wo{k}" for k in range(rows[0] * 192 // 1024, min(17, ((rows[1] + 1) * 192 - 1) // 1024) + 1)]
                    P.dsr('ds_read_b64_tr_b16', A(72 + (ot * 3 + s) * 4 + 2 * hh, 2), vT, (32 * s + 4 * hh) * 192 + 32 * ot, mrd=tags + ['m:ex'])
    else:
        P.v('v_lshl_add_u32', tmp, vG, 2, r)
        P.v('v_lshlrev_b32', vT, 4, tmp)
        P.v('v_lshrrev_b32', tmp, 1, c)
        P.v('v_lshl_add_u32', vT, tmp, 8, vT)
        P.v('v_and_b32', tmp, 1, c)
        P.v('v_lshl_add_u32', vT, tmp, 3, vT)
        P.v('v_add_u32', vT, sWB, vT)
        P.v('v_add_u32', vT, hx(EXO), vT)
    for ot in range(6):
        for it in range(6):
            D = xd(it, ot)
            for s in range(3):
                P.mfma(D, A((it * 3 + s) * 4, 4), A(72 + (ot * 3 + s) * 4, 4), D if s else 0)
    for ot in range(6):
        for it in range(6):
            D = xd(it, ot); B = rb(ot, it >> 1)
            P.cvt(B[2 * (it & 1)], D[0], D[1]); P.cvt(B[2 * (it & 1) + 1], D[2], D[3])
    aD = [V(248, 4) if ot % 2 == 0 else V(252, 4) for ot in range(6)]
    aV = [V(20 + 0) for _ in range(6)]
    aS = [V(29), V(30), V(31), V(21), V(20), V(26)]
    for ot in range(6):
        D = aD[ot]
        for sg in range(3):
            P.mfma(D, vOnes, rb(ot, sg), D if sg else 0)
        P.v('v_mov_b32', aS[ot], D[0])
    UV = A(144, 48)
    for i in range(48):
        if i % 4: P.v('v_accvgpr_write_b32', UV[i], 0)
    sNeg96 = sTmp[7]; sI9216 = sTmp[12]
    P.s('s_mov_b32', sNeg96, hx(f2u(-1.0 / 96)))
    one = '1.0'
    if isM:
        for ot in range(6):
            for it in range(6):
                B = rb(ot, it >> 1)
                P.dsw('ds_write_b64', vW, B[2 * (it & 1):2 * (it & 1) + 2], woff(it, ot), mwr=['m:ex'])
        for it in range(6):
            for so in range(3):
                B = V(RB + (it * 3 + so) * 4, 4)
                for hh in range(2):
                    P.dsr('ds_read_b64_tr_b16', B[2 * hh:2 * hh + 2], vT, (6 * so + 3 * hh + (it >> 1)) * 1024 + (it & 1) * 512, mrd=['m:ex'])
        cs = tmp
        P.v('v_add_f32', cs, aS[0], aS[1]); P.v('v_add_f32', tmp2, aS[2], aS[3]); P.v('v_add_f32', tmp2, tmp2, aS[4])
        P.v('v_add_f32', cs, cs, tmp2); P.v('v_add_f32', cs, cs, aS[5])
        for sh in (8, 4, 2, 1):
            P.v('v_add_f32_dpp', cs, cs, cs, mod=f"row_ror:{sh} row_mask:0xf bank_mask:0xf")
        P.s('s_mov_b32', sI9216, hx(f2u(1.0 / 9216)))
        P.v('v_mul_f32', cs, sI9216, cs)
        for ot in range(6):
            P.v('v_fma_f32', aS[ot], aS[ot], sNeg96, cs)
            P.cvt(aS[ot], aS[ot], one)
            P.v('v_accvgpr_write_b32', UV[24 + 4 * ot], aS[ot])
        for it in range(6):
            D = aD[it]
            for so in range(3):
                P.mfma(D, vOnes, V(RB + (it * 3 + so) * 4, 4), D if so else 0)
            u = V(25) if it % 2 else V(27)
            P.v('v_mul_f32', u, sNeg96, D[0])
            P.cvt(u, one, u)
            P.v('v_cndmask_b32_e64', u, 0, u, sG0)
            P.v('v_accvgpr_write_b32', UV[4 * it], u)
        Uf = lambda it: UV[4 * it:4 * it + 4]
    else:
        for ot in range(6):
            P.v('v_mul_f32', aS[ot], sNeg96, aS[ot])
            P.cvt(aS[ot], aS[ot], vZero)
            P.v('v_accvgpr_write_b32', UV[24 + 4 * ot], aS[ot])
        u = V(25)
        P.v('v_mov_b32', u, hx(0x3f80))
        P.v('v_cndmask_b32_e64', u, 0, u, sG0)
        P.v('v_accvgpr_write_b32', UV[0], u)
        Uf = lambda it: UV[0:4]
    for ot in range(6):
        for it in range(6):
            D = xd(it, ot)
            P.mfma(D, Uf(it), UV[24 + 4 * ot:28 + 4 * ot], D)
            B = rb(ot, it >> 1)
            P.cvt(B[2 * (it & 1)], D[0], D[1]); P.cvt(B[2 * (it & 1) + 1], D[2], D[3])
            P.dsw('ds_write_b64', vW, B[2 * (it & 1):2 * (it & 1) + 2], woff(it, ot), mwr=['m:ex'])

def read_weights(P):
    va = [V(20), V(21), V(22), V(23)]
    P.v('v_lshlrev_b32', va[0], 4, vL)
    P.v('v_add_u32', va[0], hx(EXO), va[0])
    for w in range(1, 4): P.v('v_add_u32', va[w], hx(WREG * w), va[0])
    for w, mat in ((0, 'M1'), (1, 'W1'), (2, 'M2'), (3, 'W2')):
        for j in range(6):
            for s in range(3):
                P.dsr('ds_read_b128', frag(mat, j, s), va[w], (3 * j + s) * 1024)

class TP: pass
def t_pools():
    T = TP()
    T.xf = Pool('v', 20, 12, 2)
    T.D = Pool('v', 44, 4, 12)
    T.qB = Pool('v', 92, 12, 1)
    T.pvA = Pool('v', 104, 24, 2)
    T.sgm = Pool('v', 152, 12, 2)
    T.pB = Pool('v', 176, 4, 2)
    T.x1f = Pool('v', 184, 12, 1)
    T.tmp = Pool('v', 196, 8, 2)
    T.g2 = Pool('v', 212, 8, 1)
    T.dm = [V(220), V(221), V(222)]
    return T

def stats(P, G, Msum, tmp):
    d, a = tmp[0], tmp[1]
    P.v('v_cndmask_b32_e64', d, G[0], G[1], sMt[1])
    P.v('v_cndmask_b32_e64', d, d, G[2], sMt[2])
    P.v('v_cndmask_b32_e64', d, d, G[3], sMt[3])
    P.v('v_mul_f32', a, s96, Msum)
    P.v('v_fma_f32', d, Neg(a), Msum, d)
    P.v('v_fma_f32', d, d, s96, vEPS)
    P.v('v_rsq_f32', d, d)
    return d

def t_tile(P, T, tau):
    base = 3072 * tau
    xf = T.xf.get()
    for s in range(3):
        P.dsr('ds_read_b128', xf[4 * s:4 * s + 4], vXA, base + 64 * s, mrd=[f"d:{tau}", f"m:{tau}"])
    X = lambda s: xf[4 * s:4 * s + 4]
    sgm = T.sgm.get(); Sd, G, M = sgm[0:4], sgm[4:8], sgm[8:12]
    for s in range(3): P.mfma(G, X(s), X(s), G if s else 0)
    for s in range(3): P.mfma(M, vOnes, X(s), M if s else 0)
    qB = T.qB.get()
    for j in range(6):
        D = T.D.get()
        for s in range(3): P.mfma(D, frag('M1', j, s), X(s), D if s else 0)
        o = 4 * (j >> 1) + 2 * (j & 1)
        P.cvt(qB[o], D[0], D[1]); P.cvt(qB[o + 1], D[2], D[3])
    for s in range(3): P.mfma(Sd, X(s), qB[4 * s:4 * s + 4], Sd if s else 0)
    pvA = T.pvA.get()
    for j in range(6):
        D = T.D.get()
        for s in range(3): P.mfma(D, X(s), frag('W1', j, s), D if s else 0)
        P.cvt(pvA[4 * j], D[0], D[1]); P.cvt(pvA[4 * j + 1], D[2], D[3])
        P.dsr('ds_read_b64_tr_b16', pvA[4 * j + 2:4 * j + 4], vTR, base + 64 * (j >> 1) + 8 * (j & 1), mrd=[f"d:{tau}", f"m:{tau}"])
    tmp = T.tmp.get()
    r = stats(P, G, M[0], tmp)
    m, rq, nm, l, l2 = tmp[2], tmp[3], tmp[4], tmp[5], tmp[6]
    q = lambda e: f"quad_perm:[{e},{e},{e},{e}] row_mask:0xf bank_mask:0xf"
    for e in range(4): P.v('v_mul_f32_dpp', Sd[e], r, Sd[e], mod=q(e))
    P.v('v_max3_f32', m, Sd[0], Sd[1], Sd[2]); P.v('v_max_f32', m, m, Sd[3])
    P.v('v_mul_f32', rq, sC, r)
    P.v('v_mul_f32_e64', nm, Neg(m), rq)
    for e in range(4): P.v('v_fma_f32', Sd[e], Sd[e], rq, nm)
    for e in range(4): P.v('v_exp_f32', Sd[e], Sd[e])
    P.v('v_add_f32', l, Sd[0], Sd[1]); P.v('v_add_f32', l2, Sd[2], Sd[3]); P.v('v_add_f32', l, l, l2)
    P.v('v_rcp_f32', l, l)
    for e in range(4): P.v('v_mul_f32_dpp', Sd[e], r, Sd[e], mod=q(e))
    for e in range(4): P.v('v_mul_f32', Sd[e], Sd[e], l)
    pB = T.pB.get()
    P.cvt(Sd[0], Sd[0], Sd[1]); P.cvt(Sd[2], Sd[2], Sd[3])
    P.v('v_cndmask_b32_e64', pB[0], 0, Sd[0], sValid)
    P.v('v_cndmask_b32_e64', pB[1], 0, Sd[2], sValid)
    x1f = T.x1f.get()
    for j in range(6):
        D = T.D.get()
        P.mfma(D, pvA[4 * j:4 * j + 4], pB, 0)
        o = 4 * (j >> 1) + 2 * (j & 1)
        P.cvt(x1f[o], D[0], D[1]); P.cvt(x1f[o + 1], D[2], D[3])
    for s in range(3):
        P.dsw('ds_write_b128', vXA, x1f[4 * s:4 * s + 4], base + 64 * s, mwr=[f"m:{tau}"])
    g2 = T.g2.get(); G2, M2 = g2[0:4], g2[4:8]
    for s in range(3): P.mfma(G2, x1f[4 * s:4 * s + 4], x1f[4 * s:4 * s + 4], G2 if s else 0)
    for s in range(3): P.mfma(M2, vOnes, x1f[4 * s:4 * s + 4], M2 if s else 0)
    r2 = stats(P, G2, M2[0], [M2[1], M2[2]])
    P.dsw('ds_write_b32', vST, r2, 4 * pos0(tau), mwr=['m:st'], mrd=['m:0'])


sM = S(82, 2)
def onehot_pair(P, dst, d, lo, val, dh):
    P.v('v_and_b32', val, 1, d)
    P.v('v_lshlrev_b32', val, 4, val)
    P.v('v_lshlrev_b32', val, val, vC3f80)
    P.v('v_ashrrev_i32', dh, 1, d)
    P.v('v_cmp_eq_i32_e64', sM, lo // 2, dh)
    P.v('v_cndmask_b32_e64', dst, 0, val, sM)

vC3f80 = V(223)
def t_consts(P, T):
    d = V(220); a = V(221); b = V(222)
    P.v('v_mov_b32', vC3f80, hx(0x3f80))
    P.v('v_lshlrev_b32', d, 2, vG)
    P.v('v_sub_u32', d, vN, d)
    for k in range(2):
        pB = V(176 + 4 * k, 4)
        for h in range(2):
            onehot_pair(P, pB[2 + h], d, 2 * h, a, b)

class SP: pass
def s_pools():
    Q = SP()
    Q.V2A = V(20, 48)
    Q.D = Pool('v', 68, 4, 8)
    Q.XQ = Pool('v', 100, 12, 2)
    Q.qB = Pool('v', 124, 12, 1)
    Q.sD = Pool('v', 136, 16, 2)
    Q.PB = Pool('v', 168, 8, 2)
    Q.RK = V(184, 16)
    Q.tmp = Pool('v', 200, 8, 2)
    Q.outp = Pool('v', 216, 12, 1)
    Q.XK = Pool('a', 144, 48, 2)
    Q.K0 = V(228); Q.Q3 = V(229); Q.TA = [V(230 + j) for j in range(4)]; Q.OA = [V(234 + j) for j in range(4)]
    Q.vRK = V(238); Q.vRQ = V(239); Q.vWB = V(240); Q.XL0 = V(241)
    Q.cL = V(244, 4); Q.cD0 = V(242); Q.cD1 = V(243)
    Q.Kw = Pool('v', 248, 1, 2); Q.XLw = Pool('v', 250, 1, 1); Q.Qw = Pool('v', 251, 1, 2); Q.Tw = Pool('v', 253, 1, 2)
    Q.t0 = V(4); Q.t1 = V(5); Q.t2 = V(6); Q.t3 = V(7); Q.t4 = V(8)
    return Q

def s_consts(P, Q):
    t0, t1, t2, t3, t4 = Q.t0, Q.t1, Q.t2, Q.t3, Q.t4
    P.v('v_mov_b32', Q.vWB, sWB)
    P.v('v_add_u32', Q.XL0, Q.vWB, vG16)
    P.v('v_lshrrev_b32', t0, 2, vN); P.v('v_and_b32', t1, 3, vN)
    P.v('v_mul_u32_u24', t2, hx(3072), t0)
    P.v('v_mul_u32_u24', t3, hx(192), t1)
    P.v('v_add3_u32', t2, t2, t3, Q.XL0)
    P.v('v_add_u32', Q.K0, hx(3072), t2)
    P.v('v_add_u32', t2, hx(27648), Q.K0)
    P.v('v_cmp_le_u32_e64', sM, 12, vN)
    P.v('v_cndmask_b32_e64', Q.Q3, t2, Q.XL0, sM)
    P.v('v_lshl_add_u32', t2, vG, 2, t0)
    P.v('v_add_u32', t3, -1, t2)
    P.v('v_ashrrev_i32', t4, 2, t3)
    P.v('v_mul_i32_i24', t4, hx(3072), t4)
    P.v('v_and_b32', t3, 3, t3)
    P.v('v_mul_u32_u24', t3, hx(192), t3)
    P.v('v_lshl_add_u32', t1, t1, 4, Q.vWB)
    P.v('v_add3_u32', t3, t3, t4, t1)
    P.v('v_add_u32', t3, hx(3072), t3)
    P.v('v_add_u32', t4, hx(192), t1)
    sS0 = S(40, 2); sS13 = S(42, 2)
    P.v('v_cmp_eq_u32_e64', sS0, 0, t2)
    P.v('v_cmp_le_u32_e64', sS13, 13, t2)
    for j in range(4):
        if j: P.v('v_add_u32', t3, hx(9216), t3)
        if j < 3:
            P.v('v_cndmask_b32_e64', Q.TA[j], t3, t4, sS0)
        else:
            P.v('v_cndmask_b32_e64', Q.TA[j], t3, t1, sS13)
            P.v('v_cndmask_b32_e64', Q.TA[j], Q.TA[j], t4, sS0)
    for j in range(4):
        P.v('v_add_u32', t0, 12 * j, vN)
        P.v('v_mul_u32_u24', t2, 37, t0)
        P.v('v_lshrrev_b32', t2, 8, t2)
        P.v('v_mul_u32_u24', t2, sK41664, t2)
        P.v('v_mul_u32_u24', t0, hx(192), t0)
        P.v('v_add3_u32', t0, t0, t2, vG16)
        P.v('v_cmp_gt_u32_e64', sM, 12 if j < 3 else 13, vN)
        P.v('v_mov_b32', t2, hx(0x7f000000))
        P.v('v_cndmask_b32_e64', Q.OA[j], t2, t0, sM)
    P.v('v_add_u32', Q.vRK, hx(384), Q.XL0)
    P.v('v_lshl_add_u32', t0, vN, 2, Q.vWB)
    P.v('v_add_u32', Q.vRQ, hx(384), t0)
    P.v('v_mov_b32', t0, hx(0xff800000))
    P.v('v_cndmask_b32_e64', Q.cL[0], t0, 0, sG0)
    for e in (1, 2, 3): P.v('v_mov_b32', Q.cL[e], 0)
    P.v('v_lshlrev_b32', t0, 2, vG)
    P.v('v_sub_u32', t0, vN, t0)
    P.v('v_add_u32', t0, 1, t0)
    P.v('v_cmp_eq_u32_e64', sM, 0, t0)
    P.v('v_cndmask_b32_e64', t1, 0, 1.0, sM)
    P.v('v_cndmask_b32_e64', Q.cD0, t1, 0, sG0)
    P.v('v_cmp_eq_u32_e64', sM, 1, t0)
    P.v('v_cndmask_b32_e64', Q.cD1, 0, 1.0, sM)
    P.v('v_mov_b32', vC3f80, hx(0x3f80)) if False else None
    P.v('v_mov_b32', t4, hx(0x3f80))
    for k in range(2):
        dst = V(168 + 8 * k + 7)
        P.v('v_and_b32', t1, 1, t0)
        P.v('v_lshlrev_b32', t1, 4, t1)
        P.v('v_lshlrev_b32', t1, t1, t4)
        P.v('v_ashrrev_i32', t2, 1, t0)
        P.v('v_cmp_eq_i32_e64', sM, 1, t2)
        P.v('v_cndmask_b32_e64', dst, 0, t1, sM)
    for w in range(4):
        P.s('s_add_u32', sSo[w], sWin, hx(TPL * w))

def v2l(P, Q):
    t0, t1 = Q.t2, Q.t3
    XL = Q.XQ.get()
    P.v('v_and_b32', t0, 3, vN)
    P.v('v_xor_b32', t1, vG, t0)
    P.v('v_lshlrev_b32', t1, 4, t1)
    P.v('v_mul_u32_u24', t0, hx(768), t0)
    P.v('v_add3_u32', t0, t0, t1, Q.vWB)
    for s in range(3):
        P.dsr('ds_read_b128', XL[4 * s:4 * s + 4], t0, 64 * s, mrd=['m:0'])
    ob = Q.outp.get()
    for j in range(6):
        D = Q.D.get()
        for s in range(3): P.mfma(D, frag('W2', j, s), XL[4 * s:4 * s + 4], D if s else 0)
        o = 4 * (j >> 1) + 2 * (j & 1)
        P.cvt(ob[o], D[0], D[1]); P.cvt(ob[o + 1], D[2], D[3])
    for s in range(3):
        P.dsw('ds_write_b128', t0, ob[4 * s:4 * s + 4], 192 + 64 * s, mwr=['m:v2l'], mrd=['m:0'])

def s_window(P, Q, w):
    XK = Q.XK.get()
    if w:
        Kw = Q.Kw.get(); P.v('v_xor_b32', Kw, 16 * w, Q.K0)
        XLw = Q.XLw.get(); P.v('v_xor_b32', XLw, 16 * w, Q.XL0)
    else:
        Kw = Q.K0; XLw = Q.XL0
    xk = lambda kt, s: XK[12 * kt + 4 * s:12 * kt + 4 * s + 4]
    for kt in range(3):
        for s in range(3):
            P.dsr('ds_read_b128', xk(kt, s), Kw, 768 * w + 12288 * kt + 64 * s, mrd=[f"m:{4*kt+1+i}" for i in range(4)])
    for s in range(3):
        P.dsr('ds_read_b128', xk(3, s), XLw, 768 * w + 64 * s, mrd=['m:0'])
    RK = Q.RK
    for kt in range(3):
        P.dsr('ds_read_b128', RK[4 * kt:4 * kt + 4], Q.vRK, 768 * w + 64 * kt, mrd=['m:st'])
    P.dsr('ds_read_b32', RK[12], Q.vWB, 768 * w + 384 + 192, mrd=['m:st'])
    V2A = Q.V2A
    for kt in range(3):
        for j in range(6):
            D = Q.D.get()
            for s in range(3): P.mfma(D, xk(kt, s), frag('W2', j, s), D if s else 0)
            o = 8 * j + 4 * (kt >> 1) + 2 * (kt & 1)
            P.cvt(V2A[o], D[0], D[1]); P.cvt(V2A[o + 1], D[2], D[3])
    for jq in range(4):
        XQ = Q.XQ.get()
        slots = sorted(set((((min(12 * jq + n, 48)) >> 2) + 1) % 13 for n in range(16)))
        mr = [f"m:{x}" for x in slots]
        if jq < 3:
            qa, qoff = Kw, 9216 * jq
        else:
            qoff = 0
            if w:
                qa = Q.Qw.get(); P.v('v_xor_b32', qa, 16 * w, Q.Q3)
            else: qa = Q.Q3
        for s in range(3):
            P.dsr('ds_read_b128', XQ[4 * s:4 * s + 4], qa, 768 * w + qoff + 64 * s, mrd=mr)
        tmp = Q.tmp.get()
        rq, m, y, nm, l, l2, l3 = tmp[0], tmp[1], tmp[2], tmp[3], tmp[4], tmp[5], tmp[6]
        P.dsr('ds_read_b32', rq, Q.vRQ, 768 * w + 48 * jq, mrd=['m:st'])
        qB = Q.qB.get()
        for j in range(6):
            D = Q.D.get()
            for s in range(3): P.mfma(D, frag('M2', j, s), XQ[4 * s:4 * s + 4], D if s else 0)
            o = 4 * (j >> 1) + 2 * (j & 1)
            P.cvt(qB[o], D[0], D[1]); P.cvt(qB[o + 1], D[2], D[3])
        SD = Q.sD.get()
        for kt in range(4):
            D = SD[4 * kt:4 * kt + 4]
            for s in range(3):
                P.mfma(D, xk(kt, s), qB[4 * s:4 * s + 4], D if s else (Q.cL if kt == 3 else 0))
        if w:
            ta = Q.Tw.get(); P.v('v_xor_b32', ta, 16 * w, Q.TA[jq])
        else: ta = Q.TA[jq]
        for j in range(6):
            P.dsr('ds_read_b64_tr_b16', V2A[8 * j + 6:8 * j + 8], ta, 768 * w + 64 * (j >> 1) + 8 * (j & 1), mrd=mr + ['m:v2l', 'm:0'])
        vals = [SD[i] for i in range(13)]
        rks = [RK[i] for i in range(13)]
        P.v('v_mul_f32', rq, sC, rq)
        for i in range(13): P.v('v_mul_f32', vals[i], vals[i], rks[i])
        P.v('v_max3_f32', m, vals[0], vals[1], vals[2])
        P.v('v_max3_f32', y, vals[3], vals[4], vals[5])
        P.v('v_max3_f32', nm, vals[6], vals[7], vals[8])
        P.v('v_max3_f32', l, vals[9], vals[10], vals[11])
        P.v('v_max3_f32', m, m, y, nm)
        P.v('v_max3_f32', m, m, l, vals[12])
        for op in ('v_permlane32_swap_b32', 'v_permlane16_swap_b32'):
            P.v('v_mov_b32', y, m)
            P.v(op, m, y)
            P.v('v_max_f32', m, m, y)
        P.v('v_mul_f32_e64', nm, Neg(m), rq)
        for i in range(13): P.v('v_fma_f32', vals[i], vals[i], rq, nm)
        for i in range(13): P.v('v_exp_f32', vals[i], vals[i])
        P.v('v_add_f32', l, vals[0], vals[1]); P.v('v_add_f32', l2, vals[2], vals[3]); P.v('v_add_f32', l3, vals[4], vals[5])
        P.v('v_add_f32', m, vals[6], vals[7]); P.v('v_add_f32', y, vals[8], vals[9]); P.v('v_add_f32', nm, vals[10], vals[11])
        P.v('v_add_f32', l, l, l2); P.v('v_add_f32', l3, l3, m); P.v('v_add_f32', y, y, nm)
        P.v('v_add_f32', l, l, l3); P.v('v_add_f32', y, y, vals[12]); P.v('v_add_f32', l, l, y)
        for op in ('v_permlane32_swap_b32', 'v_permlane16_swap_b32'):
            P.v('v_mov_b32', y, l)
            P.v(op, l, y)
            P.v('v_add_f32', l, l, y)
        P.v('v_rcp_f32', l, l)
        for i in range(13): P.v('v_mul_f32', vals[i], vals[i], rks[i])
        for i in range(12): P.v('v_mul_f32', vals[i], vals[i], l)
        P.v('v_fma_f32', vals[12], vals[12], l, Q.cD0)
        PB = Q.PB.get()
        for i in range(6): P.cvt(PB[i], vals[2 * i], vals[2 * i + 1])
        P.cvt(PB[6], vals[12], Q.cD1)
        ob = Q.outp.get()
        for j in range(6):
            D = Q.D.get()
            P.mfma(D, V2A[8 * j:8 * j + 4], PB[0:4], 0)
            P.mfma(D, V2A[8 * j + 4:8 * j + 8], PB[4:8], D)
            o = 4 * (j >> 1) + 2 * (j & 1)
            P.cvt(ob[o], D[0], D[1]); P.cvt(ob[o + 1], D[2], D[3])
        for s in range(3):
            P.bstore('buffer_store_dwordx4', ob[4 * s:4 * s + 4], Q.OA[jq], sO, sSo[w], 64 * s).wr.append(f"o:w{w}")
    ts(P, 5 + w, rd=[f"o:w{w}"])

def dbg_srd(P):
    P.s('s_mov_b32', sDbg[0], S(96)) if False else None

def dump_regs(P, regs4, slot_bytes):
    va = V(0)
    P.s('s_lshl_b32', sT0, sWG, 2); P.s('s_add_u32', sT0, sT0, sWave)
    P.s('s_mul_i32', sT0, sT0, slot_bytes)
    P.v('v_lshlrev_b32', va, 4, vL)
    for k, r in enumerate(regs4):
        P.s('s_add_u32', sTmp[0], sT0, hx(1024 * k))
        P.bstore('buffer_store_dwordx4', r, va, sDbg, sTmp[0], 0)
        P.raw('s_waitcnt vmcnt(0)', 'raw')

def dump_lds(P, nbytes):
    va = V(0); vb = V(20); d = V(24, 4)
    P.s('s_lshl_b32', sT0, sWG, 2); P.s('s_add_u32', sT0, sT0, sWave)
    P.s('s_mul_i32', sT0, sT0, nbytes)
    P.v('v_lshlrev_b32', va, 4, vL)
    P.v('v_add_u32', vb, sWB, va)
    for k in range(nbytes // 1024):
        P.raw(f"ds_read_b128 {d}, {vb} offset:{1024*k}", 'raw')
        P.raw('s_waitcnt lgkmcnt(0)', 'raw')
        P.s('s_add_u32', sTmp[0], sT0, hx(1024 * k))
        P.raw(f"buffer_store_dwordx4 {d}, {va}, {sDbg}, {sTmp[0]} offen", 'raw')
        P.raw('s_waitcnt vmcnt(0)', 'raw')

def finalize(L, vm0=(), lg0=(), hist=()):
    L = strip_nops(L)
    L, vm, lg = insert_waits(L, vm0, lg0)
    L = insert_nops(L, hist)
    return L, vm, lg

def main():
    out = []
    P = Prog(); setup(P)
    P.s('s_and_b32', sTmp[0], sWave, 1)
    P.s('s_cmp_eq_u32', sTmp[0], 1)
    P.raw("s_cbranch_scc1 L_FOLDW", 'br', rd=['scc'])
    pre, _, _ = finalize(P.L)
    out += pre
    ends = []
    for isM in (True, False):
        P = Prog()
        fold_loads(P, isM)
        dma_consts(P)
        for tau in range(NPRE): dma_slot(P, tau, [V(29), V(30), V(31)])
        lane_consts(P)
        fold_compute(P, isM)
        L = schedule(P.L, name='foldM' if isM else 'foldW')
        P2 = Prog(); wait(P2, lg=0); ts(P2, 1)
        L += P2.L
        if not isM: out.append(Ins("L_FOLDW:", 'label'))
        L, vm, lg = finalize(L, hist=pre[-4:])
        out += L
        ends.append(vm)
        if isM: out.append(Ins("s_branch L_JOIN", 'br'))
    out.append(Ins("L_JOIN:", 'label'))
    vm0 = ends[0] if len(ends[0]) >= len(ends[1]) else ends[1]
    print("pending at join:", ends, file=sys.stderr)
    P = Prog()
    P.raw('s_nop 7', 'raw'); P.raw('s_barrier', 'bar')
    ts(P, 2)
    read_weights(P)
    wait(P, lg=0)
    P.raw('s_barrier', 'bar')
    ts(P, 3)
    L, vm0, _ = finalize(P.L, vm0=vm0)
    out += L
    if DEBUG == 'fold':
        P = Prog()
        regs = [frag(m, j, s) for m in ('M1', 'W1', 'M2', 'W2') for j in range(6) for s in range(3)]
        dump_regs(P, regs, 72 * 1024)
        out += insert_nops(P.L)
    else:
        P = Prog()
        T = t_pools()
        t_consts(P, T)
        for tau in range(13):
            if tau + NPRE <= 12: dma_slot(P, tau + NPRE, T.dm)
            t_tile(P, T, tau)
        ts(P, 4, rd=['m:12'])
        if DEBUG != 'x1':
            Q = s_pools()
            s_consts(P, Q)
            v2l(P, Q)
            for w in range(4): s_window(P, Q, w)
        L = schedule(P.L, name='main', window=WINDOW)
        L, vm, lg = finalize(L, vm0=vm0)
        out += L
        if DEBUG == 'x1':
            P = Prog(); P.raw('s_waitcnt vmcnt(0) lgkmcnt(0)', 'raw')
            dump_lds(P, WREG)
            out += insert_nops(P.L)
    if TIME:
        P = Prog()
        P.raw('s_waitcnt lgkmcnt(0)', 'raw')
        P.s('s_lshl_b32', sT0, sWG, 2); P.s('s_add_u32', sT0, sT0, sWave)
        P.s('s_lshl_b32', sT0, sT0, 6)
        P.v('v_mov_b32', V(0), 0)
        for k in range(9):
            P.v('v_mov_b32', V(20 + k), TSR[k][0])
            P.raw(f"buffer_store_dword v{20+k}, v0, {sDbg}, {sT0} offen offset:{4*k}", 'raw')
        out += insert_nops(P.L)
    out.append(Ins("L_END:", 'label'))
    out.append(Ins("s_endpgm", 'raw'))
    hdr = open('orig.s').read()
    head = hdr[:hdr.index('; @launch')]
    txt = head + f"; @launch grid=(256,1,1) block=(256,1,1) lds={LDS_TOTAL}\n"
    txt += '.amdgcn_target "amdgcn-amd-amdhsa--gfx950"\n.text\n.globl standalone__video_video_swin__vision_kernel\n.p2align 8\n'
    txt += '.type standalone__video_video_swin__vision_kernel,@function\nstandalone__video_video_swin__vision_kernel:\n'
    for ins in out:
        txt += (ins.txt if ins.kind == 'label' else '  ' + ins.txt) + '\n'
    txt += """.section .rodata,"a"
.p2align 6
.amdhsa_kernel standalone__video_video_swin__vision_kernel
  .amdhsa_next_free_vgpr 512
  .amdhsa_next_free_sgpr 102
  .amdhsa_accum_offset 256
  .amdhsa_group_segment_fixed_size 0
  .amdhsa_kernarg_size 64
  .amdhsa_user_sgpr_count 2
  .amdhsa_user_sgpr_kernarg_segment_ptr 1
  .amdhsa_system_sgpr_workgroup_id_x 1
.end_amdhsa_kernel
"""
    o = [a for a in sys.argv[1:] if not a.startswith('--')]
    open(o[0] if o else 'out.s', 'w').write(txt)
    print("instructions:", len(out), file=sys.stderr)

WINDOW = 700
if __name__ == '__main__': main()
```

```python
import sys

class R:
    __slots__ = ('f', 'i', 'n')
    def __init__(s, f, i, n=1):
        s.f = f; s.i = i; s.n = n
    def __str__(s):
        return f"{s.f}{s.i}" if s.n == 1 else f"{s.f}[{s.i}:{s.i+s.n-1}]"
    __repr__ = __str__
    def regs(s):
        return [f"{s.f}{s.i+k}" for k in range(s.n)]
    def __getitem__(s, k):
        if isinstance(k, slice):
            a = k.start or 0; b = k.stop if k.stop is not None else s.n
            assert 0 <= a < b <= s.n, (s, k)
            return R(s.f, s.i + a, b - a)
        assert 0 <= k < s.n, (s, k)
        return R(s.f, s.i + k, 1)

def V(i, n=1): return R('v', i, n)
def A(i, n=1): return R('a', i, n)
def S(i, n=1): return R('s', i, n)

def regs_of(x):
    if isinstance(x, R): return x.regs()
    if isinstance(x, str):
        t = x.lstrip('-|').rstrip('|')
        if t in ('vcc', 'exec', 'm0', 'scc'): return [t]
    return []

class Neg:
    def __init__(s, r): s.r = r
    def __str__(s): return f"-{s.r}"
    def regs(s): return s.r.regs()
class Abs:
    def __init__(s, r): s.r = r
    def __str__(s): return f"|{s.r}|"
    def regs(s): return s.r.regs()

def rg(x):
    if isinstance(x, (R, Neg, Abs)): return x.regs()
    if isinstance(x, str) and x in ('vcc', 'exec', 'm0', 'scc'): return [x]
    return []

COST = dict(mfma=8, valu=4, trans=8, perm=8, ldsr=4, ldsw=4, vmld=4, vmst=4, dma=4, salu=4, smem=4,
            wait=1, nop=4, br=4, label=0, bar=4, raw=4)
VALUK = ('valu', 'trans', 'perm')

class Ins:
    __slots__ = ('txt', 'kind', 'rd', 'wr', 'dpp', 'cregs', 'dregs', 'wide', 'id', 'nops', 'prio', 'cost', 'rfl', 'tag', 'lat', 'rel')
    def __init__(s, txt, kind, rd=(), wr=(), dpp=False, cregs=(), dregs=(), wide=False, prio=0, rfl=False, tag=None):
        s.txt = txt; s.kind = kind; s.rd = list(rd); s.wr = list(wr); s.dpp = dpp
        s.cregs = list(cregs); s.dregs = list(dregs); s.wide = wide; s.prio = prio; s.rfl = rfl
        s.cost = COST[kind]; s.tag = tag; s.lat = None; s.rel = 0
    def __repr__(s): return s.txt

class Prog:
    def __init__(s):
        s.L = []
    def add(s, ins):
        s.L.append(ins); return ins
    def mfma(s, D, Aop, Bop, C):
        crd = rg(C)
        return s.add(Ins(f"v_mfma_f32_16x16x32_bf16 {D}, {Aop}, {Bop}, {C}", 'mfma',
                         rd=rg(Aop) + rg(Bop) + crd, wr=rg(D), cregs=crd, dregs=rg(D)))
    def v(s, op, dst, *src, mod='', kind=None, rmw=False, extra_rd=(), extra_wr=()):
        dpp = ('dpp' in op)
        if kind is None:
            base = op.replace('_e64', '').replace('_e32', '')
            if base in ('v_exp_f32', 'v_rcp_f32', 'v_rsq_f32', 'v_log_f32', 'v_sqrt_f32'): kind = 'trans'
            elif base.startswith('v_permlane'): kind = 'perm'
            else: kind = 'valu'
        rd = []
        for x in src: rd += rg(x)
        if rmw or op.startswith('v_fmac') or op.startswith('v_permlane'): rd += rg(dst)
        wr = rg(dst)
        if op.startswith('v_permlane'): wr += rg(src[0])
        rd += list(extra_rd); wr += list(extra_wr)
        txt = f"{op} {dst}" + ''.join(f", {x}" for x in src) + (' ' + mod if mod else '')
        return s.add(Ins(txt, kind, rd=rd, wr=wr, dpp=dpp, rfl=op.startswith('v_readfirstlane') or op.startswith('v_readlane')))
    def cvt(s, d, a, b): return s.v('v_cvt_pk_bf16_f32', d, a, b)
    def s(s_, op, dst, *src, scc_w=True, scc_r=False):
        rd = []
        for x in src: rd += rg(x)
        wr = rg(dst)
        if op in ('s_mov_b32', 's_mov_b64', 's_mul_i32', 's_cselect_b32', 's_cselect_b64', 's_getpc_b64'): scc_w = False
        if op.startswith('s_cselect') or op.startswith('s_addc') or op.startswith('s_subb'): scc_r = True
        if op.startswith('s_cmp'):
            rd = rg(dst) + rd; wr = []
        if scc_w: wr = wr + ['scc']
        if scc_r: rd = rd + ['scc']
        txt = f"{op} {dst}" + ''.join(f", {x}" for x in src)
        return s_.add(Ins(txt, 'salu', rd=rd, wr=wr))
    def dsr(s, op, dst, addr, off=0, mrd=()):
        assert 0 <= off < 65536, off
        return s.add(Ins(f"{op} {dst}, {addr}" + (f" offset:{off}" if off else ''), 'ldsr',
                         rd=rg(addr) + list(mrd), wr=rg(dst)))
    def dsw(s, op, addr, data, off=0, mwr=(), mrd=()):
        assert 0 <= off < 65536, off
        return s.add(Ins(f"{op} {addr}, {data}" + (f" offset:{off}" if off else ''), 'ldsw',
                         rd=rg(addr) + rg(data) + list(mrd), wr=list(mwr)))
    def bload(s, op, dst, voff, srd, soff, off=0):
        assert 0 <= off < 4096
        return s.add(Ins(f"{op} {dst}, {voff}, {srd}, {soff} offen" + (f" offset:{off}" if off else ''), 'vmld',
                         rd=rg(voff) + rg(srd) + rg(soff), wr=rg(dst)))
    def dma(s, voff, srd, soff, off, tag, mod=''):
        assert 0 <= off < 4096
        return s.add(Ins(f"buffer_load_dwordx4 {voff}, {srd}, {soff} offen" + (f" offset:{off}" if off else '') + mod + " lds", 'dma',
                         rd=rg(voff) + rg(srd) + rg(soff) + ['m0'], wr=[tag]))
    def bstore(s, op, data, voff, srd, soff, off=0, mod=''):
        assert 0 <= off < 4096
        return s.add(Ins(f"{op} {data}, {voff}, {srd}, {soff} offen" + (f" offset:{off}" if off else '') + mod, 'vmst',
                         rd=rg(data) + rg(voff) + rg(srd) + rg(soff), wr=[], wide=(data.n >= 3), dregs=rg(data)))
    def raw(s, txt, kind='raw', rd=(), wr=()):
        return s.add(Ins(txt, kind, rd=rd, wr=wr))
    def label(s, name): return s.add(Ins(f"{name}:", 'label'))

def raw_edge(p, c, reg):
    pk, ck = p.kind, c.kind
    if reg.startswith('m:') or reg.startswith('o:'): return (4, 0)
    if pk == 'mfma':
        if ck == 'mfma' and reg in c.cregs and reg not in [r for r in c.rd if r not in c.cregs] :
            if c.cregs == p.dregs: return (8, 0)
            return (24, 6)
        return (28, 8)
    if pk in VALUK:
        ws = 0; lat = 8 if pk in ('trans', 'perm') else 4
        if reg[0] == 's' or reg == 'vcc':
            if ck in VALUK: ws = 2
            elif ck in ('vmld', 'vmst', 'dma'): ws = 5
            else: ws = 2
        else:
            if ck == 'mfma': ws = 2; lat += 4
            elif ck in VALUK:
                if c.dpp or ck == 'perm': ws = 2
                elif c.rfl: ws = 1
                elif pk == 'trans': ws = 1
        return (lat, ws)
    if pk == 'ldsr': return (LDS_LAT, 0)
    if pk in ('vmld', 'dma'): return (p.lat if p.lat is not None else VM_LAT, 0)
    if pk == 'smem': return (200, 0)
    if pk == 'salu':
        if reg == 'm0' and ck == 'dma': return (4, 1)
        return (4, 0)
    return (4, 0)
LDS_LAT = 128
VM_LAT = 1500

def war_edge(p, c, reg):
    if p.kind == 'mfma' and reg in p.cregs and c.kind in VALUK: return (8, 3)
    if p.kind == 'vmst' and p.wide and reg in p.dregs:
        return (4, 2 if c.kind in VALUK else 1)
    return (p.cost if p.kind != 'mfma' else 8, 0)

def waw_edge(p, c, reg):
    pk = p.kind
    if reg[1] == ':': return (4, 0)
    if pk == 'mfma':
        if c.kind == 'mfma': return (8, 0)
        return (28, 8)
    if pk == 'ldsr': return (LDS_LAT, 0)
    if pk in ('vmld', 'dma'): return (VM_LAT, 0)
    return (4, 0)

def build_dag(L):
    n = len(L)
    preds = [dict() for _ in range(n)]
    lastw = {}; readers = {}
    def add(i, j, e):
        if i == j: return
        o = preds[j].get(i)
        if o is None: preds[j][i] = e
        else: preds[j][i] = (max(o[0], e[0]), max(o[1], e[1]))
    last_lds_dma = None
    for j, c in enumerate(L):
        for r in c.rd:
            if r in lastw: add(lastw[r], j, raw_edge(L[lastw[r]], c, r))
        for r in c.wr:
            if r in lastw: add(lastw[r], j, waw_edge(L[lastw[r]], c, r))
            for i in readers.get(r, ()): add(i, j, war_edge(L[i], c, r))
        for r in c.rd: readers.setdefault(r, []).append(j)
        for r in c.wr:
            lastw[r] = j; readers[r] = []
    return preds

def schedule(L, verbose=True, name='', window=None):
    n = len(L)
    preds = build_dag(L)
    succs = [[] for _ in range(n)]
    for j in range(n):
        for i, e in preds[j].items(): succs[i].append((j, e))
    height = [0] * n
    for i in range(n - 1, -1, -1):
        h = 0
        for j, e in succs[i]:
            h = max(h, e[0] + height[j])
        height[i] = h + L[i].cost + L[i].prio
    npred = [len(preds[j]) for j in range(n)]
    rtime = [L[i].rel for i in range(n)]
    ready = set(j for j in range(n) if npred[j] == 0)
    out = []; pos = [None] * n
    t = 0; mf = 0; idx = 0; stall = 0; nopc = 0
    lo = 0; done = [False] * n
    while ready:
        best = None; bk = None
        while lo < n and done[lo]: lo += 1
        for c in ready:
            if window is not None and c > lo + window: continue
            ins = L[c]
            est = max(rtime[c], t)
            if ins.kind == 'mfma': est = max(est, mf)
            need = 0
            for i, e in preds[c].items():
                if e[1]:
                    d = e[1] - (idx - pos[i] - 1)
                    if d > need: need = d
            if need > 0: est = max(est, t + 4 * need)
            now = est <= t
            if now:
                key = (0, 0 if ins.kind == 'mfma' else 1, -height[c], c)
            else:
                key = (1, est, -height[c], c)
            if bk is None or key < bk:
                bk = key; best = (c, est, need)
        c, est, need = best
        ins = L[c]
        if need > 0:
            out.append(Ins(f"s_nop {need-1}", 'nop')); idx += need; nopc += 1
        if est > t: stall += est - t
        t = est
        if ins.kind == 'mfma': mf = t + 16
        pos[c] = idx; idx += 1
        out.append(ins)
        ready.discard(c); done[c] = True
        for j, e in succs[c]:
            rtime[j] = max(rtime[j], t + e[0])
            npred[j] -= 1
            if npred[j] == 0: ready.add(j)
        t += ins.cost
    assert len([x for x in out if x.kind != 'nop']) == n
    if verbose:
        nm = sum(1 for x in L if x.kind == 'mfma')
        tot = sum(x.cost for x in L)
        print(f"[sched {name}] n={n} mfma={nm} (pipe {16*nm}) issue={tot} est={max(t,mf)} stall={stall} nops={nopc}", file=sys.stderr)
    return out

def strip_nops(L):
    return [x for x in L if x.kind != 'nop']

def insert_waits(L, vm0=(), lg0=()):
    vm = [list(x) for x in vm0]; lg = [list(x) for x in lg0]
    out = []
    for ins in L:
        if ins.kind in ('label',):
            out.append(ins); continue
        touched = set(ins.rd) | set(r for r in ins.wr if r[1] != ':')
        nv = None; nl = None
        for k, regs in enumerate(vm):
            if touched.intersection(regs):
                need = len(vm) - 1 - k
                nv = need if nv is None else min(nv, need)
        for k, regs in enumerate(lg):
            if touched.intersection(regs):
                need = len(lg) - 1 - k
                nl = need if nl is None else min(nl, need)
        if ins.kind == 'wait':
            a, b = ins.tag
            if a is not None: vm = vm[len(vm) - a:] if a < len(vm) else vm; vm = vm if a else []
            if b is not None: lg = lg[len(lg) - b:] if b < len(lg) else lg; lg = lg if b else []
            out.append(ins); continue
        if nv is not None or nl is not None:
            parts = []
            if nv is not None:
                nv = min(nv, 63); parts.append(f"vmcnt({nv})")
                vm = vm[len(vm) - nv:] if nv else []
            if nl is not None:
                nl = min(nl, 15); parts.append(f"lgkmcnt({nl})")
                lg = lg[len(lg) - nl:] if nl else []
            out.append(Ins("s_waitcnt " + ' '.join(parts), 'wait', tag=(nv, nl)))
        out.append(ins)
        if ins.kind in ('vmld', 'dma'): vm.append([r for r in ins.wr if not r.startswith('o:')])
        elif ins.kind == 'vmst': vm.append([])
        elif ins.kind == 'ldsr': lg.append([r for r in ins.wr if not r.startswith('m:')])
        elif ins.kind == 'ldsw': lg.append([])
        elif ins.kind == 'smem':
            raise Exception("smem only in fixed prologue")
        assert len(vm) <= 63, "vmcnt overflow"
    return out, vm, lg

def wait(P, vm=None, lg=None):
    parts = []
    if vm is not None: parts.append(f"vmcnt({vm})")
    if lg is not None: parts.append(f"lgkmcnt({lg})")
    return P.add(Ins("s_waitcnt " + ' '.join(parts), 'wait', tag=(vm, lg)))

def insert_nops(L, hist0=()):
    out = list(hist0)
    base = len(out)
    W = 12
    for c in L:
        if c.kind == 'label':
            out.append(c); continue
        need = 0
        dist = 0
        k = len(out) - 1
        rd = set(c.rd); wr = set(c.wr)
        while k >= 0 and dist < W:
            p = out[k]; k -= 1
            if p.kind == 'label': continue
            if p.kind == 'nop':
                dist += int(p.txt.split()[1]) + 1; continue
            ws = 0
            for r in p.wr:
                if r[1] == ':': continue
                if r in rd: ws = max(ws, raw_edge(p, c, r)[1])
                if r in wr: ws = max(ws, waw_edge(p, c, r)[1])
                if p.kind == 'mfma' and r in wr and c.kind in ('ldsr', 'vmld'): ws = max(ws, 8)
            for r in p.rd:
                if r in wr: ws = max(ws, war_edge(p, c, r)[1])
            if ws > dist: need = max(need, ws - dist)
            dist += 1
        while need > 0:
            m = min(need, 16)
            out.append(Ins(f"s_nop {m-1}", 'nop')); need -= m
        out.append(c)
    return out[base:]

class Pool:
    def __init__(s, f, start, size, count):
        s.f = f; s.start = start; s.size = size; s.count = count; s.k = 0
        s.end = start + size * count
    def get(s):
        r = R(s.f, s.start + s.size * s.k, s.size); s.k = (s.k + 1) % s.count
        return r
```

```python
import sys, struct, math
from core import *

DEBUG = None
for a in sys.argv[1:]:
    if a.startswith('--debug='): DEBUG = a.split('=')[1]

def f2u(x): return struct.unpack('<I', struct.pack('<f', x))[0]
def hx(x): return f"0x{x & 0xffffffff:x}"

TPL = 9633792
ROWB = 43008
WREG = 39936
EXO = 21504
SPARE = 4 * WREG
LDS_TOTAL = 163840
NPRE = 7

def pos0(tau): return 48 if tau == 0 else 4 * (tau - 1)
def goff(pos): return pos * 192 + (pos // 7) * 41664

sKA = S(0, 2); sWG = S(2)
sX = S(4, 4); sO = S(8, 4); sW = S(12, 4); sWo = S(16, 4)
sWave = S(20); sWin = S(21); sWB = S(22); sT0 = S(23)
sIT = [S(24 + i) for i in range(6)]
sMt = [None, S(30, 2), S(32, 2), S(34, 2)]
sValid = S(36, 2)
sG0 = S(38, 2)
sCross = {}
_i = 40
for k in range(3):
    for th in (1, 2, 3):
        sCross[(k, th)] = S(_i, 2); _i += 2
s96 = S(58); sC = S(59); sK41664 = S(60)
sSo = [S(61 + i) for i in range(4)]
sTmp = [S(65 + i) for i in range(16)]
sPtr = S(84, 12)
sDbg = S(96, 4)
sDbg2 = S(76, 4)
CODEPF = '--nocodepf' not in sys.argv
WPF = '--nowpf' not in sys.argv

VM1 = 224
def frag(mat, j, s):
    k = 3 * j + s
    if mat == 'M2': return A(4 * k, 4)
    if mat == 'W2': return A(72 + 4 * k, 4)
    if mat == 'W1': return A(144 + 4 * k, 4)
    if mat == 'M1': return A(216 + 4 * k, 4) if k < 10 else V(VM1 + 4 * (k - 10), 4)

vL = V(1); vN = V(2); vG = V(3)
vXA = V(4); vTR = V(5); vST = V(6)
vCst = [V(7), V(8), V(9)]; vCstX = [V(10), V(11), V(12)]
vEPS = V(13)
vOnes = V(16, 4)
vG16 = V(14)
vZero = V(15)

def setup(P):
    P.raw(f"s_cmp_ge_u32 s2, 256", 'salu', rd=['s2'], wr=['scc'])
    P.raw("s_cbranch_scc1 L_END", 'br', rd=['scc'])
    ts(P, 0)
    if CODEPF:
        P.raw("s_getpc_b64 s[4:5]", 'salu', wr=['s4', 's5'])
        P.label("L_PC")
        P.s('s_lshr_b32', S(6), sWG, 3); P.s('s_and_b32', S(6), S(6), 3); P.s('s_lshl_b32', S(6), S(6), 14)
        P.v('v_lshlrev_b32', V(2), 6, V(0))
        P.v('v_add_u32', V(2), S(6), V(2))
        P.raw("s_mov_b32 s7, L_END-L_PC", 'salu', wr=['s7'])
        P.v('v_min_u32', V(2), S(7), V(2))
        P.v('v_mov_b32', V(3), S(5))
        P.raw("v_add_co_u32 v2, vcc, s4, v2", 'valu', rd=['s4', 'v2'], wr=['v2', 'vcc'])
        P.raw("v_addc_co_u32 v3, vcc, 0, v3, vcc", 'valu', rd=['v3', 'vcc'], wr=['v3', 'vcc'])
        P.raw("global_load_dword v255, v[2:3], off", 'raw', rd=['v2', 'v3'])
    P.raw(f"s_load_dwordx8 s[84:91], s[0:1], 0", 'raw', wr=S(84, 8).regs())
    P.raw(f"s_load_dwordx4 s[92:95], s[0:1], 32", 'raw', wr=S(92, 4).regs())
    if DEBUG or TIME:
        P.raw(f"s_load_dwordx2 s[96:97], s[0:1], 56", 'raw', wr=S(96, 2).regs())
    P.v('v_and_b32', vL, 63, V(0))
    P.v('v_lshrrev_b32', V(20), 6, V(0))
    P.v('v_and_b32', vN, 15, V(0))
    P.v('v_readfirstlane_b32', sWave, V(20))
    P.v('v_lshrrev_b32', vG, 4, vL)
    P.v('v_lshlrev_b32', vG16, 4, vG)
    P.v('v_mov_b32', vZero, 0)
    P.s('s_lshl_b32', sT0, sWG, 2)
    P.s('s_add_u32', sT0, sT0, sWave)
    P.s('s_lshr_b32', sTmp[0], sT0, 5)
    P.s('s_and_b32', sTmp[1], sT0, 31)
    P.s('s_mul_i32', sTmp[0], sTmp[0], 301056)
    P.s('s_mul_i32', sTmp[1], sTmp[1], 1344)
    P.s('s_add_u32', sWin, sTmp[0], sTmp[1])
    P.s('s_mul_i32', sWB, sWave, WREG)
    for i in range(6): P.s('s_mov_b32', sIT[i], 9216 * i)
    P.s('s_mov_b32', s96, hx(f2u(1.0 / 96)))
    P.s('s_mov_b32', sC, hx(f2u(96 ** -0.5 * math.log2(math.e))))
    P.s('s_mov_b32', sK41664, 41664)
    dma_consts(P)
    lane_consts(P)
    P.s('s_lshr_b32', sTmp[4], sWG, 3); P.s('s_and_b32', sTmp[4], sTmp[4], 15); P.s('s_lshl_b32', sTmp[4], sTmp[4], 12)
    P.v('v_lshlrev_b32', V(20), 6, vL)
    P.v('v_mul_u32_u24', V(21), hx(576), vN)
    P.v('v_add_u32', V(21), V(21), vG16)
    P.v('v_lshlrev_b32', V(22), 4, vL)
    P.raw("s_waitcnt lgkmcnt(0)", 'raw')
    x, wt, wot, wsp, wos, out = [sPtr[2 * i:2 * i + 2] for i in range(6)]
    P.s('s_mov_b32', sX[0], x[0]); P.s('s_mov_b32', sX[1], x[1]); P.s('s_mov_b32', sX[2], 38535168); P.s('s_mov_b32', sX[3], '0x20000')
    P.s('s_mov_b32', sO[0], out[0]); P.s('s_mov_b32', sO[1], out[1]); P.s('s_mov_b32', sO[2], 38535168); P.s('s_mov_b32', sO[3], '0x20000')
    P.s('s_cmp_lt_u32', sWave, 2)
    P.s('s_cselect_b32', sW[0], wt[0], wsp[0]); P.s('s_cselect_b32', sW[1], wt[1], wsp[1])
    P.s('s_mov_b32', sW[2], 55296); P.s('s_mov_b32', sW[3], '0x20000')
    P.s('s_cselect_b32', sWo[0], wot[0], wos[0]); P.s('s_cselect_b32', sWo[1], wot[1], wos[1])
    P.s('s_mov_b32', sWo[2], 18432); P.s('s_mov_b32', sWo[3], '0x20000')
    if DEBUG or TIME:
        P.s('s_mov_b32', sDbg[2], hx(268435456)); P.s('s_mov_b32', sDbg[3], '0x20000')
    if WPF:
        P.s('s_and_b32', sTmp[5], sWave, 1)
        P.s('s_cmp_eq_u32', sTmp[5], 0)
        P.s('s_cselect_b32', sDbg2[0], sW[0], sWo[0]); P.s('s_cselect_b32', sDbg2[1], sW[1], sWo[1])
        P.s('s_cselect_b32', sDbg2[2], sW[2], sWo[2]); P.s('s_mov_b32', sDbg2[3], '0x20000')
        P.bload('buffer_load_dword', V(254), V(20), sDbg2, sTmp[4])
    ts(P, 1, grp='fold')

def dma_consts(P):
    u, rho, q, t, p, c, tmp = [V(20 + i) for i in range(7)]
    P.s('s_mov_b32', sTmp[2], 43691)
    P.s('s_mov_b32', sTmp[3], TPL)
    for k in range(3):
        P.v('v_add_u32', u, 64 * k if 64 * k <= 64 else hx(64 * k), vL)
        P.v('v_mul_u32_u24', rho, sTmp[2], u)
        P.v('v_lshrrev_b32', rho, 19, rho)
        P.v('v_mul_u32_u24', q, 12, rho)
        P.v('v_sub_u32', q, u, q)
        P.v('v_lshrrev_b32', t, 2, rho)
        P.v('v_and_b32', p, 3, rho)
        P.v('v_xor_b32', c, q, t)
        P.v('v_lshlrev_b32', c, 4, c)
        P.v('v_mul_lo_u32', tmp, t, sTmp[3])
        P.v('v_add_u32', c, c, tmp)
        P.v('v_mul_u32_u24', tmp, hx(192), p)
        P.v('v_add_u32', c, c, tmp)
        if k: P.v('v_subrev_u32', vCst[k], hx(1024 * k), c)
        else: P.v('v_mov_b32', vCst[k], c)
        P.v('v_add_u32', vCstX[k], hx(41664), vCst[k])
        for th in (1, 2, 3):
            P.v('v_cmp_le_u32_e64', sCross[(k, th)], th, p)

class M0: cur = None
def dma_piece(P, tau, k, tmp, cost=None, lat=None, rel=0, after=(), prio=0):
    p0 = pos0(tau)
    th = None
    if tau != 0:
        for p in range(1, 4):
            if (p0 + p) // 7 != p0 // 7: th = p; break
    so = sTmp[8 + (tau % 3)]
    if k == 0: P.s('s_add_u32', so, sWin, hx(goff(p0))).rel = rel
    if M0.cur != ('x', tau):
        i = P.s('s_add_u32', 'm0', sWB, hx(3072 * tau)); i.rel = rel; i.rd += list(after); M0.cur = ('x', tau)
    if th is None: vo = vCst[k]
    else:
        vo = tmp[k]
        P.v('v_cndmask_b32_e64', vo, vCst[k], vCstX[k], sCross[(k, th)]).rel = rel
    i = P.dma(vo, sX, so, 1024 * k, f"d:{tau}.{k}")
    i.rd.append('o:ord'); i.wr.append('o:ord'); i.rd += list(after)
    if cost: i.cost = cost
    i.lat = lat; i.rel = rel; i.prio = prio
    return i
def xtags(tau): return [f"d:{tau}.{k}" for k in range(3)]

def dma_slot(P, tau, tmp):
    p0 = pos0(tau)
    th = None
    if tau != 0:
        for p in range(1, 4):
            if (p0 + p) // 7 != p0 // 7: th = p; break
    so = sTmp[8 + (tau % 4)]
    P.s('s_add_u32', so, sWin, hx(goff(p0)))
    P.s('s_add_u32', 'm0', sWB, hx(3072 * tau))
    for k in range(3):
        if th is None: vo = vCst[k]
        else:
            vo = tmp[k]
            P.v('v_cndmask_b32_e64', vo, vCst[k], vCstX[k], sCross[(k, th)])
        P.dma(vo, sX, so, 1024 * k, f"d:{tau}").rd.append('o:ord')

sTS = [S(66 + 2 * i, 2) for i in range(0)]
TSREG = 100
def ts(P, k, rd=(), grp='main'):
    if not TIME: return
    if k != 0 and grp != TIMEG: return
    r = TSR[k]
    i = P.add(Ins(f"s_memtime {r}", 'salu', rd=list(rd), wr=r.regs())); i.prio = 9000
TIME = any(a.startswith('--time') for a in sys.argv)
TIMEG = 'fold' if '--time=fold' in sys.argv else ('T' if '--time=T' in sys.argv else ('ev' if '--time=ev' in sys.argv else 'main'))
TSR = {0: S(100, 2), 1: S(84, 2), 2: S(86, 2), 3: S(88, 2), 4: S(90, 2), 5: S(92, 2), 6: S(94, 2), 7: S(78, 2), 8: S(80, 2)}
def lane_consts(P):
    t, p, r, c, tmp, tmp2 = [V(20 + i) for i in range(6)]
    P.v('v_and_b32', t, 3, vN)
    P.v('v_lshrrev_b32', p, 2, vN)
    P.v('v_lshl_add_u32', tmp, t, 2, p)
    P.v('v_mul_u32_u24', tmp, hx(192), tmp)
    P.v('v_xor_b32', tmp2, vG, t)
    P.v('v_lshl_add_u32', tmp, tmp2, 4, tmp)
    P.v('v_add_u32', vXA, sWB, tmp)
    P.v('v_lshrrev_b32', r, 2, vN)
    P.v('v_and_b32', c, 3, vN)
    P.v('v_lshl_add_u32', tmp, r, 2, vG)
    P.v('v_mul_u32_u24', tmp, hx(192), tmp)
    P.v('v_xor_b32', tmp2, c, r)
    P.v('v_lshl_add_u32', tmp, tmp2, 4, tmp)
    P.v('v_add_u32', vTR, sWB, tmp)
    for e in (1, 2, 3): P.v('v_cmp_eq_u32_e64', sMt[e], e, t)
    P.v('v_cmp_eq_u32_e64', sValid, vG, p)
    P.v('v_cmp_eq_u32_e64', sG0, 0, vG)
    P.v('v_mul_u32_u24', tmp, hx(768), t)
    P.v('v_lshl_add_u32', tmp, p, 2, tmp)
    P.v('v_add_u32', tmp, sWB, tmp)
    P.v('v_add_u32', tmp, hx(384), tmp)
    P.v('v_lshlrev_b32', tmp2, 2, vL)
    P.v('v_add_u32', tmp2, hx(SPARE), tmp2)
    P.v('v_cndmask_b32_e64', vST, tmp2, tmp, sValid)
    P.v('v_mov_b32', vEPS, hx(f2u(1e-5)))
    for i in range(4): P.v('v_mov_b32', vOnes[i], hx(0x3f803f80))

XD = 32
RB = 176
def xd(it, ot): return V(XD + (it * 6 + ot) * 4, 4)
def rb(ot, sg): return V(RB + (ot * 3 + sg) * 4, 4)

WCOST = 130; WLAT = 1400
XEVERY = 5
for _a in sys.argv:
    if _a.startswith('--xevery='): XEVERY = int(_a.split('=')[1])
NXF = 21
XDIST = 10; XMAXT = 4; BAR0 = 4300; XEVERY = 1000; XREL0 = 6300; XSTEP = 360; XBURST = 10; XFOLD = 5; XEXCH = 3; XT = 2.5
for _a in sys.argv:
    if _a.startswith('--xrel='): XREL0, XSTEP, XBURST, XFOLD, XEXCH = map(int, _a.split('=')[1].split(','))
    if _a.startswith('--xevery='): XEVERY = int(_a.split('=')[1])
    if _a.startswith('--xt='): XT = float(_a.split('=')[1])
    if _a.startswith('--xdist='): XDIST, XMAXT = map(int, _a.split('=')[1].split(','))
    if _a.startswith('--bar0='): BAR0 = int(_a.split('=')[1])
def fold_loads(P, isM):
    vA = V(21); vB = V(22)
    aoff = 0 if isM else 384
    seq = []
    def wl(dst, so, off):
        def f():
            i = P.bload('buffer_load_dwordx4', dst, vA, sW, so, off)
            i.wr.append('o:ord'); i.rd.append('o:ord'); i.cost = WCOST; i.lat = WLAT; i.prio = 5000
        seq.append(f)
    if isM:
        for s in range(3): wl(A(72 + s * 4, 4), sIT[0], 192 + 64 * s)
        for it in range(6):
            for s in range(3): wl(A((it * 3 + s) * 4, 4), sIT[it], aoff + 64 * s)
        for ot in range(1, 6):
            for s in range(3): wl(A(72 + (ot * 3 + s) * 4, 4), sIT[ot], 192 + 64 * s)
    else:
        def wo(k):
            def f():
                g4 = k // 4
                if k % 4 == 0:
                    P.s('s_mov_b32', sTmp[5 + (g4 & 1)], hx(4096 * g4))
                if M0.cur != ('wo', g4):
                    P.s('s_add_u32', 'm0', sTmp[4], hx(4096 * g4)); M0.cur = ('wo', g4)
                i = P.dma(vB, sWo, sTmp[5 + (g4 & 1)], 1024 * (k % 4), f"d:wo{k}")
                i.wr.append('o:ord'); i.rd.append('o:ord'); i.cost = WCOST - 40; i.lat = WLAT; i.prio = 5000
            seq.append(f)
        P.s('s_add_u32', sTmp[4], sWB, hx(EXO))
        for k in range(18): wo(k)
        for it in range(6):
            for s in range(3): wl(A((it * 3 + s) * 4, 4), sIT[it], aoff + 64 * s)
    M0.cur = None
    XQ.n = 0
    tmps = [V(29), V(30), V(31)]
    for i, f in enumerate(seq):
        f()
        if (i + 1) % XEVERY == 0:
            XQ.next(P, tmps, cost=WCOST - 40, lat=WLAT, prio=5000)
    ts(P, 2, rd=['o:ord'], grp='fold')
    if BAR0:
        i = P.raw('s_barrier', 'bar', rd=['o:ord'], wr=['o:ord']); i.prio = 5000
        if not isM: i.rel = BAR0
    for m in range(XBURST - XQ.n):
        XQ.next(P, tmps, cost=64, lat=WLAT, prio=5000)
    for m in range(XFOLD):
        XQ.next(P, tmps, cost=48, lat=WLAT, rel=XREL0 + XSTEP * m, prio=5000)

class XQ:
    n = 0
    @staticmethod
    def next(P, tmps, **kw):
        k = XQ.n; XQ.n += 1
        return dma_piece(P, k // 3, k % 3, tmps, **kw)

def fold_compute(P, isM):
    vW = V(22); vT = V(23); tmp = V(24); tmp2 = V(25); tmp3 = V(26)
    P.v('v_bfe_u32', tmp, vN, 2, 1)
    P.v('v_mul_u32_u24', vW, hx(3072), tmp)
    P.v('v_lshrrev_b32', tmp, 3, vN)
    P.v('v_lshlrev_b32', tmp, 6, tmp)
    P.v('v_add_u32', vW, vW, tmp)
    P.v('v_and_b32', tmp, 3, vN)
    P.v('v_lshl_add_u32', vW, tmp, 4, vW)
    P.v('v_lshrrev_b32', tmp, 1, vG)
    P.v('v_lshl_add_u32', vW, tmp, 8, vW)
    P.v('v_and_b32', tmp, 1, vG)
    P.v('v_lshl_add_u32', vW, tmp, 3, vW)
    P.v('v_add_u32', vW, sWB, vW)
    P.v('v_add_u32', vW, hx(EXO), vW)
    def woff(it, ot): return 6 * (ot >> 1) * 1024 + (ot & 1) * 128 + (it >> 1) * 1024 + (it & 1) * 512
    r = V(27); c = V(28)
    P.v('v_lshrrev_b32', r, 2, vN); P.v('v_and_b32', c, 3, vN)
    if not isM:
        P.v('v_lshl_add_u32', tmp, vG, 3, r)
        P.v('v_mul_u32_u24', tmp, hx(192), tmp)
        P.v('v_lshl_add_u32', vT, c, 3, tmp)
        P.v('v_add_u32', vT, sWB, vT)
        P.v('v_add_u32', vT, hx(EXO), vT)
        allwo = [f"d:wo{k}" for k in range(18)]
        for ot in range(6):
            for s in range(3):
                for hh in range(2):
                    rows = [32 * s + 4 * hh, 32 * s + 4 * hh + 24 + 3]
                    tags = [f"d:wo{k}" for k in range(rows[0] * 192 // 1024, min(17, ((rows[1] + 1) * 192 - 1) // 1024) + 1)]
                    P.dsr('ds_read_b64_tr_b16', A(72 + (ot * 3 + s) * 4 + 2 * hh, 2), vT, (32 * s + 4 * hh) * 192 + 32 * ot, mrd=tags + ['m:ex'])
    else:
        P.v('v_lshl_add_u32', tmp, vG, 2, r)
        P.v('v_lshlrev_b32', vT, 4, tmp)
        P.v('v_lshrrev_b32', tmp, 1, c)
        P.v('v_lshl_add_u32', vT, tmp, 8, vT)
        P.v('v_and_b32', tmp, 1, c)
        P.v('v_lshl_add_u32', vT, tmp, 3, vT)
        P.v('v_add_u32', vT, sWB, vT)
        P.v('v_add_u32', vT, hx(EXO), vT)
    for ot in range(6):
        for it in range(6):
            D = xd(it, ot)
            for s in range(3):
                P.mfma(D, A((it * 3 + s) * 4, 4), A(72 + (ot * 3 + s) * 4, 4), D if s else 0)
    ts(P, 3, rd=xd(0, 0).regs(), grp='fold')
    ts(P, 4, rd=[r for it in range(6) for ot in range(6) for r in xd(it, ot).regs()], grp='fold')
    for ot in range(6):
        for it in range(6):
            D = xd(it, ot); B = rb(ot, it >> 1)
            P.cvt(B[2 * (it & 1)], D[0], D[1]); P.cvt(B[2 * (it & 1) + 1], D[2], D[3])
    aD = [V(248, 4) if ot % 2 == 0 else V(252, 4) for ot in range(6)]
    aV = [V(20 + 0) for _ in range(6)]
    aS = [V(29), V(30), V(31), V(21), V(20), V(26)]
    for ot in range(6):
        D = aD[ot]
        for sg in range(3):
            P.mfma(D, vOnes, rb(ot, sg), D if sg else 0)
        P.v('v_mov_b32', aS[ot], D[0])
    ts(P, 5, rd=[r for a in aS for r in a.regs()], grp='fold')
    UV = A(144, 48)
    for i in range(48):
        if i % 4: P.v('v_accvgpr_write_b32', UV[i], 0)
    sNeg96 = sTmp[7]; sI9216 = sTmp[12]
    P.s('s_mov_b32', sNeg96, hx(f2u(-1.0 / 96)))
    one = '1.0'
    if isM:
        for ot in range(6):
            for it in range(6):
                B = rb(ot, it >> 1)
                P.dsw('ds_write_b64', vW, B[2 * (it & 1):2 * (it & 1) + 2], woff(it, ot), mwr=['m:ex'])
        for it in range(6):
            for so in range(3):
                B = V(RB + (it * 3 + so) * 4, 4)
                for hh in range(2):
                    P.dsr('ds_read_b64_tr_b16', B[2 * hh:2 * hh + 2], vT, (6 * so + 3 * hh + (it >> 1)) * 1024 + (it & 1) * 512, mrd=['m:ex'])
        cs = tmp
        P.v('v_add_f32', cs, aS[0], aS[1]); P.v('v_add_f32', tmp2, aS[2], aS[3]); P.v('v_add_f32', tmp2, tmp2, aS[4])
        P.v('v_add_f32', cs, cs, tmp2); P.v('v_add_f32', cs, cs, aS[5])
        for sh in (8, 4, 2, 1):
            P.v('v_add_f32_dpp', cs, cs, cs, mod=f"row_ror:{sh} row_mask:0xf bank_mask:0xf")
        P.s('s_mov_b32', sI9216, hx(f2u(1.0 / 9216)))
        P.v('v_mul_f32', cs, sI9216, cs)
        for ot in range(6):
            P.v('v_fma_f32', aS[ot], aS[ot], sNeg96, cs)
            P.cvt(aS[ot], aS[ot], one)
            P.v('v_accvgpr_write_b32', UV[24 + 4 * ot], aS[ot])
        for it in range(6):
            D = aD[it]
            for so in range(3):
                P.mfma(D, vOnes, V(RB + (it * 3 + so) * 4, 4), D if so else 0)
            u = V(25) if it % 2 else V(27)
            P.v('v_mul_f32', u, sNeg96, D[0])
            P.cvt(u, one, u)
            P.v('v_cndmask_b32_e64', u, 0, u, sG0)
            P.v('v_accvgpr_write_b32', UV[4 * it], u)
        Uf = lambda it: UV[4 * it:4 * it + 4]
    else:
        for ot in range(6):
            P.v('v_mul_f32', aS[ot], sNeg96, aS[ot])
            P.cvt(aS[ot], aS[ot], vZero)
            P.v('v_accvgpr_write_b32', UV[24 + 4 * ot], aS[ot])
        u = V(25)
        P.v('v_mov_b32', u, hx(0x3f80))
        P.v('v_cndmask_b32_e64', u, 0, u, sG0)
        P.v('v_accvgpr_write_b32', UV[0], u)
        Uf = lambda it: UV[0:4]
    ts(P, 6, rd=UV.regs(), grp='fold')
    for ot in range(6):
        for it in range(6):
            D = xd(it, ot)
            P.mfma(D, Uf(it), UV[24 + 4 * ot:28 + 4 * ot], D)
            B = rb(ot, it >> 1)
            P.cvt(B[2 * (it & 1)], D[0], D[1]); P.cvt(B[2 * (it & 1) + 1], D[2], D[3])
            P.dsw('ds_write_b64', vW, B[2 * (it & 1):2 * (it & 1) + 2], woff(it, ot), mwr=['m:ex'])

def read_weights(P, mats):
    va = [V(212), V(213), V(214), V(215)]
    P.v('v_lshlrev_b32', va[0], 4, vL)
    P.v('v_add_u32', va[0], hx(EXO), va[0])
    for w in range(1, 4): P.v('v_add_u32', va[w], hx(WREG * w), va[0])
    for w, mat in ((0, 'M1'), (1, 'W1'), (2, 'M2'), (3, 'W2')):
        if mat not in mats: continue
        for j in range(6):
            for s in range(3):
                P.dsr('ds_read_b128', frag(mat, j, s), va[w], (3 * j + s) * 1024)

class TP: pass
def t_pools():
    T = TP()
    T.xf = Pool('v', 20, 12, 2)
    T.D = Pool('v', 44, 4, 12)
    T.qB = Pool('v', 92, 12, 1)
    T.pvA = Pool('v', 104, 24, 2)
    T.sgm = Pool('v', 152, 12, 2)
    T.pB = Pool('v', 176, 4, 2)
    T.x1f = Pool('v', 184, 12, 1)
    T.tmp = Pool('v', 196, 8, 2)
    T.g2 = Pool('v', 212, 8, 1)
    T.dm = [V(220), V(221), V(222)]
    return T

def stats(P, G, Msum, tmp):
    d, a = tmp[0], tmp[1]
    P.v('v_cndmask_b32_e64', d, G[0], G[1], sMt[1])
    P.v('v_cndmask_b32_e64', d, d, G[2], sMt[2])
    P.v('v_cndmask_b32_e64', d, d, G[3], sMt[3])
    P.v('v_mul_f32', a, s96, Msum)
    P.v('v_fma_f32', d, Neg(a), Msum, d)
    P.v('v_fma_f32', d, d, s96, vEPS)
    P.v('v_rsq_f32', d, d)
    return d

def t_tile(P, T, tau):
    base = 3072 * tau
    xf = T.xf.get()
    for s in range(3):
        P.dsr('ds_read_b128', xf[4 * s:4 * s + 4], vXA, base + 64 * s, mrd=xtags(tau) + [f"m:{tau}"])
    X = lambda s: xf[4 * s:4 * s + 4]
    sgm = T.sgm.get(); Sd, G, M = sgm[0:4], sgm[4:8], sgm[8:12]
    for s in range(3): P.mfma(G, X(s), X(s), G if s else 0)
    P.L[-1].wr.append(f"o:t{tau}"); P.L[-1].wr.append(f"o:t{tau}a")
    for s in range(3): P.mfma(M, vOnes, X(s), M if s else 0)
    qB = T.qB.get()
    for j in range(6):
        D = T.D.get()
        for s in range(3): P.mfma(D, frag('M1', j, s), X(s), D if s else 0)
        if j == 4: P.L[-1].wr.append(f"o:t{tau}b")
        o = 4 * (j >> 1) + 2 * (j & 1)
        P.cvt(qB[o], D[0], D[1]); P.cvt(qB[o + 1], D[2], D[3])
    for s in range(3): P.mfma(Sd, X(s), qB[4 * s:4 * s + 4], Sd if s else 0)
    pvA = T.pvA.get()
    for j in range(6):
        D = T.D.get()
        for s in range(3): P.mfma(D, X(s), frag('W1', j, s), D if s else 0)
        if j == 4: P.L[-1].wr.append(f"o:t{tau}c")
        P.cvt(pvA[4 * j], D[0], D[1]); P.cvt(pvA[4 * j + 1], D[2], D[3])
        P.dsr('ds_read_b64_tr_b16', pvA[4 * j + 2:4 * j + 4], vTR, base + 64 * (j >> 1) + 8 * (j & 1), mrd=xtags(tau) + [f"m:{tau}"])
    tmp = T.tmp.get()
    r = stats(P, G, M[0], tmp)
    m, rq, nm, l, l2 = tmp[2], tmp[3], tmp[4], tmp[5], tmp[6]
    q = lambda e: f"quad_perm:[{e},{e},{e},{e}] row_mask:0xf bank_mask:0xf"
    for e in range(4): P.v('v_mul_f32_dpp', Sd[e], r, Sd[e], mod=q(e))
    P.v('v_max3_f32', m, Sd[0], Sd[1], Sd[2]); P.v('v_max_f32', m, m, Sd[3])
    P.v('v_mul_f32', rq, sC, r)
    P.v('v_mul_f32_e64', nm, Neg(m), rq)
    for e in range(4): P.v('v_fma_f32', Sd[e], Sd[e], rq, nm)
    for e in range(4): P.v('v_exp_f32', Sd[e], Sd[e])
    P.v('v_add_f32', l, Sd[0], Sd[1]); P.v('v_add_f32', l2, Sd[2], Sd[3]); P.v('v_add_f32', l, l, l2)
    P.v('v_rcp_f32', l, l)
    for e in range(4): P.v('v_mul_f32_dpp', Sd[e], r, Sd[e], mod=q(e))
    for e in range(4): P.v('v_mul_f32', Sd[e], Sd[e], l)
    pB = T.pB.get()
    P.cvt(Sd[0], Sd[0], Sd[1]); P.cvt(Sd[2], Sd[2], Sd[3])
    P.v('v_cndmask_b32_e64', pB[0], 0, Sd[0], sValid)
    P.v('v_cndmask_b32_e64', pB[1], 0, Sd[2], sValid)
    x1f = T.x1f.get()
    for j in range(6):
        D = T.D.get()
        P.mfma(D, pvA[4 * j:4 * j + 4], pB, 0)
        o = 4 * (j >> 1) + 2 * (j & 1)
        P.cvt(x1f[o], D[0], D[1]); P.cvt(x1f[o + 1], D[2], D[3])
    for s in range(3):
        P.dsw('ds_write_b128', vXA, x1f[4 * s:4 * s + 4], base + 64 * s, mwr=[f"m:{tau}"])
    g2 = T.g2.get(); G2, M2 = g2[0:4], g2[4:8]
    for s in range(3): P.mfma(G2, x1f[4 * s:4 * s + 4], x1f[4 * s:4 * s + 4], G2 if s else 0)
    for s in range(3): P.mfma(M2, vOnes, x1f[4 * s:4 * s + 4], M2 if s else 0)
    r2 = stats(P, G2, M2[0], [M2[1], M2[2]])
    P.dsw('ds_write_b32', vST, r2, 4 * pos0(tau), mwr=['m:st'], mrd=['m:0'])


sM = S(82, 2)
def onehot_pair(P, dst, d, lo, val, dh):
    P.v('v_and_b32', val, 1, d)
    P.v('v_lshlrev_b32', val, 4, val)
    P.v('v_lshlrev_b32', val, val, vC3f80)
    P.v('v_ashrrev_i32', dh, 1, d)
    P.v('v_cmp_eq_i32_e64', sM, lo // 2, dh)
    P.v('v_cndmask_b32_e64', dst, 0, val, sM)

vC3f80 = V(223)
def t_consts(P, T):
    d = V(220); a = V(221); b = V(222)
    P.v('v_mov_b32', vC3f80, hx(0x3f80))
    P.v('v_lshlrev_b32', d, 2, vG)
    P.v('v_sub_u32', d, vN, d)
    for k in range(2):
        pB = V(176 + 4 * k, 4)
        for h in range(2):
            onehot_pair(P, pB[2 + h], d, 2 * h, a, b)

class SP: pass
def s_pools():
    Q = SP()
    Q.V2A = V(20, 48)
    Q.D = Pool('v', 68, 4, 8)
    Q.XQ = Pool('v', 100, 12, 2)
    Q.qB = Pool('v', 124, 12, 1)
    Q.sD = Pool('v', 136, 16, 2)
    Q.PB = Pool('v', 168, 8, 2)
    Q.RK = V(184, 16)
    Q.tmp = Pool('v', 200, 8, 2)
    Q.outp = Pool('v', 216, 12, 1)
    Q.XK = Pool('a', 144, 48, 2)
    Q.K0 = V(228); Q.Q3 = V(229); Q.TA = [V(230 + j) for j in range(4)]; Q.OA = [V(234 + j) for j in range(4)]
    Q.vRK = V(238); Q.vRQ = V(239); Q.vWB = V(240); Q.XL0 = V(241)
    Q.cL = V(244, 4); Q.cD0 = V(242); Q.cD1 = V(243)
    Q.Kw = Pool('v', 248, 1, 2); Q.XLw = Pool('v', 250, 1, 1); Q.Qw = Pool('v', 251, 1, 2); Q.Tw = Pool('v', 253, 1, 2)
    Q.t0 = V(4); Q.t1 = V(5); Q.t2 = V(6); Q.t3 = V(7); Q.t4 = V(8)
    return Q

def s_consts(P, Q):
    t0, t1, t2, t3, t4 = Q.t0, Q.t1, Q.t2, Q.t3, Q.t4
    P.v('v_mov_b32', Q.vWB, sWB)
    P.v('v_add_u32', Q.XL0, Q.vWB, vG16)
    P.v('v_lshrrev_b32', t0, 2, vN); P.v('v_and_b32', t1, 3, vN)
    P.v('v_mul_u32_u24', t2, hx(3072), t0)
    P.v('v_mul_u32_u24', t3, hx(192), t1)
    P.v('v_add3_u32', t2, t2, t3, Q.XL0)
    P.v('v_add_u32', Q.K0, hx(3072), t2)
    P.v('v_add_u32', t2, hx(27648), Q.K0)
    P.v('v_cmp_le_u32_e64', sM, 12, vN)
    P.v('v_cndmask_b32_e64', Q.Q3, t2, Q.XL0, sM)
    P.v('v_lshl_add_u32', t2, vG, 2, t0)
    P.v('v_add_u32', t3, -1, t2)
    P.v('v_ashrrev_i32', t4, 2, t3)
    P.v('v_mul_i32_i24', t4, hx(3072), t4)
    P.v('v_and_b32', t3, 3, t3)
    P.v('v_mul_u32_u24', t3, hx(192), t3)
    P.v('v_lshl_add_u32', t1, t1, 4, Q.vWB)
    P.v('v_add3_u32', t3, t3, t4, t1)
    P.v('v_add_u32', t3, hx(3072), t3)
    P.v('v_add_u32', t4, hx(192), t1)
    sS0 = S(40, 2); sS13 = S(42, 2)
    P.v('v_cmp_eq_u32_e64', sS0, 0, t2)
    P.v('v_cmp_le_u32_e64', sS13, 13, t2)
    for j in range(4):
        if j: P.v('v_add_u32', t3, hx(9216), t3)
        if j < 3:
            P.v('v_cndmask_b32_e64', Q.TA[j], t3, t4, sS0)
        else:
            P.v('v_cndmask_b32_e64', Q.TA[j], t3, t1, sS13)
            P.v('v_cndmask_b32_e64', Q.TA[j], Q.TA[j], t4, sS0)
    for j in range(4):
        P.v('v_add_u32', t0, 12 * j, vN)
        P.v('v_mul_u32_u24', t2, 37, t0)
        P.v('v_lshrrev_b32', t2, 8, t2)
        P.v('v_mul_u32_u24', t2, sK41664, t2)
        P.v('v_mul_u32_u24', t0, hx(192), t0)
        P.v('v_add3_u32', t0, t0, t2, vG16)
        P.v('v_cmp_gt_u32_e64', sM, 12 if j < 3 else 13, vN)
        P.v('v_mov_b32', t2, hx(0x7f000000))
        P.v('v_cndmask_b32_e64', Q.OA[j], t2, t0, sM)
    P.v('v_add_u32', Q.vRK, hx(384), Q.XL0)
    P.v('v_lshl_add_u32', t0, vN, 2, Q.vWB)
    P.v('v_add_u32', Q.vRQ, hx(384), t0)
    P.v('v_mov_b32', t0, hx(0xff800000))
    P.v('v_cndmask_b32_e64', Q.cL[0], t0, 0, sG0)
    for e in (1, 2, 3): P.v('v_mov_b32', Q.cL[e], 0)
    P.v('v_lshlrev_b32', t0, 2, vG)
    P.v('v_sub_u32', t0, vN, t0)
    P.v('v_add_u32', t0, 1, t0)
    P.v('v_cmp_eq_u32_e64', sM, 0, t0)
    P.v('v_cndmask_b32_e64', t1, 0, 1.0, sM)
    P.v('v_cndmask_b32_e64', Q.cD0, t1, 0, sG0)
    P.v('v_cmp_eq_u32_e64', sM, 1, t0)
    P.v('v_cndmask_b32_e64', Q.cD1, 0, 1.0, sM)
    P.v('v_mov_b32', vC3f80, hx(0x3f80)) if False else None
    P.v('v_mov_b32', t4, hx(0x3f80))
    for k in range(2):
        dst = V(168 + 8 * k + 7)
        P.v('v_and_b32', t1, 1, t0)
        P.v('v_lshlrev_b32', t1, 4, t1)
        P.v('v_lshlrev_b32', t1, t1, t4)
        P.v('v_ashrrev_i32', t2, 1, t0)
        P.v('v_cmp_eq_i32_e64', sM, 1, t2)
        P.v('v_cndmask_b32_e64', dst, 0, t1, sM)
    for w in range(4):
        P.s('s_add_u32', sSo[w], sWin, hx(TPL * w))

def v2l(P, Q):
    t0, t1 = Q.t2, Q.t3
    XL = Q.XQ.get()
    P.v('v_and_b32', t0, 3, vN)
    P.v('v_xor_b32', t1, vG, t0)
    P.v('v_lshlrev_b32', t1, 4, t1)
    P.v('v_mul_u32_u24', t0, hx(768), t0)
    P.v('v_add3_u32', t0, t0, t1, Q.vWB)
    for s in range(3):
        P.dsr('ds_read_b128', XL[4 * s:4 * s + 4], t0, 64 * s, mrd=['m:0'])
    ob = Q.outp.get()
    for j in range(6):
        D = Q.D.get()
        for s in range(3): P.mfma(D, frag('W2', j, s), XL[4 * s:4 * s + 4], D if s else 0)
        o = 4 * (j >> 1) + 2 * (j & 1)
        P.cvt(ob[o], D[0], D[1]); P.cvt(ob[o + 1], D[2], D[3])
    for s in range(3):
        P.dsw('ds_write_b128', t0, ob[4 * s:4 * s + 4], 192 + 64 * s, mwr=['m:v2l'], mrd=['m:0'])

def s_window(P, Q, w):
    XK = Q.XK.get()
    if w:
        Kw = Q.Kw.get(); P.v('v_xor_b32', Kw, 16 * w, Q.K0)
        XLw = Q.XLw.get(); P.v('v_xor_b32', XLw, 16 * w, Q.XL0)
    else:
        Kw = Q.K0; XLw = Q.XL0
    xk = lambda kt, s: XK[12 * kt + 4 * s:12 * kt + 4 * s + 4]
    for kt in range(3):
        for s in range(3):
            P.dsr('ds_read_b128', xk(kt, s), Kw, 768 * w + 12288 * kt + 64 * s, mrd=[f"m:{4*kt+1+i}" for i in range(4)])
    for s in range(3):
        P.dsr('ds_read_b128', xk(3, s), XLw, 768 * w + 64 * s, mrd=['m:0'])
    RK = Q.RK
    for kt in range(3):
        P.dsr('ds_read_b128', RK[4 * kt:4 * kt + 4], Q.vRK, 768 * w + 64 * kt, mrd=['m:st'])
    P.dsr('ds_read_b32', RK[12], Q.vWB, 768 * w + 384 + 192, mrd=['m:st'])
    V2A = Q.V2A
    for kt in range(3):
        for j in range(6):
            D = Q.D.get()
            for s in range(3): P.mfma(D, xk(kt, s), frag('W2', j, s), D if s else 0)
            o = 8 * j + 4 * (kt >> 1) + 2 * (kt & 1)
            P.cvt(V2A[o], D[0], D[1]); P.cvt(V2A[o + 1], D[2], D[3])
    for jq in range(4):
        XQ = Q.XQ.get()
        slots = sorted(set((((min(12 * jq + n, 48)) >> 2) + 1) % 13 for n in range(16)))
        mr = [f"m:{x}" for x in slots]
        if jq < 3:
            qa, qoff = Kw, 9216 * jq
        else:
            qoff = 0
            if w:
                qa = Q.Qw.get(); P.v('v_xor_b32', qa, 16 * w, Q.Q3)
            else: qa = Q.Q3
        for s in range(3):
            P.dsr('ds_read_b128', XQ[4 * s:4 * s + 4], qa, 768 * w + qoff + 64 * s, mrd=mr)
        tmp = Q.tmp.get()
        rq, m, y, nm, l, l2, l3 = tmp[0], tmp[1], tmp[2], tmp[3], tmp[4], tmp[5], tmp[6]
        P.dsr('ds_read_b32', rq, Q.vRQ, 768 * w + 48 * jq, mrd=['m:st'])
        qB = Q.qB.get()
        for j in range(6):
            D = Q.D.get()
            for s in range(3): P.mfma(D, frag('M2', j, s), XQ[4 * s:4 * s + 4], D if s else 0)
            o = 4 * (j >> 1) + 2 * (j & 1)
            P.cvt(qB[o], D[0], D[1]); P.cvt(qB[o + 1], D[2], D[3])
        SD = Q.sD.get()
        for kt in range(4):
            D = SD[4 * kt:4 * kt + 4]
            for s in range(3):
                P.mfma(D, xk(kt, s), qB[4 * s:4 * s + 4], D if s else (Q.cL if kt == 3 else 0))
        if w:
            ta = Q.Tw.get(); P.v('v_xor_b32', ta, 16 * w, Q.TA[jq])
        else: ta = Q.TA[jq]
        for j in range(6):
            P.dsr('ds_read_b64_tr_b16', V2A[8 * j + 6:8 * j + 8], ta, 768 * w + 64 * (j >> 1) + 8 * (j & 1), mrd=mr + ['m:v2l', 'm:0'])
        vals = [SD[i] for i in range(13)]
        rks = [RK[i] for i in range(13)]
        P.v('v_mul_f32', rq, sC, rq)
        for i in range(13): P.v('v_mul_f32', vals[i], vals[i], rks[i])
        P.v('v_max3_f32', m, vals[0], vals[1], vals[2])
        P.v('v_max3_f32', y, vals[3], vals[4], vals[5])
        P.v('v_max3_f32', nm, vals[6], vals[7], vals[8])
        P.v('v_max3_f32', l, vals[9], vals[10], vals[11])
        P.v('v_max3_f32', m, m, y, nm)
        P.v('v_max3_f32', m, m, l, vals[12])
        for op in ('v_permlane32_swap_b32', 'v_permlane16_swap_b32'):
            P.v('v_mov_b32', y, m)
            P.v(op, m, y)
            P.v('v_max_f32', m, m, y)
        P.v('v_mul_f32_e64', nm, Neg(m), rq)
        for i in range(13): P.v('v_fma_f32', vals[i], vals[i], rq, nm)
        for i in range(13): P.v('v_exp_f32', vals[i], vals[i])
        P.v('v_add_f32', l, vals[0], vals[1]); P.v('v_add_f32', l2, vals[2], vals[3]); P.v('v_add_f32', l3, vals[4], vals[5])
        P.v('v_add_f32', m, vals[6], vals[7]); P.v('v_add_f32', y, vals[8], vals[9]); P.v('v_add_f32', nm, vals[10], vals[11])
        P.v('v_add_f32', l, l, l2); P.v('v_add_f32', l3, l3, m); P.v('v_add_f32', y, y, nm)
        P.v('v_add_f32', l, l, l3); P.v('v_add_f32', y, y, vals[12]); P.v('v_add_f32', l, l, y)
        for op in ('v_permlane32_swap_b32', 'v_permlane16_swap_b32'):
            P.v('v_mov_b32', y, l)
            P.v(op, l, y)
            P.v('v_add_f32', l, l, y)
        P.v('v_rcp_f32', l, l)
        for i in range(13): P.v('v_mul_f32', vals[i], vals[i], rks[i])
        for i in range(12): P.v('v_mul_f32', vals[i], vals[i], l)
        P.v('v_fma_f32', vals[12], vals[12], l, Q.cD0)
        PB = Q.PB.get()
        for i in range(6): P.cvt(PB[i], vals[2 * i], vals[2 * i + 1])
        P.cvt(PB[6], vals[12], Q.cD1)
        ob = Q.outp.get()
        for j in range(6):
            D = Q.D.get()
            P.mfma(D, V2A[8 * j:8 * j + 4], PB[0:4], 0)
            P.mfma(D, V2A[8 * j + 4:8 * j + 8], PB[4:8], D)
            o = 4 * (j >> 1) + 2 * (j & 1)
            P.cvt(ob[o], D[0], D[1]); P.cvt(ob[o + 1], D[2], D[3])
        for s in range(3):
            P.bstore('buffer_store_dwordx4', ob[4 * s:4 * s + 4], Q.OA[jq], sO, sSo[w], 64 * s).wr.append(f"o:w{w}")
    ts(P, 5 + w, rd=[f"o:w{w}"])

def dbg_srd(P):
    P.s('s_mov_b32', sDbg[0], S(96)) if False else None

def dump_regs(P, regs4, slot_bytes):
    va = V(0)
    P.s('s_lshl_b32', sT0, sWG, 2); P.s('s_add_u32', sT0, sT0, sWave)
    P.s('s_mul_i32', sT0, sT0, slot_bytes)
    P.v('v_lshlrev_b32', va, 4, vL)
    for k, r in enumerate(regs4):
        P.s('s_add_u32', sTmp[0], sT0, hx(1024 * k))
        P.bstore('buffer_store_dwordx4', r, va, sDbg, sTmp[0], 0)
        P.raw('s_waitcnt vmcnt(0)', 'raw')

def dump_lds(P, nbytes):
    va = V(0); vb = V(20); d = V(24, 4)
    P.s('s_lshl_b32', sT0, sWG, 2); P.s('s_add_u32', sT0, sT0, sWave)
    P.s('s_mul_i32', sT0, sT0, nbytes)
    P.v('v_lshlrev_b32', va, 4, vL)
    P.v('v_add_u32', vb, sWB, va)
    for k in range(nbytes // 1024):
        P.raw(f"ds_read_b128 {d}, {vb} offset:{1024*k}", 'raw')
        P.raw('s_waitcnt lgkmcnt(0)', 'raw')
        P.s('s_add_u32', sTmp[0], sT0, hx(1024 * k))
        P.raw(f"buffer_store_dwordx4 {d}, {va}, {sDbg}, {sTmp[0]} offen", 'raw')
        P.raw('s_waitcnt vmcnt(0)', 'raw')

def finalize(L, vm0=(), lg0=(), hist=()):
    L = strip_nops(L)
    L, vm, lg = insert_waits(L, vm0, lg0)
    L = insert_nops(L, hist)
    return L, vm, lg

def main():
    out = []
    P = Prog(); setup(P)
    P.s('s_and_b32', sTmp[0], sWave, 1)
    P.s('s_cmp_eq_u32', sTmp[0], 1)
    P.raw("s_cbranch_scc1 L_FOLDW", 'br', rd=['scc'])
    pre, _, _ = finalize(P.L)
    out += pre
    ends = []
    for isM in (True, False):
        P = Prog()
        fold_loads(P, isM)
        fold_compute(P, isM)
        L = schedule(P.L, name='foldM' if isM else 'foldW')
        P2 = Prog(); wait(P2, lg=0); ts(P2, 1); ts(P2, 7, grp='fold')
        L += P2.L
        if not isM: out.append(Ins("L_FOLDW:", 'label'))
        L, vm, lg = finalize(L, hist=pre[-4:])
        out += L
        ends.append(vm)
        if isM: out.append(Ins("s_branch L_JOIN", 'br'))
    out.append(Ins("L_JOIN:", 'label'))
    vm0 = ends[0] if len(ends[0]) >= len(ends[1]) else ends[1]
    print("pending at join:", ends, file=sys.stderr)
    P = Prog()
    P.raw('s_nop 7', 'raw'); P.raw('s_barrier', 'bar')
    ts(P, 2); ts(P, 8, grp='fold')
    early = (DEBUG != 'fold')
    L, vm0, lg0 = finalize(P.L, vm0=vm0)
    out += L
    P = Prog()
    read_weights(P, ('M1', 'W1') if early else ('M1', 'W1', 'M2', 'W2'))
    M0.cur = None
    for m in range(XEXCH):
        XQ.next(P, [V(29), V(30), V(31)], cost=48, lat=WLAT, rel=100 + 300 * m, prio=5000)
    L = schedule(P.L, name='exch')
    P = Prog()
    if not early:
        wait(P, lg=0)
        P.raw('s_barrier', 'bar')
    ts(P, 3); ts(P, 1, grp='T')
    L += P.L
    L, vm0, lg0 = finalize(L, vm0=vm0, lg0=lg0)
    out += L
    if DEBUG == 'fold':
        P = Prog()
        regs = [frag(m, j, s) for m in ('M1', 'W1', 'M2', 'W2') for j in range(6) for s in range(3)]
        dump_regs(P, regs, 72 * 1024)
        out += insert_nops(P.L)
    else:
        P = Prog()
        T = t_pools()
        t_consts(P, T)
        vw = V(0)
        P.v('v_lshlrev_b32', vw, 4, vL)
        P.v('v_add_u32', vw, hx(EXO + 2 * WREG), vw)
        allf = []
        for w, mat in ((0, 'M2'), (1, 'W2')):
            for j in range(6):
                for sx in range(3):
                    i = P.dsr('ds_read_b128', frag(mat, j, sx), vw, (3 * j + sx) * 1024 + WREG * w)
                    allf += frag(mat, j, sx).regs()
        M0.cur = None
        for tau in range(13):
            t_tile(P, T, tau)
            if tau in TSTAMP: ts(P, TSTAMP[tau], rd=[f"m:{tau}"], grp='T')
            if tau == BAR2_TILE:
                i = P.raw('s_barrier', 'bar', rd=allf + [f"o:t{tau}"] + [r for m in ('M1', 'W1') for j in range(6) for sx in range(3) for r in frag(m, j, sx).regs()], wr=['o:bar2'])
                i.prio = 3000
            sub = 0
            while XQ.n < 39 and XQ.n <= 3 * tau + 2 + XDIST and sub < XMAXT:
                if XQ.n >= 3 * NPRE and tau < BAR2_TILE: break
                aft = [f"o:t{tau}" + 'abc'[min(sub, 2)]] + (['o:bar2'] if XQ.n >= 3 * NPRE else [])
                XQ.next(P, T.dm, cost=32, lat=3000, after=aft, prio=3000); sub += 1
        assert XQ.n == 39, XQ.n
        ts(P, 4, rd=['m:12'])
        if DEBUG != 'x1':
            Q = s_pools()
            s_consts(P, Q)
            v2l(P, Q)
            for w in range(4): s_window(P, Q, w)
        L = schedule(P.L, name='main', window=WINDOW)
        L, vm, lg = finalize(L, vm0=vm0, lg0=lg0)
        if TIMEG == 'ev':
            ev0 = int([a for a in sys.argv if a.startswith('--ev=')][0].split('=')[1])
            L2 = []; ev = 0; k = 1
            for ins in L:
                isev = ('vmcnt' in ins.txt and ins.kind == 'wait') or ins.kind == 'bar'
                if isev and ev0 <= ev < ev0 + 4:
                    L2.append(Ins(f"s_memtime {TSR[k]}", 'salu')); k += 1
                    L2.append(ins)
                    L2.append(Ins(f"s_memtime {TSR[k]}", 'salu')); k += 1
                else: L2.append(ins)
                if isev: ev += 1
            L = L2
        out += L
        if DEBUG == 'x1':
            P = Prog(); P.raw('s_waitcnt vmcnt(0) lgkmcnt(0)', 'raw')
            dump_lds(P, WREG)
            out += insert_nops(P.L)
    if TIME:
        P = Prog()
        P.raw('s_waitcnt lgkmcnt(0)', 'raw')
        P.s('s_lshl_b32', sT0, sWG, 2); P.s('s_add_u32', sT0, sT0, sWave)
        P.s('s_lshl_b32', sT0, sT0, 6)
        P.v('v_mov_b32', V(0), 0)
        for k in range(9):
            P.v('v_mov_b32', V(20 + k), TSR[k][0])
            P.raw(f"buffer_store_dword v{20+k}, v0, {sDbg}, {sT0} offen offset:{4*k}", 'raw')
        out += insert_nops(P.L)
    out.append(Ins("L_END:", 'label'))
    out.append(Ins("s_endpgm", 'raw'))
    hdr = open('orig.s').read()
    head = hdr[:hdr.index('; @launch')]
    txt = head + f"; @launch grid=(256,1,1) block=(256,1,1) lds={LDS_TOTAL}\n"
    txt += '.amdgcn_target "amdgcn-amd-amdhsa--gfx950"\n.text\n.globl standalone__video_video_swin__vision_kernel\n.p2align 8\n'
    txt += '.type standalone__video_video_swin__vision_kernel,@function\nstandalone__video_video_swin__vision_kernel:\n'
    for ins in out:
        txt += (ins.txt if ins.kind == 'label' else '  ' + ins.txt) + '\n'
    txt += """.section .rodata,"a"
.p2align 6
.amdhsa_kernel standalone__video_video_swin__vision_kernel
  .amdhsa_next_free_vgpr 512
  .amdhsa_next_free_sgpr 102
  .amdhsa_accum_offset 256
  .amdhsa_group_segment_fixed_size 0
  .amdhsa_kernarg_size 64
  .amdhsa_user_sgpr_count 2
  .amdhsa_user_sgpr_kernarg_segment_ptr 1
  .amdhsa_system_sgpr_workgroup_id_x 1
.end_amdhsa_kernel
"""
    o = [a for a in sys.argv[1:] if not a.startswith('--')]
    open(o[0] if o else 'out.s', 'w').write(txt)
    print("instructions:", len(out), file=sys.stderr)

WINDOW = 700
TSTAMP = {0: 2, 1: 3, 3: 4, 5: 5, 7: 6, 9: 7, 12: 8}
BAR2_TILE = 1
if __name__ == '__main__': main()
```

```python
import sys, struct, math
from core import *

DEBUG = None
for a in sys.argv[1:]:
    if a.startswith('--debug='): DEBUG = a.split('=')[1]

def f2u(x): return struct.unpack('<I', struct.pack('<f', x))[0]
def hx(x): return f"0x{x & 0xffffffff:x}"

TPL = 9633792
ROWB = 43008
WREG = 39936
EXO = 21504
SPARE = 4 * WREG
LDS_TOTAL = 163840
NPRE = 7

def pos0(tau): return 48 if tau == 0 else 4 * (tau - 1)
def goff(pos): return pos * 192 + (pos // 7) * 41664

sKA = S(0, 2); sWG = S(2)
sX = S(4, 4); sO = S(8, 4); sW = S(12, 4); sWo = S(16, 4)
sWave = S(20); sWin = S(21); sWB = S(22); sT0 = S(23)
sIT = [S(24 + i) for i in range(6)]
sMt = [None, S(30, 2), S(32, 2), S(34, 2)]
sValid = S(36, 2)
sG0 = S(38, 2)
sCross = {}
_i = 40
for k in range(3):
    for th in (1, 2, 3):
        sCross[(k, th)] = S(_i, 2); _i += 2
s96 = S(58); sC = S(59); sK41664 = S(60)
sSo = [S(61 + i) for i in range(4)]
sTmp = [S(65 + i) for i in range(16)]
sPtr = S(84, 12)
sDbg = S(96, 4)
sDbg2 = S(76, 4)
CODEPF = '--nocodepf' not in sys.argv
WPF = '--nowpf' not in sys.argv

VM1 = 224
def frag(mat, j, s):
    k = 3 * j + s
    if mat == 'M2': return A(4 * k, 4)
    if mat == 'W2': return A(72 + 4 * k, 4)
    if mat == 'W1': return A(144 + 4 * k, 4)
    if mat == 'M1': return A(216 + 4 * k, 4) if k < 10 else V(VM1 + 4 * (k - 10), 4)

vL = V(1); vN = V(2); vG = V(3)
vXA = V(4); vTR = V(5); vST = V(6)
vCst = [V(7), V(8), V(9)]; vCstX = [V(10), V(11), V(12)]
vEPS = V(13)
vOnes = V(16, 4)
vG16 = V(14)
vZero = V(15)

def setup(P):
    P.raw(f"s_cmp_ge_u32 s2, 256", 'salu', rd=['s2'], wr=['scc'])
    P.raw("s_cbranch_scc1 L_END", 'br', rd=['scc'])
    ts(P, 0)
    if DBGCLK:
        P.raw("s_memtime s[100:101]", 'raw'); P.raw("s_memrealtime s[98:99]", 'raw')
        P.raw("s_load_dwordx2 s[96:97], s[0:1], 48", 'raw')
    if CODEPF:
        P.raw("s_getpc_b64 s[4:5]", 'salu', wr=['s4', 's5'])
        P.label("L_PC")
        P.s('s_lshr_b32', S(6), sWG, 3); P.s('s_and_b32', S(6), S(6), 3); P.s('s_lshl_b32', S(6), S(6), 14)
        P.v('v_lshlrev_b32', V(2), 6, V(0))
        P.v('v_add_u32', V(2), S(6), V(2))
        P.raw("s_mov_b32 s7, L_END-L_PC", 'salu', wr=['s7'])
        P.v('v_min_u32', V(2), S(7), V(2))
        P.v('v_mov_b32', V(3), S(5))
        P.raw("v_add_co_u32 v2, vcc, s4, v2", 'valu', rd=['s4', 'v2'], wr=['v2', 'vcc'])
        P.raw("v_addc_co_u32 v3, vcc, 0, v3, vcc", 'valu', rd=['v3', 'vcc'], wr=['v3', 'vcc'])
        P.raw("global_load_dword v255, v[2:3], off", 'raw', rd=['v2', 'v3'])
    P.raw(f"s_load_dwordx8 s[84:91], s[0:1], 0", 'raw', wr=S(84, 8).regs())
    P.raw(f"s_load_dwordx4 s[92:95], s[0:1], 32", 'raw', wr=S(92, 4).regs())
    if DEBUG or TIME:
        P.raw(f"s_load_dwordx2 s[96:97], s[0:1], 56", 'raw', wr=S(96, 2).regs())
    P.v('v_and_b32', vL, 63, V(0))
    P.v('v_lshrrev_b32', V(20), 6, V(0))
    P.v('v_and_b32', vN, 15, V(0))
    P.v('v_readfirstlane_b32', sWave, V(20))
    P.v('v_lshrrev_b32', vG, 4, vL)
    P.v('v_lshlrev_b32', vG16, 4, vG)
    P.v('v_mov_b32', vZero, 0)
    P.s('s_lshl_b32', sT0, sWG, 2)
    P.s('s_add_u32', sT0, sT0, sWave)
    P.s('s_lshr_b32', sTmp[0], sT0, 5)
    P.s('s_and_b32', sTmp[1], sT0, 31)
    P.s('s_mul_i32', sTmp[0], sTmp[0], 301056)
    P.s('s_mul_i32', sTmp[1], sTmp[1], 1344)
    P.s('s_add_u32', sWin, sTmp[0], sTmp[1])
    P.s('s_mul_i32', sWB, sWave, WREG)
    for i in range(6): P.s('s_mov_b32', sIT[i], 9216 * i)
    P.s('s_mov_b32', s96, hx(f2u(1.0 / 96)))
    P.s('s_mov_b32', sC, hx(f2u(96 ** -0.5 * math.log2(math.e))))
    P.s('s_mov_b32', sK41664, 41664)
    dma_consts(P)
    lane_consts(P)
    P.s('s_lshr_b32', sTmp[4], sWG, 3); P.s('s_and_b32', sTmp[4], sTmp[4], 15); P.s('s_lshl_b32', sTmp[4], sTmp[4], 12)
    P.v('v_lshlrev_b32', V(20), 6, vL)
    P.v('v_mul_u32_u24', V(21), hx(576), vN)
    P.v('v_add_u32', V(21), V(21), vG16)
    P.v('v_lshlrev_b32', V(22), 4, vL)
    P.raw("s_waitcnt lgkmcnt(0)", 'raw')
    x, wt, wot, wsp, wos, out = [sPtr[2 * i:2 * i + 2] for i in range(6)]
    P.s('s_mov_b32', sX[0], x[0]); P.s('s_mov_b32', sX[1], x[1]); P.s('s_mov_b32', sX[2], 38535168); P.s('s_mov_b32', sX[3], '0x20000')
    P.s('s_mov_b32', sO[0], out[0]); P.s('s_mov_b32', sO[1], out[1]); P.s('s_mov_b32', sO[2], 38535168); P.s('s_mov_b32', sO[3], '0x20000')
    P.s('s_cmp_lt_u32', sWave, 2)
    P.s('s_cselect_b32', sW[0], wt[0], wsp[0]); P.s('s_cselect_b32', sW[1], wt[1], wsp[1])
    P.s('s_mov_b32', sW[2], 55296); P.s('s_mov_b32', sW[3], '0x20000')
    P.s('s_cselect_b32', sWo[0], wot[0], wos[0]); P.s('s_cselect_b32', sWo[1], wot[1], wos[1])
    P.s('s_mov_b32', sWo[2], 18432); P.s('s_mov_b32', sWo[3], '0x20000')
    if DEBUG or TIME:
        P.s('s_mov_b32', sDbg[2], hx(268435456)); P.s('s_mov_b32', sDbg[3], '0x20000')
    if WPF:
        P.s('s_and_b32', sTmp[5], sWave, 1)
        P.s('s_cmp_eq_u32', sTmp[5], 0)
        P.s('s_cselect_b32', sDbg2[0], sW[0], sWo[0]); P.s('s_cselect_b32', sDbg2[1], sW[1], sWo[1])
        P.s('s_cselect_b32', sDbg2[2], sW[2], sWo[2]); P.s('s_mov_b32', sDbg2[3], '0x20000')
        P.bload('buffer_load_dword', V(254), V(20), sDbg2, sTmp[4])
    ts(P, 1, grp='fold')

def dma_consts(P):
    u, rho, q, t, p, c, tmp = [V(20 + i) for i in range(7)]
    P.s('s_mov_b32', sTmp[2], 43691)
    P.s('s_mov_b32', sTmp[3], TPL)
    for k in range(3):
        P.v('v_add_u32', u, 64 * k if 64 * k <= 64 else hx(64 * k), vL)
        P.v('v_mul_u32_u24', rho, sTmp[2], u)
        P.v('v_lshrrev_b32', rho, 19, rho)
        P.v('v_mul_u32_u24', q, 12, rho)
        P.v('v_sub_u32', q, u, q)
        P.v('v_lshrrev_b32', t, 2, rho)
        P.v('v_and_b32', p, 3, rho)
        P.v('v_xor_b32', c, q, t)
        P.v('v_lshlrev_b32', c, 4, c)
        P.v('v_mul_lo_u32', tmp, t, sTmp[3])
        P.v('v_add_u32', c, c, tmp)
        P.v('v_mul_u32_u24', tmp, hx(192), p)
        P.v('v_add_u32', c, c, tmp)
        if k: P.v('v_subrev_u32', vCst[k], hx(1024 * k), c)
        else: P.v('v_mov_b32', vCst[k], c)
        P.v('v_add_u32', vCstX[k], hx(41664), vCst[k])
        for th in (1, 2, 3):
            P.v('v_cmp_le_u32_e64', sCross[(k, th)], th, p)

class M0: cur = None
def dma_piece(P, tau, k, tmp, cost=None, lat=None, rel=0, after=(), prio=0):
    p0 = pos0(tau)
    th = None
    if tau != 0:
        for p in range(1, 4):
            if (p0 + p) // 7 != p0 // 7: th = p; break
    so = sTmp[8 + (tau % 3)]
    if k == 0: P.s('s_add_u32', so, sWin, hx(goff(p0))).rel = rel
    if M0.cur != ('x', tau):
        i = P.s('s_add_u32', 'm0', sWB, hx(3072 * tau)); i.rel = rel; i.rd += list(after); M0.cur = ('x', tau)
    if th is None: vo = vCst[k]
    else:
        vo = tmp[k]
        P.v('v_cndmask_b32_e64', vo, vCst[k], vCstX[k], sCross[(k, th)]).rel = rel
    i = P.dma(vo, sX, so, 1024 * k, f"d:{tau}.{k}")
    i.rd.append('o:ord'); i.wr.append('o:ord'); i.rd += list(after)
    if cost: i.cost = cost
    i.lat = lat; i.rel = rel; i.prio = prio
    return i
def xtags(tau): return [f"d:{tau}.{k}" for k in range(3)]

def dma_slot(P, tau, tmp):
    p0 = pos0(tau)
    th = None
    if tau != 0:
        for p in range(1, 4):
            if (p0 + p) // 7 != p0 // 7: th = p; break
    so = sTmp[8 + (tau % 4)]
    P.s('s_add_u32', so, sWin, hx(goff(p0)))
    P.s('s_add_u32', 'm0', sWB, hx(3072 * tau))
    for k in range(3):
        if th is None: vo = vCst[k]
        else:
            vo = tmp[k]
            P.v('v_cndmask_b32_e64', vo, vCst[k], vCstX[k], sCross[(k, th)])
        P.dma(vo, sX, so, 1024 * k, f"d:{tau}").rd.append('o:ord')

sTS = [S(66 + 2 * i, 2) for i in range(0)]
TSREG = 100
def ts(P, k, rd=(), grp='main'):
    if not TIME: return
    if k != 0 and grp != TIMEG: return
    r = TSR[k]
    i = P.add(Ins(f"s_memtime {r}", 'salu', rd=list(rd), wr=r.regs())); i.prio = 9000
TIME = any(a.startswith('--time') for a in sys.argv)
DBGCLK = '--dbgclk' in sys.argv
TIMEG = 'fold' if '--time=fold' in sys.argv else ('T' if '--time=T' in sys.argv else ('ev' if '--time=ev' in sys.argv else 'main'))
TSR = {0: S(100, 2), 1: S(84, 2), 2: S(86, 2), 3: S(88, 2), 4: S(90, 2), 5: S(92, 2), 6: S(94, 2), 7: S(78, 2), 8: S(80, 2)}
def lane_consts(P):
    t, p, r, c, tmp, tmp2 = [V(20 + i) for i in range(6)]
    P.v('v_and_b32', t, 3, vN)
    P.v('v_lshrrev_b32', p, 2, vN)
    P.v('v_lshl_add_u32', tmp, t, 2, p)
    P.v('v_mul_u32_u24', tmp, hx(192), tmp)
    P.v('v_xor_b32', tmp2, vG, t)
    P.v('v_lshl_add_u32', tmp, tmp2, 4, tmp)
    P.v('v_add_u32', vXA, sWB, tmp)
    P.v('v_lshrrev_b32', r, 2, vN)
    P.v('v_and_b32', c, 3, vN)
    P.v('v_lshl_add_u32', tmp, r, 2, vG)
    P.v('v_mul_u32_u24', tmp, hx(192), tmp)
    P.v('v_xor_b32', tmp2, c, r)
    P.v('v_lshl_add_u32', tmp, tmp2, 4, tmp)
    P.v('v_add_u32', vTR, sWB, tmp)
    for e in (1, 2, 3): P.v('v_cmp_eq_u32_e64', sMt[e], e, t)
    P.v('v_cmp_eq_u32_e64', sValid, vG, p)
    P.v('v_cmp_eq_u32_e64', sG0, 0, vG)
    P.v('v_mul_u32_u24', tmp, hx(768), t)
    P.v('v_lshl_add_u32', tmp, p, 2, tmp)
    P.v('v_add_u32', tmp, sWB, tmp)
    P.v('v_add_u32', tmp, hx(384), tmp)
    P.v('v_lshlrev_b32', tmp2, 2, vL)
    P.v('v_add_u32', tmp2, hx(SPARE), tmp2)
    P.v('v_cndmask_b32_e64', vST, tmp2, tmp, sValid)
    P.v('v_mov_b32', vEPS, hx(f2u(1e-5)))
    for i in range(4): P.v('v_mov_b32', vOnes[i], hx(0x3f803f80))

XD = 32
RB = 176
def xd(it, ot): return V(XD + (it * 6 + ot) * 4, 4)
def rb(ot, sg): return V(RB + (ot * 3 + sg) * 4, 4)

WCOST = 130; WLAT = 1400
XEVERY = 5
for _a in sys.argv:
    if _a.startswith('--xevery='): XEVERY = int(_a.split('=')[1])
NXF = 21
XDIST = 10; XMAXT = 4; BAR0 = 4300; XEVERY = 1000; XREL0 = 6300; XSTEP = 360; XBURST = 10; XFOLD = 5; XEXCH = 3; XT = 2.5
for _a in sys.argv:
    if _a.startswith('--xrel='): XREL0, XSTEP, XBURST, XFOLD, XEXCH = map(int, _a.split('=')[1].split(','))
    if _a.startswith('--xevery='): XEVERY = int(_a.split('=')[1])
    if _a.startswith('--xt='): XT = float(_a.split('=')[1])
    if _a.startswith('--xdist='): XDIST, XMAXT = map(int, _a.split('=')[1].split(','))
    if _a.startswith('--bar0='): BAR0 = int(_a.split('=')[1])
def fold_loads(P, isM):
    vA = V(21); vB = V(22)
    aoff = 0 if isM else 384
    seq = []
    def wl(dst, so, off):
        def f():
            i = P.bload('buffer_load_dwordx4', dst, vA, sW, so, off)
            i.wr.append('o:ord'); i.rd.append('o:ord'); i.cost = WCOST; i.lat = WLAT; i.prio = 5000
        seq.append(f)
    if isM:
        for s in range(3): wl(A(72 + s * 4, 4), sIT[0], 192 + 64 * s)
        for it in range(6):
            for s in range(3): wl(A((it * 3 + s) * 4, 4), sIT[it], aoff + 64 * s)
        for ot in range(1, 6):
            for s in range(3): wl(A(72 + (ot * 3 + s) * 4, 4), sIT[ot], 192 + 64 * s)
    else:
        def wo(k):
            def f():
                g4 = k // 4
                if k % 4 == 0:
                    P.s('s_mov_b32', sTmp[5 + (g4 & 1)], hx(4096 * g4))
                if M0.cur != ('wo', g4):
                    P.s('s_add_u32', 'm0', sTmp[4], hx(4096 * g4)); M0.cur = ('wo', g4)
                i = P.dma(vB, sWo, sTmp[5 + (g4 & 1)], 1024 * (k % 4), f"d:wo{k}")
                i.wr.append('o:ord'); i.rd.append('o:ord'); i.cost = WCOST - 40; i.lat = WLAT; i.prio = 5000
            seq.append(f)
        P.s('s_add_u32', sTmp[4], sWB, hx(EXO))
        for k in range(18): wo(k)
        for it in range(6):
            for s in range(3): wl(A((it * 3 + s) * 4, 4), sIT[it], aoff + 64 * s)
    M0.cur = None
    XQ.n = 0
    tmps = [V(29), V(30), V(31)]
    for i, f in enumerate(seq):
        f()
        if (i + 1) % XEVERY == 0:
            XQ.next(P, tmps, cost=WCOST - 40, lat=WLAT, prio=5000)
    ts(P, 2, rd=['o:ord'], grp='fold')
    if BAR0:
        i = P.raw('s_barrier', 'bar', rd=['o:ord'], wr=['o:ord']); i.prio = 5000
        if not isM: i.rel = BAR0
    for m in range(XBURST - XQ.n):
        XQ.next(P, tmps, cost=64, lat=WLAT, prio=5000)
    for m in range(XFOLD):
        XQ.next(P, tmps, cost=48, lat=WLAT, rel=XREL0 + XSTEP * m, prio=5000)

class XQ:
    n = 0
    @staticmethod
    def next(P, tmps, **kw):
        k = XQ.n; XQ.n += 1
        return dma_piece(P, k // 3, k % 3, tmps, **kw)

def fold_compute(P, isM):
    vW = V(22); vT = V(23); tmp = V(24); tmp2 = V(25); tmp3 = V(26)
    P.v('v_bfe_u32', tmp, vN, 2, 1)
    P.v('v_mul_u32_u24', vW, hx(3072), tmp)
    P.v('v_lshrrev_b32', tmp, 3, vN)
    P.v('v_lshlrev_b32', tmp, 6, tmp)
    P.v('v_add_u32', vW, vW, tmp)
    P.v('v_and_b32', tmp, 3, vN)
    P.v('v_lshl_add_u32', vW, tmp, 4, vW)
    P.v('v_lshrrev_b32', tmp, 1, vG)
    P.v('v_lshl_add_u32', vW, tmp, 8, vW)
    P.v('v_and_b32', tmp, 1, vG)
    P.v('v_lshl_add_u32', vW, tmp, 3, vW)
    P.v('v_add_u32', vW, sWB, vW)
    P.v('v_add_u32', vW, hx(EXO), vW)
    def woff(it, ot): return 6 * (ot >> 1) * 1024 + (ot & 1) * 128 + (it >> 1) * 1024 + (it & 1) * 512
    r = V(27); c = V(28)
    P.v('v_lshrrev_b32', r, 2, vN); P.v('v_and_b32', c, 3, vN)
    if not isM:
        P.v('v_lshl_add_u32', tmp, vG, 3, r)
        P.v('v_mul_u32_u24', tmp, hx(192), tmp)
        P.v('v_lshl_add_u32', vT, c, 3, tmp)
        P.v('v_add_u32', vT, sWB, vT)
        P.v('v_add_u32', vT, hx(EXO), vT)
        allwo = [f"d:wo{k}" for k in range(18)]
        for ot in range(6):
            for s in range(3):
                for hh in range(2):
                    rows = [32 * s + 4 * hh, 32 * s + 4 * hh + 24 + 3]
                    tags = [f"d:wo{k}" for k in range(rows[0] * 192 // 1024, min(17, ((rows[1] + 1) * 192 - 1) // 1024) + 1)]
                    P.dsr('ds_read_b64_tr_b16', A(72 + (ot * 3 + s) * 4 + 2 * hh, 2), vT, (32 * s + 4 * hh) * 192 + 32 * ot, mrd=tags + ['m:ex'])
    else:
        P.v('v_lshl_add_u32', tmp, vG, 2, r)
        P.v('v_lshlrev_b32', vT, 4, tmp)
        P.v('v_lshrrev_b32', tmp, 1, c)
        P.v('v_lshl_add_u32', vT, tmp, 8, vT)
        P.v('v_and_b32', tmp, 1, c)
        P.v('v_lshl_add_u32', vT, tmp, 3, vT)
        P.v('v_add_u32', vT, sWB, vT)
        P.v('v_add_u32', vT, hx(EXO), vT)
    for ot in range(6):
        for it in range(6):
            D = xd(it, ot)
            for s in range(3):
                P.mfma(D, A((it * 3 + s) * 4, 4), A(72 + (ot * 3 + s) * 4, 4), D if s else 0)
    ts(P, 3, rd=xd(0, 0).regs(), grp='fold')
    ts(P, 4, rd=[r for it in range(6) for ot in range(6) for r in xd(it, ot).regs()], grp='fold')
    for ot in range(6):
        for it in range(6):
            D = xd(it, ot); B = rb(ot, it >> 1)
            P.cvt(B[2 * (it & 1)], D[0], D[1]); P.cvt(B[2 * (it & 1) + 1], D[2], D[3])
    aD = [V(248, 4) if ot % 2 == 0 else V(252, 4) for ot in range(6)]
    aV = [V(20 + 0) for _ in range(6)]
    aS = [V(29), V(30), V(31), V(21), V(20), V(26)]
    for ot in range(6):
        D = aD[ot]
        for sg in range(3):
            P.mfma(D, vOnes, rb(ot, sg), D if sg else 0)
        P.v('v_mov_b32', aS[ot], D[0])
    ts(P, 5, rd=[r for a in aS for r in a.regs()], grp='fold')
    UV = A(144, 48)
    for i in range(48):
        if i % 4: P.v('v_accvgpr_write_b32', UV[i], 0)
    sNeg96 = sTmp[7]; sI9216 = sTmp[12]
    P.s('s_mov_b32', sNeg96, hx(f2u(-1.0 / 96)))
    one = '1.0'
    if isM:
        for ot in range(6):
            for it in range(6):
                B = rb(ot, it >> 1)
                P.dsw('ds_write_b64', vW, B[2 * (it & 1):2 * (it & 1) + 2], woff(it, ot), mwr=['m:ex'])
        for it in range(6):
            for so in range(3):
                B = V(RB + (it * 3 + so) * 4, 4)
                for hh in range(2):
                    P.dsr('ds_read_b64_tr_b16', B[2 * hh:2 * hh + 2], vT, (6 * so + 3 * hh + (it >> 1)) * 1024 + (it & 1) * 512, mrd=['m:ex'])
        cs = tmp
        P.v('v_add_f32', cs, aS[0], aS[1]); P.v('v_add_f32', tmp2, aS[2], aS[3]); P.v('v_add_f32', tmp2, tmp2, aS[4])
        P.v('v_add_f32', cs, cs, tmp2); P.v('v_add_f32', cs, cs, aS[5])
        for sh in (8, 4, 2, 1):
            P.v('v_add_f32_dpp', cs, cs, cs, mod=f"row_ror:{sh} row_mask:0xf bank_mask:0xf")
        P.s('s_mov_b32', sI9216, hx(f2u(1.0 / 9216)))
        P.v('v_mul_f32', cs, sI9216, cs)
        for ot in range(6):
            P.v('v_fma_f32', aS[ot], aS[ot], sNeg96, cs)
            P.cvt(aS[ot], aS[ot], one)
            P.v('v_accvgpr_write_b32', UV[24 + 4 * ot], aS[ot])
        for it in range(6):
            D = aD[it]
            for so in range(3):
                P.mfma(D, vOnes, V(RB + (it * 3 + so) * 4, 4), D if so else 0)
            u = V(25) if it % 2 else V(27)
            P.v('v_mul_f32', u, sNeg96, D[0])
            P.cvt(u, one, u)
            P.v('v_cndmask_b32_e64', u, 0, u, sG0)
            P.v('v_accvgpr_write_b32', UV[4 * it], u)
        Uf = lambda it: UV[4 * it:4 * it + 4]
    else:
        for ot in range(6):
            P.v('v_mul_f32', aS[ot], sNeg96, aS[ot])
            P.cvt(aS[ot], aS[ot], vZero)
            P.v('v_accvgpr_write_b32', UV[24 + 4 * ot], aS[ot])
        u = V(25)
        P.v('v_mov_b32', u, hx(0x3f80))
        P.v('v_cndmask_b32_e64', u, 0, u, sG0)
        P.v('v_accvgpr_write_b32', UV[0], u)
        Uf = lambda it: UV[0:4]
    ts(P, 6, rd=UV.regs(), grp='fold')
    for ot in range(6):
        for it in range(6):
            D = xd(it, ot)
            P.mfma(D, Uf(it), UV[24 + 4 * ot:28 + 4 * ot], D)
            B = rb(ot, it >> 1)
            P.cvt(B[2 * (it & 1)], D[0], D[1]); P.cvt(B[2 * (it & 1) + 1], D[2], D[3])
            P.dsw('ds_write_b64', vW, B[2 * (it & 1):2 * (it & 1) + 2], woff(it, ot), mwr=['m:ex'])

def read_weights(P, mats):
    va = [V(212), V(213), V(214), V(215)]
    P.v('v_lshlrev_b32', va[0], 4, vL)
    P.v('v_add_u32', va[0], hx(EXO), va[0])
    for w in range(1, 4): P.v('v_add_u32', va[w], hx(WREG * w), va[0])
    for w, mat in ((0, 'M1'), (1, 'W1'), (2, 'M2'), (3, 'W2')):
        if mat not in mats: continue
        for j in range(6):
            for s in range(3):
                P.dsr('ds_read_b128', frag(mat, j, s), va[w], (3 * j + s) * 1024)

class TP: pass
def t_pools():
    T = TP()
    T.xf = Pool('v', 20, 12, 2)
    T.D = Pool('v', 44, 4, 12)
    T.qB = Pool('v', 92, 12, 1)
    T.pvA = Pool('v', 104, 24, 2)
    T.sgm = Pool('v', 152, 12, 2)
    T.pB = Pool('v', 176, 4, 2)
    T.x1f = Pool('v', 184, 12, 1)
    T.tmp = Pool('v', 196, 8, 2)
    T.g2 = Pool('v', 212, 8, 1)
    T.dm = [V(220), V(221), V(222)]
    return T

def stats(P, G, Msum, tmp):
    d, a = tmp[0], tmp[1]
    P.v('v_cndmask_b32_e64', d, G[0], G[1], sMt[1])
    P.v('v_cndmask_b32_e64', d, d, G[2], sMt[2])
    P.v('v_cndmask_b32_e64', d, d, G[3], sMt[3])
    P.v('v_mul_f32', a, s96, Msum)
    P.v('v_fma_f32', d, Neg(a), Msum, d)
    P.v('v_fma_f32', d, d, s96, vEPS)
    P.v('v_rsq_f32', d, d)
    return d

def t_tile(P, T, tau):
    base = 3072 * tau
    xf = T.xf.get()
    for s in range(3):
        P.dsr('ds_read_b128', xf[4 * s:4 * s + 4], vXA, base + 64 * s, mrd=xtags(tau) + [f"m:{tau}"])
    X = lambda s: xf[4 * s:4 * s + 4]
    sgm = T.sgm.get(); Sd, G, M = sgm[0:4], sgm[4:8], sgm[8:12]
    for s in range(3): P.mfma(G, X(s), X(s), G if s else 0)
    P.L[-1].wr.append(f"o:t{tau}"); P.L[-1].wr.append(f"o:t{tau}a")
    for s in range(3): P.mfma(M, vOnes, X(s), M if s else 0)
    qB = T.qB.get()
    for j in range(6):
        D = T.D.get()
        for s in range(3): P.mfma(D, frag('M1', j, s), X(s), D if s else 0)
        if j == 4: P.L[-1].wr.append(f"o:t{tau}b")
        o = 4 * (j >> 1) + 2 * (j & 1)
        P.cvt(qB[o], D[0], D[1]); P.cvt(qB[o + 1], D[2], D[3])
    for s in range(3): P.mfma(Sd, X(s), qB[4 * s:4 * s + 4], Sd if s else 0)
    pvA = T.pvA.get()
    for j in range(6):
        D = T.D.get()
        for s in range(3): P.mfma(D, X(s), frag('W1', j, s), D if s else 0)
        if j == 4: P.L[-1].wr.append(f"o:t{tau}c")
        P.cvt(pvA[4 * j], D[0], D[1]); P.cvt(pvA[4 * j + 1], D[2], D[3])
        P.dsr('ds_read_b64_tr_b16', pvA[4 * j + 2:4 * j + 4], vTR, base + 64 * (j >> 1) + 8 * (j & 1), mrd=xtags(tau) + [f"m:{tau}"])
    tmp = T.tmp.get()
    r = stats(P, G, M[0], tmp)
    m, rq, nm, l, l2 = tmp[2], tmp[3], tmp[4], tmp[5], tmp[6]
    q = lambda e: f"quad_perm:[{e},{e},{e},{e}] row_mask:0xf bank_mask:0xf"
    for e in range(4): P.v('v_mul_f32_dpp', Sd[e], r, Sd[e], mod=q(e))
    P.v('v_max3_f32', m, Sd[0], Sd[1], Sd[2]); P.v('v_max_f32', m, m, Sd[3])
    P.v('v_mul_f32', rq, sC, r)
    P.v('v_mul_f32_e64', nm, Neg(m), rq)
    for e in range(4): P.v('v_fma_f32', Sd[e], Sd[e], rq, nm)
    for e in range(4): P.v('v_exp_f32', Sd[e], Sd[e])
    P.v('v_add_f32', l, Sd[0], Sd[1]); P.v('v_add_f32', l2, Sd[2], Sd[3]); P.v('v_add_f32', l, l, l2)
    P.v('v_rcp_f32', l, l)
    for e in range(4): P.v('v_mul_f32_dpp', Sd[e], r, Sd[e], mod=q(e))
    for e in range(4): P.v('v_mul_f32', Sd[e], Sd[e], l)
    pB = T.pB.get()
    P.cvt(Sd[0], Sd[0], Sd[1]); P.cvt(Sd[2], Sd[2], Sd[3])
    P.v('v_cndmask_b32_e64', pB[0], 0, Sd[0], sValid)
    P.v('v_cndmask_b32_e64', pB[1], 0, Sd[2], sValid)
    x1f = T.x1f.get()
    for j in range(6):
        D = T.D.get()
        P.mfma(D, pvA[4 * j:4 * j + 4], pB, 0)
        o = 4 * (j >> 1) + 2 * (j & 1)
        P.cvt(x1f[o], D[0], D[1]); P.cvt(x1f[o + 1], D[2], D[3])
    for s in range(3):
        P.dsw('ds_write_b128', vXA, x1f[4 * s:4 * s + 4], base + 64 * s, mwr=[f"m:{tau}"])
    g2 = T.g2.get(); G2, M2 = g2[0:4], g2[4:8]
    for s in range(3): P.mfma(G2, x1f[4 * s:4 * s + 4], x1f[4 * s:4 * s + 4], G2 if s else 0)
    for s in range(3): P.mfma(M2, vOnes, x1f[4 * s:4 * s + 4], M2 if s else 0)
    r2 = stats(P, G2, M2[0], [M2[1], M2[2]])
    P.dsw('ds_write_b32', vST, r2, 4 * pos0(tau), mwr=['m:st'], mrd=['m:0'])


sM = S(82, 2)
def onehot_pair(P, dst, d, lo, val, dh):
    P.v('v_and_b32', val, 1, d)
    P.v('v_lshlrev_b32', val, 4, val)
    P.v('v_lshlrev_b32', val, val, vC3f80)
    P.v('v_ashrrev_i32', dh, 1, d)
    P.v('v_cmp_eq_i32_e64', sM, lo // 2, dh)
    P.v('v_cndmask_b32_e64', dst, 0, val, sM)

vC3f80 = V(223)
def t_consts(P, T):
    d = V(220); a = V(221); b = V(222)
    P.v('v_mov_b32', vC3f80, hx(0x3f80))
    P.v('v_lshlrev_b32', d, 2, vG)
    P.v('v_sub_u32', d, vN, d)
    for k in range(2):
        pB = V(176 + 4 * k, 4)
        for h in range(2):
            onehot_pair(P, pB[2 + h], d, 2 * h, a, b)

class SP: pass
def s_pools():
    Q = SP()
    Q.V2A = V(20, 48)
    Q.D = Pool('v', 68, 4, 8)
    Q.XQ = Pool('v', 100, 12, 2)
    Q.qB = Pool('v', 124, 12, 1)
    Q.sD = Pool('v', 136, 16, 2)
    Q.PB = Pool('v', 168, 8, 2)
    Q.RK = V(184, 16)
    Q.tmp = Pool('v', 200, 8, 2)
    Q.outp = Pool('v', 216, 12, 1)
    Q.XK = Pool('a', 144, 48, 2)
    Q.K0 = V(228); Q.Q3 = V(229); Q.TA = [V(230 + j) for j in range(4)]; Q.OA = [V(234 + j) for j in range(4)]
    Q.vRK = V(238); Q.vRQ = V(239); Q.vWB = V(240); Q.XL0 = V(241)
    Q.cL = V(244, 4); Q.cD0 = V(242); Q.cD1 = V(243)
    Q.Kw = Pool('v', 248, 1, 2); Q.XLw = Pool('v', 250, 1, 1); Q.Qw = Pool('v', 251, 1, 2); Q.Tw = Pool('v', 253, 1, 2)
    Q.t0 = V(4); Q.t1 = V(5); Q.t2 = V(6); Q.t3 = V(7); Q.t4 = V(8)
    return Q

def s_consts(P, Q):
    t0, t1, t2, t3, t4 = Q.t0, Q.t1, Q.t2, Q.t3, Q.t4
    P.v('v_mov_b32', Q.vWB, sWB)
    P.v('v_add_u32', Q.XL0, Q.vWB, vG16)
    P.v('v_lshrrev_b32', t0, 2, vN); P.v('v_and_b32', t1, 3, vN)
    P.v('v_mul_u32_u24', t2, hx(3072), t0)
    P.v('v_mul_u32_u24', t3, hx(192), t1)
    P.v('v_add3_u32', t2, t2, t3, Q.XL0)
    P.v('v_add_u32', Q.K0, hx(3072), t2)
    P.v('v_add_u32', t2, hx(27648), Q.K0)
    P.v('v_cmp_le_u32_e64', sM, 12, vN)
    P.v('v_cndmask_b32_e64', Q.Q3, t2, Q.XL0, sM)
    P.v('v_lshl_add_u32', t2, vG, 2, t0)
    P.v('v_add_u32', t3, -1, t2)
    P.v('v_ashrrev_i32', t4, 2, t3)
    P.v('v_mul_i32_i24', t4, hx(3072), t4)
    P.v('v_and_b32', t3, 3, t3)
    P.v('v_mul_u32_u24', t3, hx(192), t3)
    P.v('v_lshl_add_u32', t1, t1, 4, Q.vWB)
    P.v('v_add3_u32', t3, t3, t4, t1)
    P.v('v_add_u32', t3, hx(3072), t3)
    P.v('v_add_u32', t4, hx(192), t1)
    sS0 = S(40, 2); sS13 = S(42, 2)
    P.v('v_cmp_eq_u32_e64', sS0, 0, t2)
    P.v('v_cmp_le_u32_e64', sS13, 13, t2)
    for j in range(4):
        if j: P.v('v_add_u32', t3, hx(9216), t3)
        if j < 3:
            P.v('v_cndmask_b32_e64', Q.TA[j], t3, t4, sS0)
        else:
            P.v('v_cndmask_b32_e64', Q.TA[j], t3, t1, sS13)
            P.v('v_cndmask_b32_e64', Q.TA[j], Q.TA[j], t4, sS0)
    for j in range(4):
        P.v('v_add_u32', t0, 12 * j, vN)
        P.v('v_mul_u32_u24', t2, 37, t0)
        P.v('v_lshrrev_b32', t2, 8, t2)
        P.v('v_mul_u32_u24', t2, sK41664, t2)
        P.v('v_mul_u32_u24', t0, hx(192), t0)
        P.v('v_add3_u32', t0, t0, t2, vG16)
        P.v('v_cmp_gt_u32_e64', sM, 12 if j < 3 else 13, vN)
        P.v('v_mov_b32', t2, hx(0x7f000000))
        P.v('v_cndmask_b32_e64', Q.OA[j], t2, t0, sM)
    P.v('v_add_u32', Q.vRK, hx(384), Q.XL0)
    P.v('v_lshl_add_u32', t0, vN, 2, Q.vWB)
    P.v('v_add_u32', Q.vRQ, hx(384), t0)
    P.v('v_mov_b32', t0, hx(0xff800000))
    P.v('v_cndmask_b32_e64', Q.cL[0], t0, 0, sG0)
    for e in (1, 2, 3): P.v('v_mov_b32', Q.cL[e], 0)
    P.v('v_lshlrev_b32', t0, 2, vG)
    P.v('v_sub_u32', t0, vN, t0)
    P.v('v_add_u32', t0, 1, t0)
    P.v('v_cmp_eq_u32_e64', sM, 0, t0)
    P.v('v_cndmask_b32_e64', t1, 0, 1.0, sM)
    P.v('v_cndmask_b32_e64', Q.cD0, t1, 0, sG0)
    P.v('v_cmp_eq_u32_e64', sM, 1, t0)
    P.v('v_cndmask_b32_e64', Q.cD1, 0, 1.0, sM)
    P.v('v_mov_b32', vC3f80, hx(0x3f80)) if False else None
    P.v('v_mov_b32', t4, hx(0x3f80))
    for k in range(2):
        dst = V(168 + 8 * k + 7)
        P.v('v_and_b32', t1, 1, t0)
        P.v('v_lshlrev_b32', t1, 4, t1)
        P.v('v_lshlrev_b32', t1, t1, t4)
        P.v('v_ashrrev_i32', t2, 1, t0)
        P.v('v_cmp_eq_i32_e64', sM, 1, t2)
        P.v('v_cndmask_b32_e64', dst, 0, t1, sM)
    for w in range(4):
        P.s('s_add_u32', sSo[w], sWin, hx(TPL * w))

def v2l(P, Q):
    t0, t1 = Q.t2, Q.t3
    XL = Q.XQ.get()
    P.v('v_and_b32', t0, 3, vN)
    P.v('v_xor_b32', t1, vG, t0)
    P.v('v_lshlrev_b32', t1, 4, t1)
    P.v('v_mul_u32_u24', t0, hx(768), t0)
    P.v('v_add3_u32', t0, t0, t1, Q.vWB)
    for s in range(3):
        P.dsr('ds_read_b128', XL[4 * s:4 * s + 4], t0, 64 * s, mrd=['m:0'])
    ob = Q.outp.get()
    for j in range(6):
        D = Q.D.get()
        for s in range(3): P.mfma(D, frag('W2', j, s), XL[4 * s:4 * s + 4], D if s else 0)
        o = 4 * (j >> 1) + 2 * (j & 1)
        P.cvt(ob[o], D[0], D[1]); P.cvt(ob[o + 1], D[2], D[3])
    for s in range(3):
        P.dsw('ds_write_b128', t0, ob[4 * s:4 * s + 4], 192 + 64 * s, mwr=['m:v2l'], mrd=['m:0'])

def s_window(P, Q, w):
    XK = Q.XK.get()
    if w:
        Kw = Q.Kw.get(); P.v('v_xor_b32', Kw, 16 * w, Q.K0)
        XLw = Q.XLw.get(); P.v('v_xor_b32', XLw, 16 * w, Q.XL0)
    else:
        Kw = Q.K0; XLw = Q.XL0
    xk = lambda kt, s: XK[12 * kt + 4 * s:12 * kt + 4 * s + 4]
    for kt in range(3):
        for s in range(3):
            P.dsr('ds_read_b128', xk(kt, s), Kw, 768 * w + 12288 * kt + 64 * s, mrd=[f"m:{4*kt+1+i}" for i in range(4)])
    for s in range(3):
        P.dsr('ds_read_b128', xk(3, s), XLw, 768 * w + 64 * s, mrd=['m:0'])
    RK = Q.RK
    for kt in range(3):
        P.dsr('ds_read_b128', RK[4 * kt:4 * kt + 4], Q.vRK, 768 * w + 64 * kt, mrd=['m:st'])
    P.dsr('ds_read_b32', RK[12], Q.vWB, 768 * w + 384 + 192, mrd=['m:st'])
    V2A = Q.V2A
    for kt in range(3):
        for j in range(6):
            D = Q.D.get()
            for s in range(3): P.mfma(D, xk(kt, s), frag('W2', j, s), D if s else 0)
            o = 8 * j + 4 * (kt >> 1) + 2 * (kt & 1)
            P.cvt(V2A[o], D[0], D[1]); P.cvt(V2A[o + 1], D[2], D[3])
    for jq in range(4):
        XQ = Q.XQ.get()
        slots = sorted(set((((min(12 * jq + n, 48)) >> 2) + 1) % 13 for n in range(16)))
        mr = [f"m:{x}" for x in slots]
        if jq < 3:
            qa, qoff = Kw, 9216 * jq
        else:
            qoff = 0
            if w:
                qa = Q.Qw.get(); P.v('v_xor_b32', qa, 16 * w, Q.Q3)
            else: qa = Q.Q3
        for s in range(3):
            P.dsr('ds_read_b128', XQ[4 * s:4 * s + 4], qa, 768 * w + qoff + 64 * s, mrd=mr)
        tmp = Q.tmp.get()
        rq, m, y, nm, l, l2, l3 = tmp[0], tmp[1], tmp[2], tmp[3], tmp[4], tmp[5], tmp[6]
        P.dsr('ds_read_b32', rq, Q.vRQ, 768 * w + 48 * jq, mrd=['m:st'])
        qB = Q.qB.get()
        for j in range(6):
            D = Q.D.get()
            for s in range(3): P.mfma(D, frag('M2', j, s), XQ[4 * s:4 * s + 4], D if s else 0)
            o = 4 * (j >> 1) + 2 * (j & 1)
            P.cvt(qB[o], D[0], D[1]); P.cvt(qB[o + 1], D[2], D[3])
        SD = Q.sD.get()
        for kt in range(4):
            D = SD[4 * kt:4 * kt + 4]
            for s in range(3):
                P.mfma(D, xk(kt, s), qB[4 * s:4 * s + 4], D if s else (Q.cL if kt == 3 else 0))
        if w:
            ta = Q.Tw.get(); P.v('v_xor_b32', ta, 16 * w, Q.TA[jq])
        else: ta = Q.TA[jq]
        for j in range(6):
            P.dsr('ds_read_b64_tr_b16', V2A[8 * j + 6:8 * j + 8], ta, 768 * w + 64 * (j >> 1) + 8 * (j & 1), mrd=mr + ['m:v2l', 'm:0'])
        vals = [SD[i] for i in range(13)]
        rks = [RK[i] for i in range(13)]
        P.v('v_mul_f32', rq, sC, rq)
        for i in range(13): P.v('v_mul_f32', vals[i], vals[i], rks[i])
        P.v('v_max3_f32', m, vals[0], vals[1], vals[2])
        P.v('v_max3_f32', y, vals[3], vals[4], vals[5])
        P.v('v_max3_f32', nm, vals[6], vals[7], vals[8])
        P.v('v_max3_f32', l, vals[9], vals[10], vals[11])
        P.v('v_max3_f32', m, m, y, nm)
        P.v('v_max3_f32', m, m, l, vals[12])
        for op in ('v_permlane32_swap_b32', 'v_permlane16_swap_b32'):
            P.v('v_mov_b32', y, m)
            P.v(op, m, y)
            P.v('v_max_f32', m, m, y)
        P.v('v_mul_f32_e64', nm, Neg(m), rq)
        for i in range(13): P.v('v_fma_f32', vals[i], vals[i], rq, nm)
        for i in range(13): P.v('v_exp_f32', vals[i], vals[i])
        P.v('v_add_f32', l, vals[0], vals[1]); P.v('v_add_f32', l2, vals[2], vals[3]); P.v('v_add_f32', l3, vals[4], vals[5])
        P.v('v_add_f32', m, vals[6], vals[7]); P.v('v_add_f32', y, vals[8], vals[9]); P.v('v_add_f32', nm, vals[10], vals[11])
        P.v('v_add_f32', l, l, l2); P.v('v_add_f32', l3, l3, m); P.v('v_add_f32', y, y, nm)
        P.v('v_add_f32', l, l, l3); P.v('v_add_f32', y, y, vals[12]); P.v('v_add_f32', l, l, y)
        for op in ('v_permlane32_swap_b32', 'v_permlane16_swap_b32'):
            P.v('v_mov_b32', y, l)
            P.v(op, l, y)
            P.v('v_add_f32', l, l, y)
        P.v('v_rcp_f32', l, l)
        for i in range(13): P.v('v_mul_f32', vals[i], vals[i], rks[i])
        for i in range(12): P.v('v_mul_f32', vals[i], vals[i], l)
        P.v('v_fma_f32', vals[12], vals[12], l, Q.cD0)
        PB = Q.PB.get()
        for i in range(6): P.cvt(PB[i], vals[2 * i], vals[2 * i + 1])
        P.cvt(PB[6], vals[12], Q.cD1)
        ob = Q.outp.get()
        for j in range(6):
            D = Q.D.get()
            P.mfma(D, V2A[8 * j:8 * j + 4], PB[0:4], 0)
            P.mfma(D, V2A[8 * j + 4:8 * j + 8], PB[4:8], D)
            o = 4 * (j >> 1) + 2 * (j & 1)
            P.cvt(ob[o], D[0], D[1]); P.cvt(ob[o + 1], D[2], D[3])
        for s in range(3):
            P.bstore('buffer_store_dwordx4', ob[4 * s:4 * s + 4], Q.OA[jq], sO, sSo[w], 64 * s).wr.append(f"o:w{w}")
    ts(P, 5 + w, rd=[f"o:w{w}"])

def dbg_srd(P):
    P.s('s_mov_b32', sDbg[0], S(96)) if False else None

def dump_regs(P, regs4, slot_bytes):
    va = V(0)
    P.s('s_lshl_b32', sT0, sWG, 2); P.s('s_add_u32', sT0, sT0, sWave)
    P.s('s_mul_i32', sT0, sT0, slot_bytes)
    P.v('v_lshlrev_b32', va, 4, vL)
    for k, r in enumerate(regs4):
        P.s('s_add_u32', sTmp[0], sT0, hx(1024 * k))
        P.bstore('buffer_store_dwordx4', r, va, sDbg, sTmp[0], 0)
        P.raw('s_waitcnt vmcnt(0)', 'raw')

def dump_lds(P, nbytes):
    va = V(0); vb = V(20); d = V(24, 4)
    P.s('s_lshl_b32', sT0, sWG, 2); P.s('s_add_u32', sT0, sT0, sWave)
    P.s('s_mul_i32', sT0, sT0, nbytes)
    P.v('v_lshlrev_b32', va, 4, vL)
    P.v('v_add_u32', vb, sWB, va)
    for k in range(nbytes // 1024):
        P.raw(f"ds_read_b128 {d}, {vb} offset:{1024*k}", 'raw')
        P.raw('s_waitcnt lgkmcnt(0)', 'raw')
        P.s('s_add_u32', sTmp[0], sT0, hx(1024 * k))
        P.raw(f"buffer_store_dwordx4 {d}, {va}, {sDbg}, {sTmp[0]} offen", 'raw')
        P.raw('s_waitcnt vmcnt(0)', 'raw')

def finalize(L, vm0=(), lg0=(), hist=()):
    L = strip_nops(L)
    L, vm, lg = insert_waits(L, vm0, lg0)
    L = insert_nops(L, hist)
    return L, vm, lg

def main():
    out = []
    P = Prog(); setup(P)
    P.s('s_and_b32', sTmp[0], sWave, 1)
    P.s('s_cmp_eq_u32', sTmp[0], 1)
    P.raw("s_cbranch_scc1 L_FOLDW", 'br', rd=['scc'])
    pre, _, _ = finalize(P.L)
    out += pre
    ends = []
    for isM in (True, False):
        P = Prog()
        fold_loads(P, isM)
        fold_compute(P, isM)
        L = schedule(P.L, name='foldM' if isM else 'foldW')
        P2 = Prog(); wait(P2, lg=0); ts(P2, 1); ts(P2, 7, grp='fold')
        L += P2.L
        if not isM: out.append(Ins("L_FOLDW:", 'label'))
        L, vm, lg = finalize(L, hist=pre[-4:])
        out += L
        ends.append(vm)
        if isM: out.append(Ins("s_branch L_JOIN", 'br'))
    out.append(Ins("L_JOIN:", 'label'))
    vm0 = ends[0] if len(ends[0]) >= len(ends[1]) else ends[1]
    print("pending at join:", ends, file=sys.stderr)
    P = Prog()
    P.raw('s_nop 7', 'raw'); P.raw('s_barrier', 'bar')
    ts(P, 2); ts(P, 8, grp='fold')
    early = (DEBUG != 'fold')
    L, vm0, lg0 = finalize(P.L, vm0=vm0)
    out += L
    P = Prog()
    read_weights(P, ('M1', 'W1') if early else ('M1', 'W1', 'M2', 'W2'))
    M0.cur = None
    for m in range(XEXCH):
        XQ.next(P, [V(29), V(30), V(31)], cost=48, lat=WLAT, rel=100 + 300 * m, prio=5000)
    L = schedule(P.L, name='exch')
    P = Prog()
    if not early:
        wait(P, lg=0)
        P.raw('s_barrier', 'bar')
    ts(P, 3); ts(P, 1, grp='T')
    L += P.L
    L, vm0, lg0 = finalize(L, vm0=vm0, lg0=lg0)
    out += L
    if DEBUG == 'fold':
        P = Prog()
        regs = [frag(m, j, s) for m in ('M1', 'W1', 'M2', 'W2') for j in range(6) for s in range(3)]
        dump_regs(P, regs, 72 * 1024)
        out += insert_nops(P.L)
    else:
        P = Prog()
        T = t_pools()
        t_consts(P, T)
        vw = V(0)
        P.v('v_lshlrev_b32', vw, 4, vL)
        P.v('v_add_u32', vw, hx(EXO + 2 * WREG), vw)
        allf = []
        for w, mat in ((0, 'M2'), (1, 'W2')):
            for j in range(6):
                for sx in range(3):
                    i = P.dsr('ds_read_b128', frag(mat, j, sx), vw, (3 * j + sx) * 1024 + WREG * w)
                    allf += frag(mat, j, sx).regs()
        M0.cur = None
        for tau in range(13):
            t_tile(P, T, tau)
            if tau in TSTAMP: ts(P, TSTAMP[tau], rd=[f"m:{tau}"], grp='T')
            if tau == BAR2_TILE:
                i = P.raw('s_barrier', 'bar', rd=allf + [f"o:t{tau}"] + [r for m in ('M1', 'W1') for j in range(6) for sx in range(3) for r in frag(m, j, sx).regs()], wr=['o:bar2'])
                i.prio = 3000
            sub = 0
            while XQ.n < 39 and XQ.n <= 3 * tau + 2 + XDIST and sub < XMAXT:
                if XQ.n >= 3 * NPRE and tau < BAR2_TILE: break
                aft = [f"o:t{tau}" + 'abc'[min(sub, 2)]] + (['o:bar2'] if XQ.n >= 3 * NPRE else [])
                XQ.next(P, T.dm, cost=32, lat=3000, after=aft, prio=3000); sub += 1
        assert XQ.n == 39, XQ.n
        ts(P, 4, rd=['m:12'])
        if DEBUG != 'x1':
            Q = s_pools()
            s_consts(P, Q)
            v2l(P, Q)
            for w in range(4): s_window(P, Q, w)
        L = schedule(P.L, name='main', window=WINDOW)
        L, vm, lg = finalize(L, vm0=vm0, lg0=lg0)
        if TIMEG == 'ev':
            ev0 = int([a for a in sys.argv if a.startswith('--ev=')][0].split('=')[1])
            L2 = []; ev = 0; k = 1
            for ins in L:
                isev = ('vmcnt' in ins.txt and ins.kind == 'wait') or ins.kind == 'bar'
                if isev and ev0 <= ev < ev0 + 4:
                    L2.append(Ins(f"s_memtime {TSR[k]}", 'salu')); k += 1
                    L2.append(ins)
                    L2.append(Ins(f"s_memtime {TSR[k]}", 'salu')); k += 1
                else: L2.append(ins)
                if isev: ev += 1
            L = L2
        out += L
        if DEBUG == 'x1':
            P = Prog(); P.raw('s_waitcnt vmcnt(0) lgkmcnt(0)', 'raw')
            dump_lds(P, WREG)
            out += insert_nops(P.L)
    if TIME:
        P = Prog()
        P.raw('s_waitcnt lgkmcnt(0)', 'raw')
        P.s('s_lshl_b32', sT0, sWG, 2); P.s('s_add_u32', sT0, sT0, sWave)
        P.s('s_lshl_b32', sT0, sT0, 6)
        P.v('v_mov_b32', V(0), 0)
        for k in range(9):
            P.v('v_mov_b32', V(20 + k), TSR[k][0])
            P.raw(f"buffer_store_dword v{20+k}, v0, {sDbg}, {sT0} offen offset:{4*k}", 'raw')
        out += insert_nops(P.L)
    if DBGCLK:
        P = Prog()
        P.raw('s_waitcnt vmcnt(0) lgkmcnt(0)', 'raw')
        P.raw("s_memtime s[84:85]", 'raw'); P.raw("s_memrealtime s[86:87]", 'raw')
        P.raw('s_waitcnt lgkmcnt(0)', 'raw')
        P.raw("s_sub_u32 s84, s84, s100", 'raw'); P.raw("s_sub_u32 s86, s86, s98", 'raw')
        P.raw("s_and_b32 s88, s2, 63", 'raw'); P.raw("s_cmp_eq_u32 s88, 0", 'raw'); P.raw("s_cbranch_scc0 L_END", 'raw')
        P.raw("s_cmp_eq_u32 s20, 0", 'raw'); P.raw("s_cbranch_scc0 L_END", 'raw')
        P.raw("s_lshr_b32 s88, s2, 6", 'raw'); P.raw("s_lshl_b32 s88, s88, 4", 'raw')
        P.raw("v_mov_b32 v20, s84", 'raw'); P.raw("v_mov_b32 v21, s86", 'raw'); P.raw("v_mov_b32 v22, s98", 'raw'); P.raw("v_mov_b32 v23, s100", 'raw')
        P.raw("v_mov_b32 v24, s88", 'raw')
        P.raw("s_mov_b64 exec, 1", 'raw')
        P.raw("global_store_dwordx4 v24, v[20:23], s[96:97]", 'raw')
        out += P.L
    out.append(Ins("L_END:", 'label'))
    out.append(Ins("s_endpgm", 'raw'))
    hdr = open('orig.s').read()
    head = hdr[:hdr.index('; @launch')]
    txt = head + f"; @launch grid=(256,1,1) block=(256,1,1) lds={LDS_TOTAL}\n"
    txt += '.amdgcn_target "amdgcn-amd-amdhsa--gfx950"\n.text\n.globl standalone__video_video_swin__vision_kernel\n.p2align 8\n'
    txt += '.type standalone__video_video_swin__vision_kernel,@function\nstandalone__video_video_swin__vision_kernel:\n'
    for ins in out:
        txt += (ins.txt if ins.kind == 'label' else '  ' + ins.txt) + '\n'
    txt += """.section .rodata,"a"
.p2align 6
.amdhsa_kernel standalone__video_video_swin__vision_kernel
  .amdhsa_next_free_vgpr 512
  .amdhsa_next_free_sgpr 102
  .amdhsa_accum_offset 256
  .amdhsa_group_segment_fixed_size 0
  .amdhsa_kernarg_size 64
  .amdhsa_user_sgpr_count 2
  .amdhsa_user_sgpr_kernarg_segment_ptr 1
  .amdhsa_system_sgpr_workgroup_id_x 1
.end_amdhsa_kernel
"""
    o = [a for a in sys.argv[1:] if not a.startswith('--')]
    open(o[0] if o else 'out.s', 'w').write(txt)
    print("instructions:", len(out), file=sys.stderr)

WINDOW = 700
TSTAMP = {0: 2, 1: 3, 3: 4, 5: 5, 7: 6, 9: 7, 12: 8}
BAR2_TILE = 1
if __name__ == '__main__': main()
```

```python
import sys, struct, math
from core import *

DEBUG = None
for a in sys.argv[1:]:
    if a.startswith('--debug='): DEBUG = a.split('=')[1]

def f2u(x): return struct.unpack('<I', struct.pack('<f', x))[0]
def hx(x): return f"0x{x & 0xffffffff:x}"

TPL = 9633792
ROWB = 43008
WREG = 39936
EXO = 21504
SPARE = 4 * WREG
LDS_TOTAL = 163840
NPRE = 7

def pos0(tau): return 48 if tau == 0 else 4 * (tau - 1)
def goff(pos): return pos * 192 + (pos // 7) * 41664

sKA = S(0, 2); sWG = S(2)
sX = S(4, 4); sO = S(8, 4); sW = S(12, 4); sWo = S(16, 4)
sWave = S(20); sWin = S(21); sWB = S(22); sT0 = S(23)
sIT = [S(24 + i) for i in range(6)]
sMt = [None, S(30, 2), S(32, 2), S(34, 2)]
sValid = S(36, 2)
sG0 = S(38, 2)
sCross = {}
_i = 40
for k in range(3):
    for th in (1, 2, 3):
        sCross[(k, th)] = S(_i, 2); _i += 2
s96 = S(58); sC = S(59); sK41664 = S(60)
sSo = [S(61 + i) for i in range(4)]
sTmp = [S(65 + i) for i in range(16)]
sPtr = S(84, 12)
sDbg = S(96, 4)
sDbg2 = S(76, 4)
CODEPF = '--nocodepf' not in sys.argv
WPF = '--nowpf' not in sys.argv

VM1 = 224
def frag(mat, j, s):
    k = 3 * j + s
    if mat == 'M2': return A(4 * k, 4)
    if mat == 'W2': return A(72 + 4 * k, 4)
    if mat == 'W1': return A(144 + 4 * k, 4)
    if mat == 'M1': return A(216 + 4 * k, 4) if k < 10 else V(VM1 + 4 * (k - 10), 4)

vL = V(1); vN = V(2); vG = V(3)
vXA = V(4); vTR = V(5); vST = V(6)
vCst = [V(7), V(8), V(9)]; vCstX = [V(10), V(11), V(12)]
vEPS = V(13)
vOnes = V(16, 4)
vG16 = V(14)
vZero = V(15)

def setup(P):
    P.raw(f"s_cmp_ge_u32 s2, 256", 'salu', rd=['s2'], wr=['scc'])
    P.raw("s_cbranch_scc1 L_END", 'br', rd=['scc'])
    ts(P, 0)
    if DBGCLK:
        P.raw("s_memtime s[100:101]", 'raw'); P.raw("s_memrealtime s[98:99]", 'raw')
        P.raw("s_load_dwordx2 s[96:97], s[0:1], 48", 'raw')
    if CODEPF:
        P.raw("s_getpc_b64 s[4:5]", 'salu', wr=['s4', 's5'])
        P.label("L_PC")
        P.s('s_lshr_b32', S(6), sWG, 3); P.s('s_and_b32', S(6), S(6), 3); P.s('s_lshl_b32', S(6), S(6), 14)
        P.v('v_lshlrev_b32', V(2), 6, V(0))
        P.v('v_add_u32', V(2), S(6), V(2))
        P.raw("s_mov_b32 s7, L_END-L_PC", 'salu', wr=['s7'])
        P.v('v_min_u32', V(2), S(7), V(2))
        P.v('v_mov_b32', V(3), S(5))
        P.raw("v_add_co_u32 v2, vcc, s4, v2", 'valu', rd=['s4', 'v2'], wr=['v2', 'vcc'])
        P.raw("v_addc_co_u32 v3, vcc, 0, v3, vcc", 'valu', rd=['v3', 'vcc'], wr=['v3', 'vcc'])
        P.raw("global_load_dword v255, v[2:3], off", 'raw', rd=['v2', 'v3'])
    P.raw(f"s_load_dwordx8 s[84:91], s[0:1], 0", 'raw', wr=S(84, 8).regs())
    P.raw(f"s_load_dwordx4 s[92:95], s[0:1], 32", 'raw', wr=S(92, 4).regs())
    if DEBUG or TIME:
        P.raw(f"s_load_dwordx2 s[96:97], s[0:1], 56", 'raw', wr=S(96, 2).regs())
    P.v('v_and_b32', vL, 63, V(0))
    P.v('v_lshrrev_b32', V(20), 6, V(0))
    P.v('v_and_b32', vN, 15, V(0))
    P.v('v_readfirstlane_b32', sWave, V(20))
    P.v('v_lshrrev_b32', vG, 4, vL)
    P.v('v_lshlrev_b32', vG16, 4, vG)
    P.v('v_mov_b32', vZero, 0)
    P.s('s_lshl_b32', sT0, sWG, 2)
    P.s('s_add_u32', sT0, sT0, sWave)
    P.s('s_lshr_b32', sTmp[0], sT0, 5)
    P.s('s_and_b32', sTmp[1], sT0, 31)
    P.s('s_mul_i32', sTmp[0], sTmp[0], 301056)
    P.s('s_mul_i32', sTmp[1], sTmp[1], 1344)
    P.s('s_add_u32', sWin, sTmp[0], sTmp[1])
    P.s('s_mul_i32', sWB, sWave, WREG)
    for i in range(6): P.s('s_mov_b32', sIT[i], 9216 * i)
    P.s('s_mov_b32', s96, hx(f2u(1.0 / 96)))
    P.s('s_mov_b32', sC, hx(f2u(96 ** -0.5 * math.log2(math.e))))
    P.s('s_mov_b32', sK41664, 41664)
    dma_consts(P)
    lane_consts(P)
    P.s('s_lshr_b32', sTmp[4], sWG, 3); P.s('s_and_b32', sTmp[4], sTmp[4], 15); P.s('s_lshl_b32', sTmp[4], sTmp[4], 12)
    P.v('v_lshlrev_b32', V(20), 6, vL)
    P.v('v_mul_u32_u24', V(21), hx(576), vN)
    P.v('v_add_u32', V(21), V(21), vG16)
    P.v('v_lshlrev_b32', V(22), 4, vL)
    P.raw("s_waitcnt lgkmcnt(0)", 'raw')
    x, wt, wot, wsp, wos, out = [sPtr[2 * i:2 * i + 2] for i in range(6)]
    P.s('s_mov_b32', sX[0], x[0]); P.s('s_mov_b32', sX[1], x[1]); P.s('s_mov_b32', sX[2], 38535168); P.s('s_mov_b32', sX[3], '0x20000')
    P.s('s_mov_b32', sO[0], out[0]); P.s('s_mov_b32', sO[1], out[1]); P.s('s_mov_b32', sO[2], 38535168); P.s('s_mov_b32', sO[3], '0x20000')
    P.s('s_cmp_lt_u32', sWave, 2)
    P.s('s_cselect_b32', sW[0], wt[0], wsp[0]); P.s('s_cselect_b32', sW[1], wt[1], wsp[1])
    P.s('s_mov_b32', sW[2], 55296); P.s('s_mov_b32', sW[3], '0x20000')
    P.s('s_cselect_b32', sWo[0], wot[0], wos[0]); P.s('s_cselect_b32', sWo[1], wot[1], wos[1])
    P.s('s_mov_b32', sWo[2], 18432); P.s('s_mov_b32', sWo[3], '0x20000')
    if DEBUG or TIME:
        P.s('s_mov_b32', sDbg[2], hx(268435456)); P.s('s_mov_b32', sDbg[3], '0x20000')
    if WPF:
        P.s('s_and_b32', sTmp[5], sWave, 1)
        P.s('s_cmp_eq_u32', sTmp[5], 0)
        P.s('s_cselect_b32', sDbg2[0], sW[0], sWo[0]); P.s('s_cselect_b32', sDbg2[1], sW[1], sWo[1])
        P.s('s_cselect_b32', sDbg2[2], sW[2], sWo[2]); P.s('s_mov_b32', sDbg2[3], '0x20000')
        P.bload('buffer_load_dword', V(254), V(20), sDbg2, sTmp[4])
    ts(P, 1, grp='fold')

def dma_consts(P):
    u, rho, q, t, p, c, tmp = [V(20 + i) for i in range(7)]
    P.s('s_mov_b32', sTmp[2], 43691)
    P.s('s_mov_b32', sTmp[3], TPL)
    for k in range(3):
        P.v('v_add_u32', u, 64 * k if 64 * k <= 64 else hx(64 * k), vL)
        P.v('v_mul_u32_u24', rho, sTmp[2], u)
        P.v('v_lshrrev_b32', rho, 19, rho)
        P.v('v_mul_u32_u24', q, 12, rho)
        P.v('v_sub_u32', q, u, q)
        P.v('v_lshrrev_b32', t, 2, rho)
        P.v('v_and_b32', p, 3, rho)
        P.v('v_xor_b32', c, q, t)
        P.v('v_lshlrev_b32', c, 4, c)
        P.v('v_mul_lo_u32', tmp, t, sTmp[3])
        P.v('v_add_u32', c, c, tmp)
        P.v('v_mul_u32_u24', tmp, hx(192), p)
        P.v('v_add_u32', c, c, tmp)
        if k: P.v('v_subrev_u32', vCst[k], hx(1024 * k), c)
        else: P.v('v_mov_b32', vCst[k], c)
        P.v('v_add_u32', vCstX[k], hx(41664), vCst[k])
        for th in (1, 2, 3):
            P.v('v_cmp_le_u32_e64', sCross[(k, th)], th, p)

class M0: cur = None
XMOD = '' if '--noxnt' in sys.argv else ' nt'
SMOD = ' nt' if '--snt' in sys.argv else ''
def dma_piece(P, tau, k, tmp, cost=None, lat=None, rel=0, after=(), prio=0):
    p0 = pos0(tau)
    th = None
    if tau != 0:
        for p in range(1, 4):
            if (p0 + p) // 7 != p0 // 7: th = p; break
    so = sTmp[8 + (tau % 3)]
    if k == 0: P.s('s_add_u32', so, sWin, hx(goff(p0))).rel = rel
    if M0.cur != ('x', tau):
        i = P.s('s_add_u32', 'm0', sWB, hx(3072 * tau)); i.rel = rel; i.rd += list(after); M0.cur = ('x', tau)
    if th is None: vo = vCst[k]
    else:
        vo = tmp[k]
        P.v('v_cndmask_b32_e64', vo, vCst[k], vCstX[k], sCross[(k, th)]).rel = rel
    i = P.dma(vo, sX, so, 1024 * k, f"d:{tau}.{k}", mod=XMOD)
    i.rd.append('o:ord'); i.wr.append('o:ord'); i.rd += list(after)
    if cost: i.cost = cost
    i.lat = lat; i.rel = rel; i.prio = prio
    return i
def xtags(tau): return [f"d:{tau}.{k}" for k in range(3)]

def dma_slot(P, tau, tmp):
    p0 = pos0(tau)
    th = None
    if tau != 0:
        for p in range(1, 4):
            if (p0 + p) // 7 != p0 // 7: th = p; break
    so = sTmp[8 + (tau % 4)]
    P.s('s_add_u32', so, sWin, hx(goff(p0)))
    P.s('s_add_u32', 'm0', sWB, hx(3072 * tau))
    for k in range(3):
        if th is None: vo = vCst[k]
        else:
            vo = tmp[k]
            P.v('v_cndmask_b32_e64', vo, vCst[k], vCstX[k], sCross[(k, th)])
        P.dma(vo, sX, so, 1024 * k, f"d:{tau}").rd.append('o:ord')

sTS = [S(66 + 2 * i, 2) for i in range(0)]
TSREG = 100
def ts(P, k, rd=(), grp='main'):
    if not TIME: return
    if k != 0 and grp != TIMEG: return
    r = TSR[k]
    i = P.add(Ins(f"s_memtime {r}", 'salu', rd=list(rd), wr=r.regs())); i.prio = 9000
TIME = any(a.startswith('--time') for a in sys.argv)
DBGCLK = '--dbgclk' in sys.argv
TIMEG = 'fold' if '--time=fold' in sys.argv else ('T' if '--time=T' in sys.argv else ('ev' if '--time=ev' in sys.argv else 'main'))
TSR = {0: S(100, 2), 1: S(84, 2), 2: S(86, 2), 3: S(88, 2), 4: S(90, 2), 5: S(92, 2), 6: S(94, 2), 7: S(78, 2), 8: S(80, 2)}
def lane_consts(P):
    t, p, r, c, tmp, tmp2 = [V(20 + i) for i in range(6)]
    P.v('v_and_b32', t, 3, vN)
    P.v('v_lshrrev_b32', p, 2, vN)
    P.v('v_lshl_add_u32', tmp, t, 2, p)
    P.v('v_mul_u32_u24', tmp, hx(192), tmp)
    P.v('v_xor_b32', tmp2, vG, t)
    P.v('v_lshl_add_u32', tmp, tmp2, 4, tmp)
    P.v('v_add_u32', vXA, sWB, tmp)
    P.v('v_lshrrev_b32', r, 2, vN)
    P.v('v_and_b32', c, 3, vN)
    P.v('v_lshl_add_u32', tmp, r, 2, vG)
    P.v('v_mul_u32_u24', tmp, hx(192), tmp)
    P.v('v_xor_b32', tmp2, c, r)
    P.v('v_lshl_add_u32', tmp, tmp2, 4, tmp)
    P.v('v_add_u32', vTR, sWB, tmp)
    for e in (1, 2, 3): P.v('v_cmp_eq_u32_e64', sMt[e], e, t)
    P.v('v_cmp_eq_u32_e64', sValid, vG, p)
    P.v('v_cmp_eq_u32_e64', sG0, 0, vG)
    P.v('v_mul_u32_u24', tmp, hx(768), t)
    P.v('v_lshl_add_u32', tmp, p, 2, tmp)
    P.v('v_add_u32', tmp, sWB, tmp)
    P.v('v_add_u32', tmp, hx(384), tmp)
    P.v('v_lshlrev_b32', tmp2, 2, vL)
    P.v('v_add_u32', tmp2, hx(SPARE), tmp2)
    P.v('v_cndmask_b32_e64', vST, tmp2, tmp, sValid)
    P.v('v_mov_b32', vEPS, hx(f2u(1e-5)))
    for i in range(4): P.v('v_mov_b32', vOnes[i], hx(0x3f803f80))

XD = 32
RB = 176
def xd(it, ot): return V(XD + (it * 6 + ot) * 4, 4)
def rb(ot, sg): return V(RB + (ot * 3 + sg) * 4, 4)

WCOST = 130; WLAT = 1400
XEVERY = 5
for _a in sys.argv:
    if _a.startswith('--xevery='): XEVERY = int(_a.split('=')[1])
NXF = 21
XDIST = 10; XMAXT = 4; BAR0 = 4300; XEVERY = 1000; XREL0 = 6300; XSTEP = 360; XBURST = 10; XFOLD = 5; XEXCH = 3; XT = 2.5
for _a in sys.argv:
    if _a.startswith('--xrel='): XREL0, XSTEP, XBURST, XFOLD, XEXCH = map(int, _a.split('=')[1].split(','))
    if _a.startswith('--xevery='): XEVERY = int(_a.split('=')[1])
    if _a.startswith('--xt='): XT = float(_a.split('=')[1])
    if _a.startswith('--xdist='): XDIST, XMAXT = map(int, _a.split('=')[1].split(','))
    if _a.startswith('--bar0='): BAR0 = int(_a.split('=')[1])
def fold_loads(P, isM):
    vA = V(21); vB = V(22)
    aoff = 0 if isM else 384
    seq = []
    def wl(dst, so, off):
        def f():
            i = P.bload('buffer_load_dwordx4', dst, vA, sW, so, off)
            i.wr.append('o:ord'); i.rd.append('o:ord'); i.cost = WCOST; i.lat = WLAT; i.prio = 5000
        seq.append(f)
    if isM:
        for s in range(3): wl(A(72 + s * 4, 4), sIT[0], 192 + 64 * s)
        for it in range(6):
            for s in range(3): wl(A((it * 3 + s) * 4, 4), sIT[it], aoff + 64 * s)
        for ot in range(1, 6):
            for s in range(3): wl(A(72 + (ot * 3 + s) * 4, 4), sIT[ot], 192 + 64 * s)
    else:
        def wo(k):
            def f():
                g4 = k // 4
                if k % 4 == 0:
                    P.s('s_mov_b32', sTmp[5 + (g4 & 1)], hx(4096 * g4))
                if M0.cur != ('wo', g4):
                    P.s('s_add_u32', 'm0', sTmp[4], hx(4096 * g4)); M0.cur = ('wo', g4)
                i = P.dma(vB, sWo, sTmp[5 + (g4 & 1)], 1024 * (k % 4), f"d:wo{k}")
                i.wr.append('o:ord'); i.rd.append('o:ord'); i.cost = WCOST - 40; i.lat = WLAT; i.prio = 5000
            seq.append(f)
        P.s('s_add_u32', sTmp[4], sWB, hx(EXO))
        for k in range(18): wo(k)
        for it in range(6):
            for s in range(3): wl(A((it * 3 + s) * 4, 4), sIT[it], aoff + 64 * s)
    M0.cur = None
    XQ.n = 0
    tmps = [V(29), V(30), V(31)]
    for i, f in enumerate(seq):
        f()
        if (i + 1) % XEVERY == 0:
            XQ.next(P, tmps, cost=WCOST - 40, lat=WLAT, prio=5000)
    ts(P, 2, rd=['o:ord'], grp='fold')
    if BAR0:
        i = P.raw('s_barrier', 'bar', rd=['o:ord'], wr=['o:ord']); i.prio = 5000
        if not isM: i.rel = BAR0
    for m in range(XBURST - XQ.n):
        XQ.next(P, tmps, cost=64, lat=WLAT, prio=5000)
    for m in range(XFOLD):
        XQ.next(P, tmps, cost=48, lat=WLAT, rel=XREL0 + XSTEP * m, prio=5000)

class XQ:
    n = 0
    @staticmethod
    def next(P, tmps, **kw):
        k = XQ.n; XQ.n += 1
        return dma_piece(P, k // 3, k % 3, tmps, **kw)

def fold_compute(P, isM):
    vW = V(22); vT = V(23); tmp = V(24); tmp2 = V(25); tmp3 = V(26)
    P.v('v_bfe_u32', tmp, vN, 2, 1)
    P.v('v_mul_u32_u24', vW, hx(3072), tmp)
    P.v('v_lshrrev_b32', tmp, 3, vN)
    P.v('v_lshlrev_b32', tmp, 6, tmp)
    P.v('v_add_u32', vW, vW, tmp)
    P.v('v_and_b32', tmp, 3, vN)
    P.v('v_lshl_add_u32', vW, tmp, 4, vW)
    P.v('v_lshrrev_b32', tmp, 1, vG)
    P.v('v_lshl_add_u32', vW, tmp, 8, vW)
    P.v('v_and_b32', tmp, 1, vG)
    P.v('v_lshl_add_u32', vW, tmp, 3, vW)
    P.v('v_add_u32', vW, sWB, vW)
    P.v('v_add_u32', vW, hx(EXO), vW)
    def woff(it, ot): return 6 * (ot >> 1) * 1024 + (ot & 1) * 128 + (it >> 1) * 1024 + (it & 1) * 512
    r = V(27); c = V(28)
    P.v('v_lshrrev_b32', r, 2, vN); P.v('v_and_b32', c, 3, vN)
    if not isM:
        P.v('v_lshl_add_u32', tmp, vG, 3, r)
        P.v('v_mul_u32_u24', tmp, hx(192), tmp)
        P.v('v_lshl_add_u32', vT, c, 3, tmp)
        P.v('v_add_u32', vT, sWB, vT)
        P.v('v_add_u32', vT, hx(EXO), vT)
        allwo = [f"d:wo{k}" for k in range(18)]
        for ot in range(6):
            for s in range(3):
                for hh in range(2):
                    rows = [32 * s + 4 * hh, 32 * s + 4 * hh + 24 + 3]
                    tags = [f"d:wo{k}" for k in range(rows[0] * 192 // 1024, min(17, ((rows[1] + 1) * 192 - 1) // 1024) + 1)]
                    P.dsr('ds_read_b64_tr_b16', A(72 + (ot * 3 + s) * 4 + 2 * hh, 2), vT, (32 * s + 4 * hh) * 192 + 32 * ot, mrd=tags + ['m:ex'])
    else:
        P.v('v_lshl_add_u32', tmp, vG, 2, r)
        P.v('v_lshlrev_b32', vT, 4, tmp)
        P.v('v_lshrrev_b32', tmp, 1, c)
        P.v('v_lshl_add_u32', vT, tmp, 8, vT)
        P.v('v_and_b32', tmp, 1, c)
        P.v('v_lshl_add_u32', vT, tmp, 3, vT)
        P.v('v_add_u32', vT, sWB, vT)
        P.v('v_add_u32', vT, hx(EXO), vT)
    for ot in range(6):
        for it in range(6):
            D = xd(it, ot)
            for s in range(3):
                P.mfma(D, A((it * 3 + s) * 4, 4), A(72 + (ot * 3 + s) * 4, 4), D if s else 0)
    ts(P, 3, rd=xd(0, 0).regs(), grp='fold')
    ts(P, 4, rd=[r for it in range(6) for ot in range(6) for r in xd(it, ot).regs()], grp='fold')
    for ot in range(6):
        for it in range(6):
            D = xd(it, ot); B = rb(ot, it >> 1)
            P.cvt(B[2 * (it & 1)], D[0], D[1]); P.cvt(B[2 * (it & 1) + 1], D[2], D[3])
    aD = [V(248, 4) if ot % 2 == 0 else V(252, 4) for ot in range(6)]
    aV = [V(20 + 0) for _ in range(6)]
    aS = [V(29), V(30), V(31), V(21), V(20), V(26)]
    for ot in range(6):
        D = aD[ot]
        for sg in range(3):
            P.mfma(D, vOnes, rb(ot, sg), D if sg else 0)
        P.v('v_mov_b32', aS[ot], D[0])
    ts(P, 5, rd=[r for a in aS for r in a.regs()], grp='fold')
    UV = A(144, 48)
    for i in range(48):
        if i % 4: P.v('v_accvgpr_write_b32', UV[i], 0)
    sNeg96 = sTmp[7]; sI9216 = sTmp[12]
    P.s('s_mov_b32', sNeg96, hx(f2u(-1.0 / 96)))
    one = '1.0'
    if isM:
        for ot in range(6):
            for it in range(6):
                B = rb(ot, it >> 1)
                P.dsw('ds_write_b64', vW, B[2 * (it & 1):2 * (it & 1) + 2], woff(it, ot), mwr=['m:ex'])
        for it in range(6):
            for so in range(3):
                B = V(RB + (it * 3 + so) * 4, 4)
                for hh in range(2):
                    P.dsr('ds_read_b64_tr_b16', B[2 * hh:2 * hh + 2], vT, (6 * so + 3 * hh + (it >> 1)) * 1024 + (it & 1) * 512, mrd=['m:ex'])
        cs = tmp
        P.v('v_add_f32', cs, aS[0], aS[1]); P.v('v_add_f32', tmp2, aS[2], aS[3]); P.v('v_add_f32', tmp2, tmp2, aS[4])
        P.v('v_add_f32', cs, cs, tmp2); P.v('v_add_f32', cs, cs, aS[5])
        for sh in (8, 4, 2, 1):
            P.v('v_add_f32_dpp', cs, cs, cs, mod=f"row_ror:{sh} row_mask:0xf bank_mask:0xf")
        P.s('s_mov_b32', sI9216, hx(f2u(1.0 / 9216)))
        P.v('v_mul_f32', cs, sI9216, cs)
        for ot in range(6):
            P.v('v_fma_f32', aS[ot], aS[ot], sNeg96, cs)
            P.cvt(aS[ot], aS[ot], one)
            P.v('v_accvgpr_write_b32', UV[24 + 4 * ot], aS[ot])
        for it in range(6):
            D = aD[it]
            for so in range(3):
                P.mfma(D, vOnes, V(RB + (it * 3 + so) * 4, 4), D if so else 0)
            u = V(25) if it % 2 else V(27)
            P.v('v_mul_f32', u, sNeg96, D[0])
            P.cvt(u, one, u)
            P.v('v_cndmask_b32_e64', u, 0, u, sG0)
            P.v('v_accvgpr_write_b32', UV[4 * it], u)
        Uf = lambda it: UV[4 * it:4 * it + 4]
    else:
        for ot in range(6):
            P.v('v_mul_f32', aS[ot], sNeg96, aS[ot])
            P.cvt(aS[ot], aS[ot], vZero)
            P.v('v_accvgpr_write_b32', UV[24 + 4 * ot], aS[ot])
        u = V(25)
        P.v('v_mov_b32', u, hx(0x3f80))
        P.v('v_cndmask_b32_e64', u, 0, u, sG0)
        P.v('v_accvgpr_write_b32', UV[0], u)
        Uf = lambda it: UV[0:4]
    ts(P, 6, rd=UV.regs(), grp='fold')
    for ot in range(6):
        for it in range(6):
            D = xd(it, ot)
            P.mfma(D, Uf(it), UV[24 + 4 * ot:28 + 4 * ot], D)
            B = rb(ot, it >> 1)
            P.cvt(B[2 * (it & 1)], D[0], D[1]); P.cvt(B[2 * (it & 1) + 1], D[2], D[3])
            P.dsw('ds_write_b64', vW, B[2 * (it & 1):2 * (it & 1) + 2], woff(it, ot), mwr=['m:ex'])

def read_weights(P, mats):
    va = [V(212), V(213), V(214), V(215)]
    P.v('v_lshlrev_b32', va[0], 4, vL)
    P.v('v_add_u32', va[0], hx(EXO), va[0])
    for w in range(1, 4): P.v('v_add_u32', va[w], hx(WREG * w), va[0])
    for w, mat in ((0, 'M1'), (1, 'W1'), (2, 'M2'), (3, 'W2')):
        if mat not in mats: continue
        for j in range(6):
            for s in range(3):
                P.dsr('ds_read_b128', frag(mat, j, s), va[w], (3 * j + s) * 1024)

class TP: pass
def t_pools():
    T = TP()
    T.xf = Pool('v', 20, 12, 2)
    T.D = Pool('v', 44, 4, 12)
    T.qB = Pool('v', 92, 12, 1)
    T.pvA = Pool('v', 104, 24, 2)
    T.sgm = Pool('v', 152, 12, 2)
    T.pB = Pool('v', 176, 4, 2)
    T.x1f = Pool('v', 184, 12, 1)
    T.tmp = Pool('v', 196, 8, 2)
    T.g2 = Pool('v', 212, 8, 1)
    T.dm = [V(220), V(221), V(222)]
    return T

def stats(P, G, Msum, tmp):
    d, a = tmp[0], tmp[1]
    P.v('v_cndmask_b32_e64', d, G[0], G[1], sMt[1])
    P.v('v_cndmask_b32_e64', d, d, G[2], sMt[2])
    P.v('v_cndmask_b32_e64', d, d, G[3], sMt[3])
    P.v('v_mul_f32', a, s96, Msum)
    P.v('v_fma_f32', d, Neg(a), Msum, d)
    P.v('v_fma_f32', d, d, s96, vEPS)
    P.v('v_rsq_f32', d, d)
    return d

def t_tile(P, T, tau):
    base = 3072 * tau
    xf = T.xf.get()
    for s in range(3):
        P.dsr('ds_read_b128', xf[4 * s:4 * s + 4], vXA, base + 64 * s, mrd=xtags(tau) + [f"m:{tau}"])
    X = lambda s: xf[4 * s:4 * s + 4]
    sgm = T.sgm.get(); Sd, G, M = sgm[0:4], sgm[4:8], sgm[8:12]
    for s in range(3): P.mfma(G, X(s), X(s), G if s else 0)
    P.L[-1].wr.append(f"o:t{tau}"); P.L[-1].wr.append(f"o:t{tau}a")
    for s in range(3): P.mfma(M, vOnes, X(s), M if s else 0)
    qB = T.qB.get()
    for j in range(6):
        D = T.D.get()
        for s in range(3): P.mfma(D, frag('M1', j, s), X(s), D if s else 0)
        if j == 4: P.L[-1].wr.append(f"o:t{tau}b")
        o = 4 * (j >> 1) + 2 * (j & 1)
        P.cvt(qB[o], D[0], D[1]); P.cvt(qB[o + 1], D[2], D[3])
    for s in range(3): P.mfma(Sd, X(s), qB[4 * s:4 * s + 4], Sd if s else 0)
    pvA = T.pvA.get()
    for j in range(6):
        D = T.D.get()
        for s in range(3): P.mfma(D, X(s), frag('W1', j, s), D if s else 0)
        if j == 4: P.L[-1].wr.append(f"o:t{tau}c")
        P.cvt(pvA[4 * j], D[0], D[1]); P.cvt(pvA[4 * j + 1], D[2], D[3])
        P.dsr('ds_read_b64_tr_b16', pvA[4 * j + 2:4 * j + 4], vTR, base + 64 * (j >> 1) + 8 * (j & 1), mrd=xtags(tau) + [f"m:{tau}"])
    tmp = T.tmp.get()
    r = stats(P, G, M[0], tmp)
    m, rq, nm, l, l2 = tmp[2], tmp[3], tmp[4], tmp[5], tmp[6]
    q = lambda e: f"quad_perm:[{e},{e},{e},{e}] row_mask:0xf bank_mask:0xf"
    for e in range(4): P.v('v_mul_f32_dpp', Sd[e], r, Sd[e], mod=q(e))
    P.v('v_max3_f32', m, Sd[0], Sd[1], Sd[2]); P.v('v_max_f32', m, m, Sd[3])
    P.v('v_mul_f32', rq, sC, r)
    P.v('v_mul_f32_e64', nm, Neg(m), rq)
    for e in range(4): P.v('v_fma_f32', Sd[e], Sd[e], rq, nm)
    for e in range(4): P.v('v_exp_f32', Sd[e], Sd[e])
    P.v('v_add_f32', l, Sd[0], Sd[1]); P.v('v_add_f32', l2, Sd[2], Sd[3]); P.v('v_add_f32', l, l, l2)
    P.v('v_rcp_f32', l, l)
    for e in range(4): P.v('v_mul_f32_dpp', Sd[e], r, Sd[e], mod=q(e))
    for e in range(4): P.v('v_mul_f32', Sd[e], Sd[e], l)
    pB = T.pB.get()
    P.cvt(Sd[0], Sd[0], Sd[1]); P.cvt(Sd[2], Sd[2], Sd[3])
    P.v('v_cndmask_b32_e64', pB[0], 0, Sd[0], sValid)
    P.v('v_cndmask_b32_e64', pB[1], 0, Sd[2], sValid)
    x1f = T.x1f.get()
    for j in range(6):
        D = T.D.get()
        P.mfma(D, pvA[4 * j:4 * j + 4], pB, 0)
        o = 4 * (j >> 1) + 2 * (j & 1)
        P.cvt(x1f[o], D[0], D[1]); P.cvt(x1f[o + 1], D[2], D[3])
    for s in range(3):
        P.dsw('ds_write_b128', vXA, x1f[4 * s:4 * s + 4], base + 64 * s, mwr=[f"m:{tau}"])
    g2 = T.g2.get(); G2, M2 = g2[0:4], g2[4:8]
    for s in range(3): P.mfma(G2, x1f[4 * s:4 * s + 4], x1f[4 * s:4 * s + 4], G2 if s else 0)
    for s in range(3): P.mfma(M2, vOnes, x1f[4 * s:4 * s + 4], M2 if s else 0)
    r2 = stats(P, G2, M2[0], [M2[1], M2[2]])
    P.dsw('ds_write_b32', vST, r2, 4 * pos0(tau), mwr=['m:st'], mrd=['m:0'])


sM = S(82, 2)
def onehot_pair(P, dst, d, lo, val, dh):
    P.v('v_and_b32', val, 1, d)
    P.v('v_lshlrev_b32', val, 4, val)
    P.v('v_lshlrev_b32', val, val, vC3f80)
    P.v('v_ashrrev_i32', dh, 1, d)
    P.v('v_cmp_eq_i32_e64', sM, lo // 2, dh)
    P.v('v_cndmask_b32_e64', dst, 0, val, sM)

vC3f80 = V(223)
def t_consts(P, T):
    d = V(220); a = V(221); b = V(222)
    P.v('v_mov_b32', vC3f80, hx(0x3f80))
    P.v('v_lshlrev_b32', d, 2, vG)
    P.v('v_sub_u32', d, vN, d)
    for k in range(2):
        pB = V(176 + 4 * k, 4)
        for h in range(2):
            onehot_pair(P, pB[2 + h], d, 2 * h, a, b)

class SP: pass
def s_pools():
    Q = SP()
    Q.V2A = V(20, 48)
    Q.D = Pool('v', 68, 4, 8)
    Q.XQ = Pool('v', 100, 12, 2)
    Q.qB = Pool('v', 124, 12, 1)
    Q.sD = Pool('v', 136, 16, 2)
    Q.PB = Pool('v', 168, 8, 2)
    Q.RK = V(184, 16)
    Q.tmp = Pool('v', 200, 8, 2)
    Q.outp = Pool('v', 216, 12, 1)
    Q.XK = Pool('a', 144, 48, 2)
    Q.K0 = V(228); Q.Q3 = V(229); Q.TA = [V(230 + j) for j in range(4)]; Q.OA = [V(234 + j) for j in range(4)]
    Q.vRK = V(238); Q.vRQ = V(239); Q.vWB = V(240); Q.XL0 = V(241)
    Q.cL = V(244, 4); Q.cD0 = V(242); Q.cD1 = V(243)
    Q.Kw = Pool('v', 248, 1, 2); Q.XLw = Pool('v', 250, 1, 1); Q.Qw = Pool('v', 251, 1, 2); Q.Tw = Pool('v', 253, 1, 2)
    Q.t0 = V(4); Q.t1 = V(5); Q.t2 = V(6); Q.t3 = V(7); Q.t4 = V(8)
    return Q

def s_consts(P, Q):
    t0, t1, t2, t3, t4 = Q.t0, Q.t1, Q.t2, Q.t3, Q.t4
    P.v('v_mov_b32', Q.vWB, sWB)
    P.v('v_add_u32', Q.XL0, Q.vWB, vG16)
    P.v('v_lshrrev_b32', t0, 2, vN); P.v('v_and_b32', t1, 3, vN)
    P.v('v_mul_u32_u24', t2, hx(3072), t0)
    P.v('v_mul_u32_u24', t3, hx(192), t1)
    P.v('v_add3_u32', t2, t2, t3, Q.XL0)
    P.v('v_add_u32', Q.K0, hx(3072), t2)
    P.v('v_add_u32', t2, hx(27648), Q.K0)
    P.v('v_cmp_le_u32_e64', sM, 12, vN)
    P.v('v_cndmask_b32_e64', Q.Q3, t2, Q.XL0, sM)
    P.v('v_lshl_add_u32', t2, vG, 2, t0)
    P.v('v_add_u32', t3, -1, t2)
    P.v('v_ashrrev_i32', t4, 2, t3)
    P.v('v_mul_i32_i24', t4, hx(3072), t4)
    P.v('v_and_b32', t3, 3, t3)
    P.v('v_mul_u32_u24', t3, hx(192), t3)
    P.v('v_lshl_add_u32', t1, t1, 4, Q.vWB)
    P.v('v_add3_u32', t3, t3, t4, t1)
    P.v('v_add_u32', t3, hx(3072), t3)
    P.v('v_add_u32', t4, hx(192), t1)
    sS0 = S(40, 2); sS13 = S(42, 2)
    P.v('v_cmp_eq_u32_e64', sS0, 0, t2)
    P.v('v_cmp_le_u32_e64', sS13, 13, t2)
    for j in range(4):
        if j: P.v('v_add_u32', t3, hx(9216), t3)
        if j < 3:
            P.v('v_cndmask_b32_e64', Q.TA[j], t3, t4, sS0)
        else:
            P.v('v_cndmask_b32_e64', Q.TA[j], t3, t1, sS13)
            P.v('v_cndmask_b32_e64', Q.TA[j], Q.TA[j], t4, sS0)
    for j in range(4):
        P.v('v_add_u32', t0, 12 * j, vN)
        P.v('v_mul_u32_u24', t2, 37, t0)
        P.v('v_lshrrev_b32', t2, 8, t2)
        P.v('v_mul_u32_u24', t2, sK41664, t2)
        P.v('v_mul_u32_u24', t0, hx(192), t0)
        P.v('v_add3_u32', t0, t0, t2, vG16)
        P.v('v_cmp_gt_u32_e64', sM, 12 if j < 3 else 13, vN)
        P.v('v_mov_b32', t2, hx(0x7f000000))
        P.v('v_cndmask_b32_e64', Q.OA[j], t2, t0, sM)
    P.v('v_add_u32', Q.vRK, hx(384), Q.XL0)
    P.v('v_lshl_add_u32', t0, vN, 2, Q.vWB)
    P.v('v_add_u32', Q.vRQ, hx(384), t0)
    P.v('v_mov_b32', t0, hx(0xff800000))
    P.v('v_cndmask_b32_e64', Q.cL[0], t0, 0, sG0)
    for e in (1, 2, 3): P.v('v_mov_b32', Q.cL[e], 0)
    P.v('v_lshlrev_b32', t0, 2, vG)
    P.v('v_sub_u32', t0, vN, t0)
    P.v('v_add_u32', t0, 1, t0)
    P.v('v_cmp_eq_u32_e64', sM, 0, t0)
    P.v('v_cndmask_b32_e64', t1, 0, 1.0, sM)
    P.v('v_cndmask_b32_e64', Q.cD0, t1, 0, sG0)
    P.v('v_cmp_eq_u32_e64', sM, 1, t0)
    P.v('v_cndmask_b32_e64', Q.cD1, 0, 1.0, sM)
    P.v('v_mov_b32', vC3f80, hx(0x3f80)) if False else None
    P.v('v_mov_b32', t4, hx(0x3f80))
    for k in range(2):
        dst = V(168 + 8 * k + 7)
        P.v('v_and_b32', t1, 1, t0)
        P.v('v_lshlrev_b32', t1, 4, t1)
        P.v('v_lshlrev_b32', t1, t1, t4)
        P.v('v_ashrrev_i32', t2, 1, t0)
        P.v('v_cmp_eq_i32_e64', sM, 1, t2)
        P.v('v_cndmask_b32_e64', dst, 0, t1, sM)
    for w in range(4):
        P.s('s_add_u32', sSo[w], sWin, hx(TPL * w))

def v2l(P, Q):
    t0, t1 = Q.t2, Q.t3
    XL = Q.XQ.get()
    P.v('v_and_b32', t0, 3, vN)
    P.v('v_xor_b32', t1, vG, t0)
    P.v('v_lshlrev_b32', t1, 4, t1)
    P.v('v_mul_u32_u24', t0, hx(768), t0)
    P.v('v_add3_u32', t0, t0, t1, Q.vWB)
    for s in range(3):
        P.dsr('ds_read_b128', XL[4 * s:4 * s + 4], t0, 64 * s, mrd=['m:0'])
    ob = Q.outp.get()
    for j in range(6):
        D = Q.D.get()
        for s in range(3): P.mfma(D, frag('W2', j, s), XL[4 * s:4 * s + 4], D if s else 0)
        o = 4 * (j >> 1) + 2 * (j & 1)
        P.cvt(ob[o], D[0], D[1]); P.cvt(ob[o + 1], D[2], D[3])
    for s in range(3):
        P.dsw('ds_write_b128', t0, ob[4 * s:4 * s + 4], 192 + 64 * s, mwr=['m:v2l'], mrd=['m:0'])

def s_window(P, Q, w):
    XK = Q.XK.get()
    if w:
        Kw = Q.Kw.get(); P.v('v_xor_b32', Kw, 16 * w, Q.K0)
        XLw = Q.XLw.get(); P.v('v_xor_b32', XLw, 16 * w, Q.XL0)
    else:
        Kw = Q.K0; XLw = Q.XL0
    xk = lambda kt, s: XK[12 * kt + 4 * s:12 * kt + 4 * s + 4]
    for kt in range(3):
        for s in range(3):
            P.dsr('ds_read_b128', xk(kt, s), Kw, 768 * w + 12288 * kt + 64 * s, mrd=[f"m:{4*kt+1+i}" for i in range(4)])
    for s in range(3):
        P.dsr('ds_read_b128', xk(3, s), XLw, 768 * w + 64 * s, mrd=['m:0'])
    RK = Q.RK
    for kt in range(3):
        P.dsr('ds_read_b128', RK[4 * kt:4 * kt + 4], Q.vRK, 768 * w + 64 * kt, mrd=['m:st'])
    P.dsr('ds_read_b32', RK[12], Q.vWB, 768 * w + 384 + 192, mrd=['m:st'])
    V2A = Q.V2A
    for kt in range(3):
        for j in range(6):
            D = Q.D.get()
            for s in range(3): P.mfma(D, xk(kt, s), frag('W2', j, s), D if s else 0)
            o = 8 * j + 4 * (kt >> 1) + 2 * (kt & 1)
            P.cvt(V2A[o], D[0], D[1]); P.cvt(V2A[o + 1], D[2], D[3])
    for jq in range(4):
        XQ = Q.XQ.get()
        slots = sorted(set((((min(12 * jq + n, 48)) >> 2) + 1) % 13 for n in range(16)))
        mr = [f"m:{x}" for x in slots]
        if jq < 3:
            qa, qoff = Kw, 9216 * jq
        else:
            qoff = 0
            if w:
                qa = Q.Qw.get(); P.v('v_xor_b32', qa, 16 * w, Q.Q3)
            else: qa = Q.Q3
        for s in range(3):
            P.dsr('ds_read_b128', XQ[4 * s:4 * s + 4], qa, 768 * w + qoff + 64 * s, mrd=mr)
        tmp = Q.tmp.get()
        rq, m, y, nm, l, l2, l3 = tmp[0], tmp[1], tmp[2], tmp[3], tmp[4], tmp[5], tmp[6]
        P.dsr('ds_read_b32', rq, Q.vRQ, 768 * w + 48 * jq, mrd=['m:st'])
        qB = Q.qB.get()
        for j in range(6):
            D = Q.D.get()
            for s in range(3): P.mfma(D, frag('M2', j, s), XQ[4 * s:4 * s + 4], D if s else 0)
            o = 4 * (j >> 1) + 2 * (j & 1)
            P.cvt(qB[o], D[0], D[1]); P.cvt(qB[o + 1], D[2], D[3])
        SD = Q.sD.get()
        for kt in range(4):
            D = SD[4 * kt:4 * kt + 4]
            for s in range(3):
                P.mfma(D, xk(kt, s), qB[4 * s:4 * s + 4], D if s else (Q.cL if kt == 3 else 0))
        if w:
            ta = Q.Tw.get(); P.v('v_xor_b32', ta, 16 * w, Q.TA[jq])
        else: ta = Q.TA[jq]
        for j in range(6):
            P.dsr('ds_read_b64_tr_b16', V2A[8 * j + 6:8 * j + 8], ta, 768 * w + 64 * (j >> 1) + 8 * (j & 1), mrd=mr + ['m:v2l', 'm:0'])
        vals = [SD[i] for i in range(13)]
        rks = [RK[i] for i in range(13)]
        P.v('v_mul_f32', rq, sC, rq)
        for i in range(13): P.v('v_mul_f32', vals[i], vals[i], rks[i])
        P.v('v_max3_f32', m, vals[0], vals[1], vals[2])
        P.v('v_max3_f32', y, vals[3], vals[4], vals[5])
        P.v('v_max3_f32', nm, vals[6], vals[7], vals[8])
        P.v('v_max3_f32', l, vals[9], vals[10], vals[11])
        P.v('v_max3_f32', m, m, y, nm)
        P.v('v_max3_f32', m, m, l, vals[12])
        for op in ('v_permlane32_swap_b32', 'v_permlane16_swap_b32'):
            P.v('v_mov_b32', y, m)
            P.v(op, m, y)
            P.v('v_max_f32', m, m, y)
        P.v('v_mul_f32_e64', nm, Neg(m), rq)
        for i in range(13): P.v('v_fma_f32', vals[i], vals[i], rq, nm)
        for i in range(13): P.v('v_exp_f32', vals[i], vals[i])
        P.v('v_add_f32', l, vals[0], vals[1]); P.v('v_add_f32', l2, vals[2], vals[3]); P.v('v_add_f32', l3, vals[4], vals[5])
        P.v('v_add_f32', m, vals[6], vals[7]); P.v('v_add_f32', y, vals[8], vals[9]); P.v('v_add_f32', nm, vals[10], vals[11])
        P.v('v_add_f32', l, l, l2); P.v('v_add_f32', l3, l3, m); P.v('v_add_f32', y, y, nm)
        P.v('v_add_f32', l, l, l3); P.v('v_add_f32', y, y, vals[12]); P.v('v_add_f32', l, l, y)
        for op in ('v_permlane32_swap_b32', 'v_permlane16_swap_b32'):
            P.v('v_mov_b32', y, l)
            P.v(op, l, y)
            P.v('v_add_f32', l, l, y)
        P.v('v_rcp_f32', l, l)
        for i in range(13): P.v('v_mul_f32', vals[i], vals[i], rks[i])
        for i in range(12): P.v('v_mul_f32', vals[i], vals[i], l)
        P.v('v_fma_f32', vals[12], vals[12], l, Q.cD0)
        PB = Q.PB.get()
        for i in range(6): P.cvt(PB[i], vals[2 * i], vals[2 * i + 1])
        P.cvt(PB[6], vals[12], Q.cD1)
        ob = Q.outp.get()
        for j in range(6):
            D = Q.D.get()
            P.mfma(D, V2A[8 * j:8 * j + 4], PB[0:4], 0)
            P.mfma(D, V2A[8 * j + 4:8 * j + 8], PB[4:8], D)
            o = 4 * (j >> 1) + 2 * (j & 1)
            P.cvt(ob[o], D[0], D[1]); P.cvt(ob[o + 1], D[2], D[3])
        for s in range(3):
            P.bstore('buffer_store_dwordx4', ob[4 * s:4 * s + 4], Q.OA[jq], sO, sSo[w], 64 * s, mod=SMOD).wr.append(f"o:w{w}")
    ts(P, 5 + w, rd=[f"o:w{w}"])

def dbg_srd(P):
    P.s('s_mov_b32', sDbg[0], S(96)) if False else None

def dump_regs(P, regs4, slot_bytes):
    va = V(0)
    P.s('s_lshl_b32', sT0, sWG, 2); P.s('s_add_u32', sT0, sT0, sWave)
    P.s('s_mul_i32', sT0, sT0, slot_bytes)
    P.v('v_lshlrev_b32', va, 4, vL)
    for k, r in enumerate(regs4):
        P.s('s_add_u32', sTmp[0], sT0, hx(1024 * k))
        P.bstore('buffer_store_dwordx4', r, va, sDbg, sTmp[0], 0)
        P.raw('s_waitcnt vmcnt(0)', 'raw')

def dump_lds(P, nbytes):
    va = V(0); vb = V(20); d = V(24, 4)
    P.s('s_lshl_b32', sT0, sWG, 2); P.s('s_add_u32', sT0, sT0, sWave)
    P.s('s_mul_i32', sT0, sT0, nbytes)
    P.v('v_lshlrev_b32', va, 4, vL)
    P.v('v_add_u32', vb, sWB, va)
    for k in range(nbytes // 1024):
        P.raw(f"ds_read_b128 {d}, {vb} offset:{1024*k}", 'raw')
        P.raw('s_waitcnt lgkmcnt(0)', 'raw')
        P.s('s_add_u32', sTmp[0], sT0, hx(1024 * k))
        P.raw(f"buffer_store_dwordx4 {d}, {va}, {sDbg}, {sTmp[0]} offen", 'raw')
        P.raw('s_waitcnt vmcnt(0)', 'raw')

def finalize(L, vm0=(), lg0=(), hist=()):
    L = strip_nops(L)
    L, vm, lg = insert_waits(L, vm0, lg0)
    L = insert_nops(L, hist)
    return L, vm, lg

def main():
    out = []
    P = Prog(); setup(P)
    P.s('s_and_b32', sTmp[0], sWave, 1)
    P.s('s_cmp_eq_u32', sTmp[0], 1)
    P.raw("s_cbranch_scc1 L_FOLDW", 'br', rd=['scc'])
    pre, _, _ = finalize(P.L)
    out += pre
    ends = []
    for isM in (True, False):
        P = Prog()
        fold_loads(P, isM)
        fold_compute(P, isM)
        L = schedule(P.L, name='foldM' if isM else 'foldW')
        P2 = Prog(); wait(P2, lg=0); ts(P2, 1); ts(P2, 7, grp='fold')
        L += P2.L
        if not isM: out.append(Ins("L_FOLDW:", 'label'))
        L, vm, lg = finalize(L, hist=pre[-4:])
        out += L
        ends.append(vm)
        if isM: out.append(Ins("s_branch L_JOIN", 'br'))
    out.append(Ins("L_JOIN:", 'label'))
    vm0 = ends[0] if len(ends[0]) >= len(ends[1]) else ends[1]
    print("pending at join:", ends, file=sys.stderr)
    P = Prog()
    P.raw('s_nop 7', 'raw'); P.raw('s_barrier', 'bar')
    ts(P, 2); ts(P, 8, grp='fold')
    early = (DEBUG != 'fold')
    L, vm0, lg0 = finalize(P.L, vm0=vm0)
    out += L
    P = Prog()
    read_weights(P, ('M1', 'W1') if early else ('M1', 'W1', 'M2', 'W2'))
    M0.cur = None
    for m in range(XEXCH):
        XQ.next(P, [V(29), V(30), V(31)], cost=48, lat=WLAT, rel=100 + 300 * m, prio=5000)
    L = schedule(P.L, name='exch')
    P = Prog()
    if not early:
        wait(P, lg=0)
        P.raw('s_barrier', 'bar')
    ts(P, 3); ts(P, 1, grp='T')
    L += P.L
    L, vm0, lg0 = finalize(L, vm0=vm0, lg0=lg0)
    out += L
    if DEBUG == 'fold':
        P = Prog()
        regs = [frag(m, j, s) for m in ('M1', 'W1', 'M2', 'W2') for j in range(6) for s in range(3)]
        dump_regs(P, regs, 72 * 1024)
        out += insert_nops(P.L)
    else:
        P = Prog()
        T = t_pools()
        t_consts(P, T)
        vw = V(0)
        P.v('v_lshlrev_b32', vw, 4, vL)
        P.v('v_add_u32', vw, hx(EXO + 2 * WREG), vw)
        allf = []
        for w, mat in ((0, 'M2'), (1, 'W2')):
            for j in range(6):
                for sx in range(3):
                    i = P.dsr('ds_read_b128', frag(mat, j, sx), vw, (3 * j + sx) * 1024 + WREG * w)
                    allf += frag(mat, j, sx).regs()
        M0.cur = None
        for tau in range(13):
            t_tile(P, T, tau)
            if tau in TSTAMP: ts(P, TSTAMP[tau], rd=[f"m:{tau}"], grp='T')
            if tau == BAR2_TILE:
                i = P.raw('s_barrier', 'bar', rd=allf + [f"o:t{tau}"] + [r for m in ('M1', 'W1') for j in range(6) for sx in range(3) for r in frag(m, j, sx).regs()], wr=['o:bar2'])
                i.prio = 3000
            sub = 0
            while XQ.n < 39 and XQ.n <= 3 * tau + 2 + XDIST and sub < XMAXT:
                if XQ.n >= 3 * NPRE and tau < BAR2_TILE: break
                aft = [f"o:t{tau}" + 'abc'[min(sub, 2)]] + (['o:bar2'] if XQ.n >= 3 * NPRE else [])
                XQ.next(P, T.dm, cost=32, lat=3000, after=aft, prio=3000); sub += 1
        assert XQ.n == 39, XQ.n
        ts(P, 4, rd=['m:12'])
        if DEBUG != 'x1':
            Q = s_pools()
            s_consts(P, Q)
            v2l(P, Q)
            for w in range(4): s_window(P, Q, w)
        L = schedule(P.L, name='main', window=WINDOW)
        L, vm, lg = finalize(L, vm0=vm0, lg0=lg0)
        if TIMEG == 'ev':
            ev0 = int([a for a in sys.argv if a.startswith('--ev=')][0].split('=')[1])
            L2 = []; ev = 0; k = 1
            for ins in L:
                isev = ('vmcnt' in ins.txt and ins.kind == 'wait') or ins.kind == 'bar'
                if isev and ev0 <= ev < ev0 + 4:
                    L2.append(Ins(f"s_memtime {TSR[k]}", 'salu')); k += 1
                    L2.append(ins)
                    L2.append(Ins(f"s_memtime {TSR[k]}", 'salu')); k += 1
                else: L2.append(ins)
                if isev: ev += 1
            L = L2
        out += L
        if DEBUG == 'x1':
            P = Prog(); P.raw('s_waitcnt vmcnt(0) lgkmcnt(0)', 'raw')
            dump_lds(P, WREG)
            out += insert_nops(P.L)
    if TIME:
        P = Prog()
        P.raw('s_waitcnt lgkmcnt(0)', 'raw')
        P.s('s_lshl_b32', sT0, sWG, 2); P.s('s_add_u32', sT0, sT0, sWave)
        P.s('s_lshl_b32', sT0, sT0, 6)
        P.v('v_mov_b32', V(0), 0)
        for k in range(9):
            P.v('v_mov_b32', V(20 + k), TSR[k][0])
            P.raw(f"buffer_store_dword v{20+k}, v0, {sDbg}, {sT0} offen offset:{4*k}", 'raw')
        out += insert_nops(P.L)
    if '--delay' in sys.argv:
        P = Prog()
        P.raw("s_mov_b32 s88, 300", 'raw')
        P.raw("L_DELAY:", 'raw')
        for _ in range(16): P.raw("v_fma_f32 v20, v20, v21, v22", 'raw')
        P.raw("s_sub_u32 s88, s88, 1", 'raw'); P.raw("s_cmp_lg_u32 s88, 0", 'raw'); P.raw("s_cbranch_scc1 L_DELAY", 'raw')
        out += P.L
    if DBGCLK:
        P = Prog()
        P.raw('s_waitcnt vmcnt(0) lgkmcnt(0)', 'raw')
        P.raw("s_memtime s[84:85]", 'raw'); P.raw("s_memrealtime s[86:87]", 'raw')
        P.raw('s_waitcnt lgkmcnt(0)', 'raw')
        P.raw("s_sub_u32 s84, s84, s100", 'raw'); P.raw("s_sub_u32 s86, s86, s98", 'raw')
        P.raw("s_and_b32 s88, s2, 63", 'raw'); P.raw("s_cmp_eq_u32 s88, 0", 'raw'); P.raw("s_cbranch_scc0 L_END", 'raw')
        P.raw("s_cmp_eq_u32 s20, 0", 'raw'); P.raw("s_cbranch_scc0 L_END", 'raw')
        P.raw("s_lshr_b32 s88, s2, 6", 'raw'); P.raw("s_lshl_b32 s88, s88, 4", 'raw')
        P.raw("v_mov_b32 v20, s84", 'raw'); P.raw("v_mov_b32 v21, s86", 'raw'); P.raw("v_mov_b32 v22, s98", 'raw'); P.raw("v_mov_b32 v23, s100", 'raw')
        P.raw("v_mov_b32 v24, s88", 'raw')
        P.raw("s_mov_b64 exec, 1", 'raw')
        P.raw("global_store_dwordx4 v24, v[20:23], s[96:97]", 'raw')
        out += P.L
    out.append(Ins("L_END:", 'label'))
    out.append(Ins("s_endpgm", 'raw'))
    hdr = open('orig.s').read()
    head = hdr[:hdr.index('; @launch')]
    txt = head + f"; @launch grid=(256,1,1) block=(256,1,1) lds={LDS_TOTAL}\n"
    txt += '.amdgcn_target "amdgcn-amd-amdhsa--gfx950"\n.text\n.globl standalone__video_video_swin__vision_kernel\n.p2align 8\n'
    txt += '.type standalone__video_video_swin__vision_kernel,@function\nstandalone__video_video_swin__vision_kernel:\n'
    for ins in out:
        txt += (ins.txt if ins.kind == 'label' else '  ' + ins.txt) + '\n'
    txt += """.section .rodata,"a"
.p2align 6
.amdhsa_kernel standalone__video_video_swin__vision_kernel
  .amdhsa_next_free_vgpr 512
  .amdhsa_next_free_sgpr 102
  .amdhsa_accum_offset 256
  .amdhsa_group_segment_fixed_size 0
  .amdhsa_kernarg_size 64
  .amdhsa_user_sgpr_count 2
  .amdhsa_user_sgpr_kernarg_segment_ptr 1
  .amdhsa_system_sgpr_workgroup_id_x 1
.end_amdhsa_kernel
"""
    o = [a for a in sys.argv[1:] if not a.startswith('--')]
    open(o[0] if o else 'out.s', 'w').write(txt)
    print("instructions:", len(out), file=sys.stderr)

WINDOW = 700
TSTAMP = {0: 2, 1: 3, 3: 4, 5: 5, 7: 6, 9: 7, 12: 8}
BAR2_TILE = 1
if __name__ == '__main__': main()
```

```python
import sys, struct, math
from core import *

DEBUG = None
for a in sys.argv[1:]:
    if a.startswith('--debug='): DEBUG = a.split('=')[1]

def f2u(x): return struct.unpack('<I', struct.pack('<f', x))[0]
def hx(x): return f"0x{x & 0xffffffff:x}"

TPL = 9633792
ROWB = 43008
WREG = 39936
EXO = 21504
SPARE = 4 * WREG
LDS_TOTAL = 163840
NPRE = 7

def pos0(tau): return 48 if tau == 0 else 4 * (tau - 1)
def goff(pos): return pos * 192 + (pos // 7) * 41664

sKA = S(0, 2); sWG = S(2)
sX = S(4, 4); sO = S(8, 4); sW = S(12, 4); sWo = S(16, 4)
sWave = S(20); sWin = S(21); sWB = S(22); sT0 = S(23)
sIT = [S(24 + i) for i in range(6)]
sMt = [None, S(30, 2), S(32, 2), S(34, 2)]
sValid = S(36, 2)
sG0 = S(38, 2)
sCross = {}
_i = 40
for k in range(3):
    for th in (1, 2, 3):
        sCross[(k, th)] = S(_i, 2); _i += 2
s96 = S(58); sC = S(59); sK41664 = S(60)
sSo = [S(61 + i) for i in range(4)]
sTmp = [S(65 + i) for i in range(16)]
sPtr = S(84, 12)
sDbg = S(96, 4)
sDbg2 = S(76, 4)
CODEPF = '--nocodepf' not in sys.argv
WPF = '--nowpf' not in sys.argv

VM1 = 224
def frag(mat, j, s):
    k = 3 * j + s
    if mat == 'M2': return A(4 * k, 4)
    if mat == 'W2': return A(72 + 4 * k, 4)
    if mat == 'W1': return A(144 + 4 * k, 4)
    if mat == 'M1': return A(216 + 4 * k, 4) if k < 10 else V(VM1 + 4 * (k - 10), 4)

vL = V(1); vN = V(2); vG = V(3)
vXA = V(4); vTR = V(5); vST = V(6)
vCst = [V(7), V(8), V(9)]; vCstX = [V(10), V(11), V(12)]
vEPS = V(13)
vOnes = V(16, 4)
vG16 = V(14)
vZero = V(15)

def setup(P):
    P.raw(f"s_cmp_ge_u32 s2, 256", 'salu', rd=['s2'], wr=['scc'])
    P.raw("s_cbranch_scc1 L_END", 'br', rd=['scc'])
    ts(P, 0)
    if PROBE: P.raw("s_memrealtime s[98:99]", 'raw')
    if DBGCLK:
        P.raw("s_memtime s[100:101]", 'raw'); P.raw("s_memrealtime s[98:99]", 'raw')
        P.raw("s_load_dwordx2 s[96:97], s[0:1], 48", 'raw')
    if CODEPF:
        P.raw("s_getpc_b64 s[4:5]", 'salu', wr=['s4', 's5'])
        P.label("L_PC")
        P.s('s_lshr_b32', S(6), sWG, 3); P.s('s_and_b32', S(6), S(6), 3); P.s('s_lshl_b32', S(6), S(6), 14)
        P.v('v_lshlrev_b32', V(2), 6, V(0))
        P.v('v_add_u32', V(2), S(6), V(2))
        P.raw("s_mov_b32 s7, L_END-L_PC", 'salu', wr=['s7'])
        P.v('v_min_u32', V(2), S(7), V(2))
        P.v('v_mov_b32', V(3), S(5))
        P.raw("v_add_co_u32 v2, vcc, s4, v2", 'valu', rd=['s4', 'v2'], wr=['v2', 'vcc'])
        P.raw("v_addc_co_u32 v3, vcc, 0, v3, vcc", 'valu', rd=['v3', 'vcc'], wr=['v3', 'vcc'])
        P.raw("global_load_dword v255, v[2:3], off", 'raw', rd=['v2', 'v3'])
    P.raw(f"s_load_dwordx8 s[84:91], s[0:1], 0", 'raw', wr=S(84, 8).regs())
    P.raw(f"s_load_dwordx4 s[92:95], s[0:1], 32", 'raw', wr=S(92, 4).regs())
    if DEBUG or TIME:
        P.raw(f"s_load_dwordx2 s[96:97], s[0:1], 56", 'raw', wr=S(96, 2).regs())
    P.v('v_and_b32', vL, 63, V(0))
    P.v('v_lshrrev_b32', V(20), 6, V(0))
    P.v('v_and_b32', vN, 15, V(0))
    P.v('v_readfirstlane_b32', sWave, V(20))
    P.v('v_lshrrev_b32', vG, 4, vL)
    P.v('v_lshlrev_b32', vG16, 4, vG)
    P.v('v_mov_b32', vZero, 0)
    P.s('s_lshl_b32', sT0, sWG, 2)
    P.s('s_add_u32', sT0, sT0, sWave)
    P.s('s_lshr_b32', sTmp[0], sT0, 5)
    P.s('s_and_b32', sTmp[1], sT0, 31)
    P.s('s_mul_i32', sTmp[0], sTmp[0], 301056)
    P.s('s_mul_i32', sTmp[1], sTmp[1], 1344)
    P.s('s_add_u32', sWin, sTmp[0], sTmp[1])
    P.s('s_mul_i32', sWB, sWave, WREG)
    for i in range(6): P.s('s_mov_b32', sIT[i], 9216 * i)
    P.s('s_mov_b32', s96, hx(f2u(1.0 / 96)))
    P.s('s_mov_b32', sC, hx(f2u(96 ** -0.5 * math.log2(math.e))))
    P.s('s_mov_b32', sK41664, 41664)
    dma_consts(P)
    lane_consts(P)
    P.s('s_lshr_b32', sTmp[4], sWG, 3); P.s('s_and_b32', sTmp[4], sTmp[4], 15); P.s('s_lshl_b32', sTmp[4], sTmp[4], 12)
    P.v('v_lshlrev_b32', V(20), 6, vL)
    P.v('v_mul_u32_u24', V(21), hx(576), vN)
    P.v('v_add_u32', V(21), V(21), vG16)
    P.v('v_lshlrev_b32', V(22), 4, vL)
    P.raw("s_waitcnt lgkmcnt(0)", 'raw')
    x, wt, wot, wsp, wos, out = [sPtr[2 * i:2 * i + 2] for i in range(6)]
    P.s('s_mov_b32', sX[0], x[0]); P.s('s_mov_b32', sX[1], x[1]); P.s('s_mov_b32', sX[2], 38535168); P.s('s_mov_b32', sX[3], '0x20000')
    P.s('s_mov_b32', sO[0], out[0]); P.s('s_mov_b32', sO[1], out[1]); P.s('s_mov_b32', sO[2], 38535168); P.s('s_mov_b32', sO[3], '0x20000')
    P.s('s_cmp_lt_u32', sWave, 2)
    P.s('s_cselect_b32', sW[0], wt[0], wsp[0]); P.s('s_cselect_b32', sW[1], wt[1], wsp[1])
    P.s('s_mov_b32', sW[2], 55296); P.s('s_mov_b32', sW[3], '0x20000')
    P.s('s_cselect_b32', sWo[0], wot[0], wos[0]); P.s('s_cselect_b32', sWo[1], wot[1], wos[1])
    P.s('s_mov_b32', sWo[2], 18432); P.s('s_mov_b32', sWo[3], '0x20000')
    if DEBUG or TIME:
        P.s('s_mov_b32', sDbg[2], hx(268435456)); P.s('s_mov_b32', sDbg[3], '0x20000')
    if WPF:
        P.s('s_and_b32', sTmp[5], sWave, 1)
        P.s('s_cmp_eq_u32', sTmp[5], 0)
        P.s('s_cselect_b32', sDbg2[0], sW[0], sWo[0]); P.s('s_cselect_b32', sDbg2[1], sW[1], sWo[1])
        P.s('s_cselect_b32', sDbg2[2], sW[2], sWo[2]); P.s('s_mov_b32', sDbg2[3], '0x20000')
        P.bload('buffer_load_dword', V(254), V(20), sDbg2, sTmp[4])
    ts(P, 1, grp='fold')

def dma_consts(P):
    u, rho, q, t, p, c, tmp = [V(20 + i) for i in range(7)]
    P.s('s_mov_b32', sTmp[2], 43691)
    P.s('s_mov_b32', sTmp[3], TPL)
    for k in range(3):
        P.v('v_add_u32', u, 64 * k if 64 * k <= 64 else hx(64 * k), vL)
        P.v('v_mul_u32_u24', rho, sTmp[2], u)
        P.v('v_lshrrev_b32', rho, 19, rho)
        P.v('v_mul_u32_u24', q, 12, rho)
        P.v('v_sub_u32', q, u, q)
        P.v('v_lshrrev_b32', t, 2, rho)
        P.v('v_and_b32', p, 3, rho)
        P.v('v_xor_b32', c, q, t)
        P.v('v_lshlrev_b32', c, 4, c)
        P.v('v_mul_lo_u32', tmp, t, sTmp[3])
        P.v('v_add_u32', c, c, tmp)
        P.v('v_mul_u32_u24', tmp, hx(192), p)
        P.v('v_add_u32', c, c, tmp)
        if k: P.v('v_subrev_u32', vCst[k], hx(1024 * k), c)
        else: P.v('v_mov_b32', vCst[k], c)
        P.v('v_add_u32', vCstX[k], hx(41664), vCst[k])
        for th in (1, 2, 3):
            P.v('v_cmp_le_u32_e64', sCross[(k, th)], th, p)

class M0: cur = None
XMOD = '' if '--noxnt' in sys.argv else ' nt'
SMOD = ' nt' if '--snt' in sys.argv else ''
def dma_piece(P, tau, k, tmp, cost=None, lat=None, rel=0, after=(), prio=0):
    p0 = pos0(tau)
    th = None
    if tau != 0:
        for p in range(1, 4):
            if (p0 + p) // 7 != p0 // 7: th = p; break
    so = sTmp[8 + (tau % 3)]
    if k == 0: P.s('s_add_u32', so, sWin, hx(goff(p0))).rel = rel
    if M0.cur != ('x', tau):
        i = P.s('s_add_u32', 'm0', sWB, hx(3072 * tau)); i.rel = rel; i.rd += list(after); M0.cur = ('x', tau)
    if th is None: vo = vCst[k]
    else:
        vo = tmp[k]
        P.v('v_cndmask_b32_e64', vo, vCst[k], vCstX[k], sCross[(k, th)]).rel = rel
    i = P.dma(vo, sX, so, 1024 * k, f"d:{tau}.{k}", mod=XMOD)
    i.rd.append('o:ord'); i.wr.append('o:ord'); i.rd += list(after)
    if cost: i.cost = cost
    i.lat = lat; i.rel = rel; i.prio = prio
    return i
def xtags(tau): return [f"d:{tau}.{k}" for k in range(3)]

def dma_slot(P, tau, tmp):
    p0 = pos0(tau)
    th = None
    if tau != 0:
        for p in range(1, 4):
            if (p0 + p) // 7 != p0 // 7: th = p; break
    so = sTmp[8 + (tau % 4)]
    P.s('s_add_u32', so, sWin, hx(goff(p0)))
    P.s('s_add_u32', 'm0', sWB, hx(3072 * tau))
    for k in range(3):
        if th is None: vo = vCst[k]
        else:
            vo = tmp[k]
            P.v('v_cndmask_b32_e64', vo, vCst[k], vCstX[k], sCross[(k, th)])
        P.dma(vo, sX, so, 1024 * k, f"d:{tau}").rd.append('o:ord')

sTS = [S(66 + 2 * i, 2) for i in range(0)]
TSREG = 100
def ts(P, k, rd=(), grp='main'):
    if not TIME: return
    if k != 0 and grp != TIMEG: return
    r = TSR[k]
    i = P.add(Ins(f"s_memtime {r}", 'salu', rd=list(rd), wr=r.regs())); i.prio = 9000
TIME = any(a.startswith('--time') for a in sys.argv)
DBGCLK = '--dbgclk' in sys.argv
PROBE = 0
for _a in sys.argv:
    if _a.startswith('--probe='): PROBE = int(_a.split('=')[1])
TIMEG = 'fold' if '--time=fold' in sys.argv else ('T' if '--time=T' in sys.argv else ('ev' if '--time=ev' in sys.argv else 'main'))
TSR = {0: S(100, 2), 1: S(84, 2), 2: S(86, 2), 3: S(88, 2), 4: S(90, 2), 5: S(92, 2), 6: S(94, 2), 7: S(78, 2), 8: S(80, 2)}
def lane_consts(P):
    t, p, r, c, tmp, tmp2 = [V(20 + i) for i in range(6)]
    P.v('v_and_b32', t, 3, vN)
    P.v('v_lshrrev_b32', p, 2, vN)
    P.v('v_lshl_add_u32', tmp, t, 2, p)
    P.v('v_mul_u32_u24', tmp, hx(192), tmp)
    P.v('v_xor_b32', tmp2, vG, t)
    P.v('v_lshl_add_u32', tmp, tmp2, 4, tmp)
    P.v('v_add_u32', vXA, sWB, tmp)
    P.v('v_lshrrev_b32', r, 2, vN)
    P.v('v_and_b32', c, 3, vN)
    P.v('v_lshl_add_u32', tmp, r, 2, vG)
    P.v('v_mul_u32_u24', tmp, hx(192), tmp)
    P.v('v_xor_b32', tmp2, c, r)
    P.v('v_lshl_add_u32', tmp, tmp2, 4, tmp)
    P.v('v_add_u32', vTR, sWB, tmp)
    for e in (1, 2, 3): P.v('v_cmp_eq_u32_e64', sMt[e], e, t)
    P.v('v_cmp_eq_u32_e64', sValid, vG, p)
    P.v('v_cmp_eq_u32_e64', sG0, 0, vG)
    P.v('v_mul_u32_u24', tmp, hx(768), t)
    P.v('v_lshl_add_u32', tmp, p, 2, tmp)
    P.v('v_add_u32', tmp, sWB, tmp)
    P.v('v_add_u32', tmp, hx(384), tmp)
    P.v('v_lshlrev_b32', tmp2, 2, vL)
    P.v('v_add_u32', tmp2, hx(SPARE), tmp2)
    P.v('v_cndmask_b32_e64', vST, tmp2, tmp, sValid)
    P.v('v_mov_b32', vEPS, hx(f2u(1e-5)))
    for i in range(4): P.v('v_mov_b32', vOnes[i], hx(0x3f803f80))

XD = 32
RB = 176
def xd(it, ot): return V(XD + (it * 6 + ot) * 4, 4)
def rb(ot, sg): return V(RB + (ot * 3 + sg) * 4, 4)

WCOST = 130; WLAT = 1400
XEVERY = 5
for _a in sys.argv:
    if _a.startswith('--xevery='): XEVERY = int(_a.split('=')[1])
NXF = 21
XDIST = 10; XMAXT = 4; BAR0 = 4300; XEVERY = 1000; XREL0 = 6300; XSTEP = 360; XBURST = 10; XFOLD = 5; XEXCH = 3; XT = 2.5
for _a in sys.argv:
    if _a.startswith('--xrel='): XREL0, XSTEP, XBURST, XFOLD, XEXCH = map(int, _a.split('=')[1].split(','))
    if _a.startswith('--xevery='): XEVERY = int(_a.split('=')[1])
    if _a.startswith('--xt='): XT = float(_a.split('=')[1])
    if _a.startswith('--xdist='): XDIST, XMAXT = map(int, _a.split('=')[1].split(','))
    if _a.startswith('--bar0='): BAR0 = int(_a.split('=')[1])
def fold_loads(P, isM):
    vA = V(21); vB = V(22)
    aoff = 0 if isM else 384
    seq = []
    def wl(dst, so, off):
        def f():
            i = P.bload('buffer_load_dwordx4', dst, vA, sW, so, off)
            i.wr.append('o:ord'); i.rd.append('o:ord'); i.cost = WCOST; i.lat = WLAT; i.prio = 5000
        seq.append(f)
    if isM:
        for s in range(3): wl(A(72 + s * 4, 4), sIT[0], 192 + 64 * s)
        for it in range(6):
            for s in range(3): wl(A((it * 3 + s) * 4, 4), sIT[it], aoff + 64 * s)
        for ot in range(1, 6):
            for s in range(3): wl(A(72 + (ot * 3 + s) * 4, 4), sIT[ot], 192 + 64 * s)
    else:
        def wo(k):
            def f():
                g4 = k // 4
                if k % 4 == 0:
                    P.s('s_mov_b32', sTmp[5 + (g4 & 1)], hx(4096 * g4))
                if M0.cur != ('wo', g4):
                    P.s('s_add_u32', 'm0', sTmp[4], hx(4096 * g4)); M0.cur = ('wo', g4)
                i = P.dma(vB, sWo, sTmp[5 + (g4 & 1)], 1024 * (k % 4), f"d:wo{k}")
                i.wr.append('o:ord'); i.rd.append('o:ord'); i.cost = WCOST - 40; i.lat = WLAT; i.prio = 5000
            seq.append(f)
        P.s('s_add_u32', sTmp[4], sWB, hx(EXO))
        for k in range(18): wo(k)
        for it in range(6):
            for s in range(3): wl(A((it * 3 + s) * 4, 4), sIT[it], aoff + 64 * s)
    M0.cur = None
    XQ.n = 0
    tmps = [V(29), V(30), V(31)]
    for i, f in enumerate(seq):
        f()
        if (i + 1) % XEVERY == 0:
            XQ.next(P, tmps, cost=WCOST - 40, lat=WLAT, prio=5000)
    ts(P, 2, rd=['o:ord'], grp='fold')
    if BAR0:
        i = P.raw('s_barrier', 'bar', rd=['o:ord'], wr=['o:ord']); i.prio = 5000
        if not isM: i.rel = BAR0
    for m in range(XBURST - XQ.n):
        XQ.next(P, tmps, cost=64, lat=WLAT, prio=5000)
    for m in range(XFOLD):
        XQ.next(P, tmps, cost=48, lat=WLAT, rel=XREL0 + XSTEP * m, prio=5000)

class XQ:
    n = 0
    @staticmethod
    def next(P, tmps, **kw):
        k = XQ.n; XQ.n += 1
        return dma_piece(P, k // 3, k % 3, tmps, **kw)

def fold_compute(P, isM):
    vW = V(22); vT = V(23); tmp = V(24); tmp2 = V(25); tmp3 = V(26)
    P.v('v_bfe_u32', tmp, vN, 2, 1)
    P.v('v_mul_u32_u24', vW, hx(3072), tmp)
    P.v('v_lshrrev_b32', tmp, 3, vN)
    P.v('v_lshlrev_b32', tmp, 6, tmp)
    P.v('v_add_u32', vW, vW, tmp)
    P.v('v_and_b32', tmp, 3, vN)
    P.v('v_lshl_add_u32', vW, tmp, 4, vW)
    P.v('v_lshrrev_b32', tmp, 1, vG)
    P.v('v_lshl_add_u32', vW, tmp, 8, vW)
    P.v('v_and_b32', tmp, 1, vG)
    P.v('v_lshl_add_u32', vW, tmp, 3, vW)
    P.v('v_add_u32', vW, sWB, vW)
    P.v('v_add_u32', vW, hx(EXO), vW)
    def woff(it, ot): return 6 * (ot >> 1) * 1024 + (ot & 1) * 128 + (it >> 1) * 1024 + (it & 1) * 512
    r = V(27); c = V(28)
    P.v('v_lshrrev_b32', r, 2, vN); P.v('v_and_b32', c, 3, vN)
    if not isM:
        P.v('v_lshl_add_u32', tmp, vG, 3, r)
        P.v('v_mul_u32_u24', tmp, hx(192), tmp)
        P.v('v_lshl_add_u32', vT, c, 3, tmp)
        P.v('v_add_u32', vT, sWB, vT)
        P.v('v_add_u32', vT, hx(EXO), vT)
        allwo = [f"d:wo{k}" for k in range(18)]
        for ot in range(6):
            for s in range(3):
                for hh in range(2):
                    rows = [32 * s + 4 * hh, 32 * s + 4 * hh + 24 + 3]
                    tags = [f"d:wo{k}" for k in range(rows[0] * 192 // 1024, min(17, ((rows[1] + 1) * 192 - 1) // 1024) + 1)]
                    P.dsr('ds_read_b64_tr_b16', A(72 + (ot * 3 + s) * 4 + 2 * hh, 2), vT, (32 * s + 4 * hh) * 192 + 32 * ot, mrd=tags + ['m:ex'])
    else:
        P.v('v_lshl_add_u32', tmp, vG, 2, r)
        P.v('v_lshlrev_b32', vT, 4, tmp)
        P.v('v_lshrrev_b32', tmp, 1, c)
        P.v('v_lshl_add_u32', vT, tmp, 8, vT)
        P.v('v_and_b32', tmp, 1, c)
        P.v('v_lshl_add_u32', vT, tmp, 3, vT)
        P.v('v_add_u32', vT, sWB, vT)
        P.v('v_add_u32', vT, hx(EXO), vT)
    for ot in range(6):
        for it in range(6):
            D = xd(it, ot)
            for s in range(3):
                P.mfma(D, A((it * 3 + s) * 4, 4), A(72 + (ot * 3 + s) * 4, 4), D if s else 0)
    ts(P, 3, rd=xd(0, 0).regs(), grp='fold')
    ts(P, 4, rd=[r for it in range(6) for ot in range(6) for r in xd(it, ot).regs()], grp='fold')
    for ot in range(6):
        for it in range(6):
            D = xd(it, ot); B = rb(ot, it >> 1)
            P.cvt(B[2 * (it & 1)], D[0], D[1]); P.cvt(B[2 * (it & 1) + 1], D[2], D[3])
    aD = [V(248, 4) if ot % 2 == 0 else V(252, 4) for ot in range(6)]
    aV = [V(20 + 0) for _ in range(6)]
    aS = [V(29), V(30), V(31), V(21), V(20), V(26)]
    for ot in range(6):
        D = aD[ot]
        for sg in range(3):
            P.mfma(D, vOnes, rb(ot, sg), D if sg else 0)
        P.v('v_mov_b32', aS[ot], D[0])
    ts(P, 5, rd=[r for a in aS for r in a.regs()], grp='fold')
    UV = A(144, 48)
    for i in range(48):
        if i % 4: P.v('v_accvgpr_write_b32', UV[i], 0)
    sNeg96 = sTmp[7]; sI9216 = sTmp[12]
    P.s('s_mov_b32', sNeg96, hx(f2u(-1.0 / 96)))
    one = '1.0'
    if isM:
        for ot in range(6):
            for it in range(6):
                B = rb(ot, it >> 1)
                P.dsw('ds_write_b64', vW, B[2 * (it & 1):2 * (it & 1) + 2], woff(it, ot), mwr=['m:ex'])
        for it in range(6):
            for so in range(3):
                B = V(RB + (it * 3 + so) * 4, 4)
                for hh in range(2):
                    P.dsr('ds_read_b64_tr_b16', B[2 * hh:2 * hh + 2], vT, (6 * so + 3 * hh + (it >> 1)) * 1024 + (it & 1) * 512, mrd=['m:ex'])
        cs = tmp
        P.v('v_add_f32', cs, aS[0], aS[1]); P.v('v_add_f32', tmp2, aS[2], aS[3]); P.v('v_add_f32', tmp2, tmp2, aS[4])
        P.v('v_add_f32', cs, cs, tmp2); P.v('v_add_f32', cs, cs, aS[5])
        for sh in (8, 4, 2, 1):
            P.v('v_add_f32_dpp', cs, cs, cs, mod=f"row_ror:{sh} row_mask:0xf bank_mask:0xf")
        P.s('s_mov_b32', sI9216, hx(f2u(1.0 / 9216)))
        P.v('v_mul_f32', cs, sI9216, cs)
        for ot in range(6):
            P.v('v_fma_f32', aS[ot], aS[ot], sNeg96, cs)
            P.cvt(aS[ot], aS[ot], one)
            P.v('v_accvgpr_write_b32', UV[24 + 4 * ot], aS[ot])
        for it in range(6):
            D = aD[it]
            for so in range(3):
                P.mfma(D, vOnes, V(RB + (it * 3 + so) * 4, 4), D if so else 0)
            u = V(25) if it % 2 else V(27)
            P.v('v_mul_f32', u, sNeg96, D[0])
            P.cvt(u, one, u)
            P.v('v_cndmask_b32_e64', u, 0, u, sG0)
            P.v('v_accvgpr_write_b32', UV[4 * it], u)
        Uf = lambda it: UV[4 * it:4 * it + 4]
    else:
        for ot in range(6):
            P.v('v_mul_f32', aS[ot], sNeg96, aS[ot])
            P.cvt(aS[ot], aS[ot], vZero)
            P.v('v_accvgpr_write_b32', UV[24 + 4 * ot], aS[ot])
        u = V(25)
        P.v('v_mov_b32', u, hx(0x3f80))
        P.v('v_cndmask_b32_e64', u, 0, u, sG0)
        P.v('v_accvgpr_write_b32', UV[0], u)
        Uf = lambda it: UV[0:4]
    ts(P, 6, rd=UV.regs(), grp='fold')
    for ot in range(6):
        for it in range(6):
            D = xd(it, ot)
            P.mfma(D, Uf(it), UV[24 + 4 * ot:28 + 4 * ot], D)
            B = rb(ot, it >> 1)
            P.cvt(B[2 * (it & 1)], D[0], D[1]); P.cvt(B[2 * (it & 1) + 1], D[2], D[3])
            P.dsw('ds_write_b64', vW, B[2 * (it & 1):2 * (it & 1) + 2], woff(it, ot), mwr=['m:ex'])

def read_weights(P, mats):
    va = [V(212), V(213), V(214), V(215)]
    P.v('v_lshlrev_b32', va[0], 4, vL)
    P.v('v_add_u32', va[0], hx(EXO), va[0])
    for w in range(1, 4): P.v('v_add_u32', va[w], hx(WREG * w), va[0])
    for w, mat in ((0, 'M1'), (1, 'W1'), (2, 'M2'), (3, 'W2')):
        if mat not in mats: continue
        for j in range(6):
            for s in range(3):
                P.dsr('ds_read_b128', frag(mat, j, s), va[w], (3 * j + s) * 1024)

class TP: pass
def t_pools():
    T = TP()
    T.xf = Pool('v', 20, 12, 2)
    T.D = Pool('v', 44, 4, 12)
    T.qB = Pool('v', 92, 12, 1)
    T.pvA = Pool('v', 104, 24, 2)
    T.sgm = Pool('v', 152, 12, 2)
    T.pB = Pool('v', 176, 4, 2)
    T.x1f = Pool('v', 184, 12, 1)
    T.tmp = Pool('v', 196, 8, 2)
    T.g2 = Pool('v', 212, 8, 1)
    T.dm = [V(220), V(221), V(222)]
    return T

def stats(P, G, Msum, tmp):
    d, a = tmp[0], tmp[1]
    P.v('v_cndmask_b32_e64', d, G[0], G[1], sMt[1])
    P.v('v_cndmask_b32_e64', d, d, G[2], sMt[2])
    P.v('v_cndmask_b32_e64', d, d, G[3], sMt[3])
    P.v('v_mul_f32', a, s96, Msum)
    P.v('v_fma_f32', d, Neg(a), Msum, d)
    P.v('v_fma_f32', d, d, s96, vEPS)
    P.v('v_rsq_f32', d, d)
    return d

def t_tile(P, T, tau):
    base = 3072 * tau
    xf = T.xf.get()
    for s in range(3):
        P.dsr('ds_read_b128', xf[4 * s:4 * s + 4], vXA, base + 64 * s, mrd=xtags(tau) + [f"m:{tau}"])
    X = lambda s: xf[4 * s:4 * s + 4]
    sgm = T.sgm.get(); Sd, G, M = sgm[0:4], sgm[4:8], sgm[8:12]
    for s in range(3): P.mfma(G, X(s), X(s), G if s else 0)
    P.L[-1].wr.append(f"o:t{tau}"); P.L[-1].wr.append(f"o:t{tau}a")
    for s in range(3): P.mfma(M, vOnes, X(s), M if s else 0)
    qB = T.qB.get()
    for j in range(6):
        D = T.D.get()
        for s in range(3): P.mfma(D, frag('M1', j, s), X(s), D if s else 0)
        if j == 4: P.L[-1].wr.append(f"o:t{tau}b")
        o = 4 * (j >> 1) + 2 * (j & 1)
        P.cvt(qB[o], D[0], D[1]); P.cvt(qB[o + 1], D[2], D[3])
    for s in range(3): P.mfma(Sd, X(s), qB[4 * s:4 * s + 4], Sd if s else 0)
    pvA = T.pvA.get()
    for j in range(6):
        D = T.D.get()
        for s in range(3): P.mfma(D, X(s), frag('W1', j, s), D if s else 0)
        if j == 4: P.L[-1].wr.append(f"o:t{tau}c")
        P.cvt(pvA[4 * j], D[0], D[1]); P.cvt(pvA[4 * j + 1], D[2], D[3])
        P.dsr('ds_read_b64_tr_b16', pvA[4 * j + 2:4 * j + 4], vTR, base + 64 * (j >> 1) + 8 * (j & 1), mrd=xtags(tau) + [f"m:{tau}"])
    tmp = T.tmp.get()
    r = stats(P, G, M[0], tmp)
    m, rq, nm, l, l2 = tmp[2], tmp[3], tmp[4], tmp[5], tmp[6]
    q = lambda e: f"quad_perm:[{e},{e},{e},{e}] row_mask:0xf bank_mask:0xf"
    for e in range(4): P.v('v_mul_f32_dpp', Sd[e], r, Sd[e], mod=q(e))
    P.v('v_max3_f32', m, Sd[0], Sd[1], Sd[2]); P.v('v_max_f32', m, m, Sd[3])
    P.v('v_mul_f32', rq, sC, r)
    P.v('v_mul_f32_e64', nm, Neg(m), rq)
    for e in range(4): P.v('v_fma_f32', Sd[e], Sd[e], rq, nm)
    for e in range(4): P.v('v_exp_f32', Sd[e], Sd[e])
    P.v('v_add_f32', l, Sd[0], Sd[1]); P.v('v_add_f32', l2, Sd[2], Sd[3]); P.v('v_add_f32', l, l, l2)
    P.v('v_rcp_f32', l, l)
    for e in range(4): P.v('v_mul_f32_dpp', Sd[e], r, Sd[e], mod=q(e))
    for e in range(4): P.v('v_mul_f32', Sd[e], Sd[e], l)
    pB = T.pB.get()
    P.cvt(Sd[0], Sd[0], Sd[1]); P.cvt(Sd[2], Sd[2], Sd[3])
    P.v('v_cndmask_b32_e64', pB[0], 0, Sd[0], sValid)
    P.v('v_cndmask_b32_e64', pB[1], 0, Sd[2], sValid)
    x1f = T.x1f.get()
    for j in range(6):
        D = T.D.get()
        P.mfma(D, pvA[4 * j:4 * j + 4], pB, 0)
        o = 4 * (j >> 1) + 2 * (j & 1)
        P.cvt(x1f[o], D[0], D[1]); P.cvt(x1f[o + 1], D[2], D[3])
    for s in range(3):
        P.dsw('ds_write_b128', vXA, x1f[4 * s:4 * s + 4], base + 64 * s, mwr=[f"m:{tau}"])
    g2 = T.g2.get(); G2, M2 = g2[0:4], g2[4:8]
    for s in range(3): P.mfma(G2, x1f[4 * s:4 * s + 4], x1f[4 * s:4 * s + 4], G2 if s else 0)
    for s in range(3): P.mfma(M2, vOnes, x1f[4 * s:4 * s + 4], M2 if s else 0)
    r2 = stats(P, G2, M2[0], [M2[1], M2[2]])
    P.dsw('ds_write_b32', vST, r2, 4 * pos0(tau), mwr=['m:st'], mrd=['m:0'])


sM = S(82, 2)
def onehot_pair(P, dst, d, lo, val, dh):
    P.v('v_and_b32', val, 1, d)
    P.v('v_lshlrev_b32', val, 4, val)
    P.v('v_lshlrev_b32', val, val, vC3f80)
    P.v('v_ashrrev_i32', dh, 1, d)
    P.v('v_cmp_eq_i32_e64', sM, lo // 2, dh)
    P.v('v_cndmask_b32_e64', dst, 0, val, sM)

vC3f80 = V(223)
def t_consts(P, T):
    d = V(220); a = V(221); b = V(222)
    P.v('v_mov_b32', vC3f80, hx(0x3f80))
    P.v('v_lshlrev_b32', d, 2, vG)
    P.v('v_sub_u32', d, vN, d)
    for k in range(2):
        pB = V(176 + 4 * k, 4)
        for h in range(2):
            onehot_pair(P, pB[2 + h], d, 2 * h, a, b)

class SP: pass
def s_pools():
    Q = SP()
    Q.V2A = V(20, 48)
    Q.D = Pool('v', 68, 4, 8)
    Q.XQ = Pool('v', 100, 12, 2)
    Q.qB = Pool('v', 124, 12, 1)
    Q.sD = Pool('v', 136, 16, 2)
    Q.PB = Pool('v', 168, 8, 2)
    Q.RK = V(184, 16)
    Q.tmp = Pool('v', 200, 8, 2)
    Q.outp = Pool('v', 216, 12, 1)
    Q.XK = Pool('a', 144, 48, 2)
    Q.K0 = V(228); Q.Q3 = V(229); Q.TA = [V(230 + j) for j in range(4)]; Q.OA = [V(234 + j) for j in range(4)]
    Q.vRK = V(238); Q.vRQ = V(239); Q.vWB = V(240); Q.XL0 = V(241)
    Q.cL = V(244, 4); Q.cD0 = V(242); Q.cD1 = V(243)
    Q.Kw = Pool('v', 248, 1, 2); Q.XLw = Pool('v', 250, 1, 1); Q.Qw = Pool('v', 251, 1, 2); Q.Tw = Pool('v', 253, 1, 2)
    Q.t0 = V(4); Q.t1 = V(5); Q.t2 = V(6); Q.t3 = V(7); Q.t4 = V(8)
    return Q

def s_consts(P, Q):
    t0, t1, t2, t3, t4 = Q.t0, Q.t1, Q.t2, Q.t3, Q.t4
    P.v('v_mov_b32', Q.vWB, sWB)
    P.v('v_add_u32', Q.XL0, Q.vWB, vG16)
    P.v('v_lshrrev_b32', t0, 2, vN); P.v('v_and_b32', t1, 3, vN)
    P.v('v_mul_u32_u24', t2, hx(3072), t0)
    P.v('v_mul_u32_u24', t3, hx(192), t1)
    P.v('v_add3_u32', t2, t2, t3, Q.XL0)
    P.v('v_add_u32', Q.K0, hx(3072), t2)
    P.v('v_add_u32', t2, hx(27648), Q.K0)
    P.v('v_cmp_le_u32_e64', sM, 12, vN)
    P.v('v_cndmask_b32_e64', Q.Q3, t2, Q.XL0, sM)
    P.v('v_lshl_add_u32', t2, vG, 2, t0)
    P.v('v_add_u32', t3, -1, t2)
    P.v('v_ashrrev_i32', t4, 2, t3)
    P.v('v_mul_i32_i24', t4, hx(3072), t4)
    P.v('v_and_b32', t3, 3, t3)
    P.v('v_mul_u32_u24', t3, hx(192), t3)
    P.v('v_lshl_add_u32', t1, t1, 4, Q.vWB)
    P.v('v_add3_u32', t3, t3, t4, t1)
    P.v('v_add_u32', t3, hx(3072), t3)
    P.v('v_add_u32', t4, hx(192), t1)
    sS0 = S(40, 2); sS13 = S(42, 2)
    P.v('v_cmp_eq_u32_e64', sS0, 0, t2)
    P.v('v_cmp_le_u32_e64', sS13, 13, t2)
    for j in range(4):
        if j: P.v('v_add_u32', t3, hx(9216), t3)
        if j < 3:
            P.v('v_cndmask_b32_e64', Q.TA[j], t3, t4, sS0)
        else:
            P.v('v_cndmask_b32_e64', Q.TA[j], t3, t1, sS13)
            P.v('v_cndmask_b32_e64', Q.TA[j], Q.TA[j], t4, sS0)
    for j in range(4):
        P.v('v_add_u32', t0, 12 * j, vN)
        P.v('v_mul_u32_u24', t2, 37, t0)
        P.v('v_lshrrev_b32', t2, 8, t2)
        P.v('v_mul_u32_u24', t2, sK41664, t2)
        P.v('v_mul_u32_u24', t0, hx(192), t0)
        P.v('v_add3_u32', t0, t0, t2, vG16)
        P.v('v_cmp_gt_u32_e64', sM, 12 if j < 3 else 13, vN)
        P.v('v_mov_b32', t2, hx(0x7f000000))
        P.v('v_cndmask_b32_e64', Q.OA[j], t2, t0, sM)
    P.v('v_add_u32', Q.vRK, hx(384), Q.XL0)
    P.v('v_lshl_add_u32', t0, vN, 2, Q.vWB)
    P.v('v_add_u32', Q.vRQ, hx(384), t0)
    P.v('v_mov_b32', t0, hx(0xff800000))
    P.v('v_cndmask_b32_e64', Q.cL[0], t0, 0, sG0)
    for e in (1, 2, 3): P.v('v_mov_b32', Q.cL[e], 0)
    P.v('v_lshlrev_b32', t0, 2, vG)
    P.v('v_sub_u32', t0, vN, t0)
    P.v('v_add_u32', t0, 1, t0)
    P.v('v_cmp_eq_u32_e64', sM, 0, t0)
    P.v('v_cndmask_b32_e64', t1, 0, 1.0, sM)
    P.v('v_cndmask_b32_e64', Q.cD0, t1, 0, sG0)
    P.v('v_cmp_eq_u32_e64', sM, 1, t0)
    P.v('v_cndmask_b32_e64', Q.cD1, 0, 1.0, sM)
    P.v('v_mov_b32', vC3f80, hx(0x3f80)) if False else None
    P.v('v_mov_b32', t4, hx(0x3f80))
    for k in range(2):
        dst = V(168 + 8 * k + 7)
        P.v('v_and_b32', t1, 1, t0)
        P.v('v_lshlrev_b32', t1, 4, t1)
        P.v('v_lshlrev_b32', t1, t1, t4)
        P.v('v_ashrrev_i32', t2, 1, t0)
        P.v('v_cmp_eq_i32_e64', sM, 1, t2)
        P.v('v_cndmask_b32_e64', dst, 0, t1, sM)
    for w in range(4):
        P.s('s_add_u32', sSo[w], sWin, hx(TPL * w))

def v2l(P, Q):
    t0, t1 = Q.t2, Q.t3
    XL = Q.XQ.get()
    P.v('v_and_b32', t0, 3, vN)
    P.v('v_xor_b32', t1, vG, t0)
    P.v('v_lshlrev_b32', t1, 4, t1)
    P.v('v_mul_u32_u24', t0, hx(768), t0)
    P.v('v_add3_u32', t0, t0, t1, Q.vWB)
    for s in range(3):
        P.dsr('ds_read_b128', XL[4 * s:4 * s + 4], t0, 64 * s, mrd=['m:0'])
    ob = Q.outp.get()
    for j in range(6):
        D = Q.D.get()
        for s in range(3): P.mfma(D, frag('W2', j, s), XL[4 * s:4 * s + 4], D if s else 0)
        o = 4 * (j >> 1) + 2 * (j & 1)
        P.cvt(ob[o], D[0], D[1]); P.cvt(ob[o + 1], D[2], D[3])
    for s in range(3):
        P.dsw('ds_write_b128', t0, ob[4 * s:4 * s + 4], 192 + 64 * s, mwr=['m:v2l'], mrd=['m:0'])

def s_window(P, Q, w):
    XK = Q.XK.get()
    if w:
        Kw = Q.Kw.get(); P.v('v_xor_b32', Kw, 16 * w, Q.K0)
        XLw = Q.XLw.get(); P.v('v_xor_b32', XLw, 16 * w, Q.XL0)
    else:
        Kw = Q.K0; XLw = Q.XL0
    xk = lambda kt, s: XK[12 * kt + 4 * s:12 * kt + 4 * s + 4]
    for kt in range(3):
        for s in range(3):
            P.dsr('ds_read_b128', xk(kt, s), Kw, 768 * w + 12288 * kt + 64 * s, mrd=[f"m:{4*kt+1+i}" for i in range(4)])
    for s in range(3):
        P.dsr('ds_read_b128', xk(3, s), XLw, 768 * w + 64 * s, mrd=['m:0'])
    RK = Q.RK
    for kt in range(3):
        P.dsr('ds_read_b128', RK[4 * kt:4 * kt + 4], Q.vRK, 768 * w + 64 * kt, mrd=['m:st'])
    P.dsr('ds_read_b32', RK[12], Q.vWB, 768 * w + 384 + 192, mrd=['m:st'])
    V2A = Q.V2A
    for kt in range(3):
        for j in range(6):
            D = Q.D.get()
            for s in range(3): P.mfma(D, xk(kt, s), frag('W2', j, s), D if s else 0)
            o = 8 * j + 4 * (kt >> 1) + 2 * (kt & 1)
            P.cvt(V2A[o], D[0], D[1]); P.cvt(V2A[o + 1], D[2], D[3])
    for jq in range(4):
        XQ = Q.XQ.get()
        slots = sorted(set((((min(12 * jq + n, 48)) >> 2) + 1) % 13 for n in range(16)))
        mr = [f"m:{x}" for x in slots]
        if jq < 3:
            qa, qoff = Kw, 9216 * jq
        else:
            qoff = 0
            if w:
                qa = Q.Qw.get(); P.v('v_xor_b32', qa, 16 * w, Q.Q3)
            else: qa = Q.Q3
        for s in range(3):
            P.dsr('ds_read_b128', XQ[4 * s:4 * s + 4], qa, 768 * w + qoff + 64 * s, mrd=mr)
        tmp = Q.tmp.get()
        rq, m, y, nm, l, l2, l3 = tmp[0], tmp[1], tmp[2], tmp[3], tmp[4], tmp[5], tmp[6]
        P.dsr('ds_read_b32', rq, Q.vRQ, 768 * w + 48 * jq, mrd=['m:st'])
        qB = Q.qB.get()
        for j in range(6):
            D = Q.D.get()
            for s in range(3): P.mfma(D, frag('M2', j, s), XQ[4 * s:4 * s + 4], D if s else 0)
            o = 4 * (j >> 1) + 2 * (j & 1)
            P.cvt(qB[o], D[0], D[1]); P.cvt(qB[o + 1], D[2], D[3])
        SD = Q.sD.get()
        for kt in range(4):
            D = SD[4 * kt:4 * kt + 4]
            for s in range(3):
                P.mfma(D, xk(kt, s), qB[4 * s:4 * s + 4], D if s else (Q.cL if kt == 3 else 0))
        if w:
            ta = Q.Tw.get(); P.v('v_xor_b32', ta, 16 * w, Q.TA[jq])
        else: ta = Q.TA[jq]
        for j in range(6):
            P.dsr('ds_read_b64_tr_b16', V2A[8 * j + 6:8 * j + 8], ta, 768 * w + 64 * (j >> 1) + 8 * (j & 1), mrd=mr + ['m:v2l', 'm:0'])
        vals = [SD[i] for i in range(13)]
        rks = [RK[i] for i in range(13)]
        P.v('v_mul_f32', rq, sC, rq)
        for i in range(13): P.v('v_mul_f32', vals[i], vals[i], rks[i])
        P.v('v_max3_f32', m, vals[0], vals[1], vals[2])
        P.v('v_max3_f32', y, vals[3], vals[4], vals[5])
        P.v('v_max3_f32', nm, vals[6], vals[7], vals[8])
        P.v('v_max3_f32', l, vals[9], vals[10], vals[11])
        P.v('v_max3_f32', m, m, y, nm)
        P.v('v_max3_f32', m, m, l, vals[12])
        for op in ('v_permlane32_swap_b32', 'v_permlane16_swap_b32'):
            P.v('v_mov_b32', y, m)
            P.v(op, m, y)
            P.v('v_max_f32', m, m, y)
        P.v('v_mul_f32_e64', nm, Neg(m), rq)
        for i in range(13): P.v('v_fma_f32', vals[i], vals[i], rq, nm)
        for i in range(13): P.v('v_exp_f32', vals[i], vals[i])
        P.v('v_add_f32', l, vals[0], vals[1]); P.v('v_add_f32', l2, vals[2], vals[3]); P.v('v_add_f32', l3, vals[4], vals[5])
        P.v('v_add_f32', m, vals[6], vals[7]); P.v('v_add_f32', y, vals[8], vals[9]); P.v('v_add_f32', nm, vals[10], vals[11])
        P.v('v_add_f32', l, l, l2); P.v('v_add_f32', l3, l3, m); P.v('v_add_f32', y, y, nm)
        P.v('v_add_f32', l, l, l3); P.v('v_add_f32', y, y, vals[12]); P.v('v_add_f32', l, l, y)
        for op in ('v_permlane32_swap_b32', 'v_permlane16_swap_b32'):
            P.v('v_mov_b32', y, l)
            P.v(op, l, y)
            P.v('v_add_f32', l, l, y)
        P.v('v_rcp_f32', l, l)
        for i in range(13): P.v('v_mul_f32', vals[i], vals[i], rks[i])
        for i in range(12): P.v('v_mul_f32', vals[i], vals[i], l)
        P.v('v_fma_f32', vals[12], vals[12], l, Q.cD0)
        PB = Q.PB.get()
        for i in range(6): P.cvt(PB[i], vals[2 * i], vals[2 * i + 1])
        P.cvt(PB[6], vals[12], Q.cD1)
        ob = Q.outp.get()
        for j in range(6):
            D = Q.D.get()
            P.mfma(D, V2A[8 * j:8 * j + 4], PB[0:4], 0)
            P.mfma(D, V2A[8 * j + 4:8 * j + 8], PB[4:8], D)
            o = 4 * (j >> 1) + 2 * (j & 1)
            P.cvt(ob[o], D[0], D[1]); P.cvt(ob[o + 1], D[2], D[3])
        for s in range(3):
            P.bstore('buffer_store_dwordx4', ob[4 * s:4 * s + 4], Q.OA[jq], sO, sSo[w], 64 * s, mod=SMOD).wr.append(f"o:w{w}")
    ts(P, 5 + w, rd=[f"o:w{w}"])

def dbg_srd(P):
    P.s('s_mov_b32', sDbg[0], S(96)) if False else None

def dump_regs(P, regs4, slot_bytes):
    va = V(0)
    P.s('s_lshl_b32', sT0, sWG, 2); P.s('s_add_u32', sT0, sT0, sWave)
    P.s('s_mul_i32', sT0, sT0, slot_bytes)
    P.v('v_lshlrev_b32', va, 4, vL)
    for k, r in enumerate(regs4):
        P.s('s_add_u32', sTmp[0], sT0, hx(1024 * k))
        P.bstore('buffer_store_dwordx4', r, va, sDbg, sTmp[0], 0)
        P.raw('s_waitcnt vmcnt(0)', 'raw')

def dump_lds(P, nbytes):
    va = V(0); vb = V(20); d = V(24, 4)
    P.s('s_lshl_b32', sT0, sWG, 2); P.s('s_add_u32', sT0, sT0, sWave)
    P.s('s_mul_i32', sT0, sT0, nbytes)
    P.v('v_lshlrev_b32', va, 4, vL)
    P.v('v_add_u32', vb, sWB, va)
    for k in range(nbytes // 1024):
        P.raw(f"ds_read_b128 {d}, {vb} offset:{1024*k}", 'raw')
        P.raw('s_waitcnt lgkmcnt(0)', 'raw')
        P.s('s_add_u32', sTmp[0], sT0, hx(1024 * k))
        P.raw(f"buffer_store_dwordx4 {d}, {va}, {sDbg}, {sTmp[0]} offen", 'raw')
        P.raw('s_waitcnt vmcnt(0)', 'raw')

def finalize(L, vm0=(), lg0=(), hist=()):
    L = strip_nops(L)
    L, vm, lg = insert_waits(L, vm0, lg0)
    L = insert_nops(L, hist)
    return L, vm, lg

def main():
    out = []
    P = Prog(); setup(P)
    P.s('s_and_b32', sTmp[0], sWave, 1)
    P.s('s_cmp_eq_u32', sTmp[0], 1)
    P.raw("s_cbranch_scc1 L_FOLDW", 'br', rd=['scc'])
    pre, _, _ = finalize(P.L)
    out += pre
    ends = []
    for isM in (True, False):
        P = Prog()
        fold_loads(P, isM)
        fold_compute(P, isM)
        L = schedule(P.L, name='foldM' if isM else 'foldW')
        P2 = Prog(); wait(P2, lg=0); ts(P2, 1); ts(P2, 7, grp='fold')
        L += P2.L
        if not isM: out.append(Ins("L_FOLDW:", 'label'))
        L, vm, lg = finalize(L, hist=pre[-4:])
        out += L
        ends.append(vm)
        if isM: out.append(Ins("s_branch L_JOIN", 'br'))
    out.append(Ins("L_JOIN:", 'label'))
    vm0 = ends[0] if len(ends[0]) >= len(ends[1]) else ends[1]
    print("pending at join:", ends, file=sys.stderr)
    P = Prog()
    P.raw('s_nop 7', 'raw'); P.raw('s_barrier', 'bar')
    ts(P, 2); ts(P, 8, grp='fold')
    early = (DEBUG != 'fold')
    L, vm0, lg0 = finalize(P.L, vm0=vm0)
    out += L
    P = Prog()
    read_weights(P, ('M1', 'W1') if early else ('M1', 'W1', 'M2', 'W2'))
    M0.cur = None
    for m in range(XEXCH):
        XQ.next(P, [V(29), V(30), V(31)], cost=48, lat=WLAT, rel=100 + 300 * m, prio=5000)
    L = schedule(P.L, name='exch')
    P = Prog()
    if not early:
        wait(P, lg=0)
        P.raw('s_barrier', 'bar')
    ts(P, 3); ts(P, 1, grp='T')
    L += P.L
    L, vm0, lg0 = finalize(L, vm0=vm0, lg0=lg0)
    out += L
    if DEBUG == 'fold':
        P = Prog()
        regs = [frag(m, j, s) for m in ('M1', 'W1', 'M2', 'W2') for j in range(6) for s in range(3)]
        dump_regs(P, regs, 72 * 1024)
        out += insert_nops(P.L)
    else:
        P = Prog()
        T = t_pools()
        t_consts(P, T)
        vw = V(0)
        P.v('v_lshlrev_b32', vw, 4, vL)
        P.v('v_add_u32', vw, hx(EXO + 2 * WREG), vw)
        allf = []
        for w, mat in ((0, 'M2'), (1, 'W2')):
            for j in range(6):
                for sx in range(3):
                    i = P.dsr('ds_read_b128', frag(mat, j, sx), vw, (3 * j + sx) * 1024 + WREG * w)
                    allf += frag(mat, j, sx).regs()
        M0.cur = None
        for tau in range(13):
            t_tile(P, T, tau)
            if tau in TSTAMP: ts(P, TSTAMP[tau], rd=[f"m:{tau}"], grp='T')
            if tau == BAR2_TILE:
                i = P.raw('s_barrier', 'bar', rd=allf + [f"o:t{tau}"] + [r for m in ('M1', 'W1') for j in range(6) for sx in range(3) for r in frag(m, j, sx).regs()], wr=['o:bar2'])
                i.prio = 3000
            sub = 0
            while XQ.n < 39 and XQ.n <= 3 * tau + 2 + XDIST and sub < XMAXT:
                if XQ.n >= 3 * NPRE and tau < BAR2_TILE: break
                aft = [f"o:t{tau}" + 'abc'[min(sub, 2)]] + (['o:bar2'] if XQ.n >= 3 * NPRE else [])
                XQ.next(P, T.dm, cost=32, lat=3000, after=aft, prio=3000); sub += 1
        assert XQ.n == 39, XQ.n
        ts(P, 4, rd=['m:12'])
        if DEBUG != 'x1':
            Q = s_pools()
            s_consts(P, Q)
            v2l(P, Q)
            for w in range(4): s_window(P, Q, w)
        L = schedule(P.L, name='main', window=WINDOW)
        L, vm, lg = finalize(L, vm0=vm0, lg0=lg0)
        if TIMEG == 'ev':
            ev0 = int([a for a in sys.argv if a.startswith('--ev=')][0].split('=')[1])
            L2 = []; ev = 0; k = 1
            for ins in L:
                isev = ('vmcnt' in ins.txt and ins.kind == 'wait') or ins.kind == 'bar'
                if isev and ev0 <= ev < ev0 + 4:
                    L2.append(Ins(f"s_memtime {TSR[k]}", 'salu')); k += 1
                    L2.append(ins)
                    L2.append(Ins(f"s_memtime {TSR[k]}", 'salu')); k += 1
                else: L2.append(ins)
                if isev: ev += 1
            L = L2
        out += L
        if DEBUG == 'x1':
            P = Prog(); P.raw('s_waitcnt vmcnt(0) lgkmcnt(0)', 'raw')
            dump_lds(P, WREG)
            out += insert_nops(P.L)
    if TIME:
        P = Prog()
        P.raw('s_waitcnt lgkmcnt(0)', 'raw')
        P.s('s_lshl_b32', sT0, sWG, 2); P.s('s_add_u32', sT0, sT0, sWave)
        P.s('s_lshl_b32', sT0, sT0, 6)
        P.v('v_mov_b32', V(0), 0)
        for k in range(9):
            P.v('v_mov_b32', V(20 + k), TSR[k][0])
            P.raw(f"buffer_store_dword v{20+k}, v0, {sDbg}, {sT0} offen offset:{4*k}", 'raw')
        out += insert_nops(P.L)
    if PROBE:
        P = Prog()
        P.raw('s_waitcnt vmcnt(0) lgkmcnt(0)', 'raw')
        P.raw("s_memrealtime s[86:87]", 'raw')
        P.raw('s_waitcnt lgkmcnt(0)', 'raw')
        P.raw("s_sub_u32 s84, s86, s98", 'raw')
        P.raw(f"s_cmp_gt_u32 s84, {PROBE}", 'raw'); P.raw("s_cbranch_scc0 L_END", 'raw')
        P.raw("L_SPIN:", 'raw')
        P.raw("s_memrealtime s[88:89]", 'raw')
        P.raw('s_waitcnt lgkmcnt(0)', 'raw')
        P.raw("s_sub_u32 s84, s88, s86", 'raw')
        P.raw("s_cmp_lt_u32 s84, 1500", 'raw'); P.raw("s_cbranch_scc1 L_SPIN", 'raw')
        out += P.L
    if '--delay' in sys.argv:
        P = Prog()
        P.raw("s_mov_b32 s88, 300", 'raw')
        P.raw("L_DELAY:", 'raw')
        for _ in range(16): P.raw("v_fma_f32 v20, v20, v21, v22", 'raw')
        P.raw("s_sub_u32 s88, s88, 1", 'raw'); P.raw("s_cmp_lg_u32 s88, 0", 'raw'); P.raw("s_cbranch_scc1 L_DELAY", 'raw')
        out += P.L
    if DBGCLK:
        P = Prog()
        P.raw('s_waitcnt vmcnt(0) lgkmcnt(0)', 'raw')
        P.raw("s_memtime s[84:85]", 'raw'); P.raw("s_memrealtime s[86:87]", 'raw')
        P.raw('s_waitcnt lgkmcnt(0)', 'raw')
        P.raw("s_sub_u32 s84, s84, s100", 'raw'); P.raw("s_sub_u32 s86, s86, s98", 'raw')
        P.raw("s_and_b32 s88, s2, 63", 'raw'); P.raw("s_cmp_eq_u32 s88, 0", 'raw'); P.raw("s_cbranch_scc0 L_END", 'raw')
        P.raw("s_cmp_eq_u32 s20, 0", 'raw'); P.raw("s_cbranch_scc0 L_END", 'raw')
        P.raw("s_lshr_b32 s88, s2, 6", 'raw'); P.raw("s_lshl_b32 s88, s88, 4", 'raw')
        P.raw("v_mov_b32 v20, s84", 'raw'); P.raw("v_mov_b32 v21, s86", 'raw'); P.raw("v_mov_b32 v22, s98", 'raw'); P.raw("v_mov_b32 v23, s100", 'raw')
        P.raw("v_mov_b32 v24, s88", 'raw')
        P.raw("s_mov_b64 exec, 1", 'raw')
        P.raw("global_store_dwordx4 v24, v[20:23], s[96:97]", 'raw')
        out += P.L
    out.append(Ins("L_END:", 'label'))
    out.append(Ins("s_endpgm", 'raw'))
    hdr = open('orig.s').read()
    head = hdr[:hdr.index('; @launch')]
    txt = head + f"; @launch grid=(256,1,1) block=(256,1,1) lds={LDS_TOTAL}\n"
    txt += '.amdgcn_target "amdgcn-amd-amdhsa--gfx950"\n.text\n.globl standalone__video_video_swin__vision_kernel\n.p2align 8\n'
    txt += '.type standalone__video_video_swin__vision_kernel,@function\nstandalone__video_video_swin__vision_kernel:\n'
    for ins in out:
        txt += (ins.txt if ins.kind == 'label' else '  ' + ins.txt) + '\n'
    txt += """.section .rodata,"a"
.p2align 6
.amdhsa_kernel standalone__video_video_swin__vision_kernel
  .amdhsa_next_free_vgpr 512
  .amdhsa_next_free_sgpr 102
  .amdhsa_accum_offset 256
  .amdhsa_group_segment_fixed_size 0
  .amdhsa_kernarg_size 64
  .amdhsa_user_sgpr_count 2
  .amdhsa_user_sgpr_kernarg_segment_ptr 1
  .amdhsa_system_sgpr_workgroup_id_x 1
.end_amdhsa_kernel
"""
    o = [a for a in sys.argv[1:] if not a.startswith('--')]
    open(o[0] if o else 'out.s', 'w').write(txt)
    print("instructions:", len(out), file=sys.stderr)

WINDOW = 700
TSTAMP = {0: 2, 1: 3, 3: 4, 5: 5, 7: 6, 9: 7, 12: 8}
BAR2_TILE = 1
if __name__ == '__main__': main()
```

```python
import sys

class R:
    __slots__ = ('f', 'i', 'n')
    def __init__(s, f, i, n=1):
        s.f = f; s.i = i; s.n = n
    def __str__(s):
        return f"{s.f}{s.i}" if s.n == 1 else f"{s.f}[{s.i}:{s.i+s.n-1}]"
    __repr__ = __str__
    def regs(s):
        return [f"{s.f}{s.i+k}" for k in range(s.n)]
    def __getitem__(s, k):
        if isinstance(k, slice):
            a = k.start or 0; b = k.stop if k.stop is not None else s.n
            assert 0 <= a < b <= s.n, (s, k)
            return R(s.f, s.i + a, b - a)
        assert 0 <= k < s.n, (s, k)
        return R(s.f, s.i + k, 1)

def V(i, n=1): return R('v', i, n)
def A(i, n=1): return R('a', i, n)
def S(i, n=1): return R('s', i, n)

def regs_of(x):
    if isinstance(x, R): return x.regs()
    if isinstance(x, str):
        t = x.lstrip('-|').rstrip('|')
        if t in ('vcc', 'exec', 'm0', 'scc'): return [t]
    return []

class Neg:
    def __init__(s, r): s.r = r
    def __str__(s): return f"-{s.r}"
    def regs(s): return s.r.regs()
class Abs:
    def __init__(s, r): s.r = r
    def __str__(s): return f"|{s.r}|"
    def regs(s): return s.r.regs()

def rg(x):
    if isinstance(x, (R, Neg, Abs)): return x.regs()
    if isinstance(x, str) and x in ('vcc', 'exec', 'm0', 'scc'): return [x]
    return []

COST = dict(mfma=8, valu=4, trans=8, perm=8, ldsr=4, ldsw=4, vmld=4, vmst=4, dma=4, salu=4, smem=4,
            wait=1, nop=4, br=4, label=0, bar=4, raw=4)
VALUK = ('valu', 'trans', 'perm')

class Ins:
    __slots__ = ('txt', 'kind', 'rd', 'wr', 'dpp', 'cregs', 'dregs', 'wide', 'id', 'nops', 'prio', 'cost', 'rfl', 'tag', 'lat', 'rel')
    def __init__(s, txt, kind, rd=(), wr=(), dpp=False, cregs=(), dregs=(), wide=False, prio=0, rfl=False, tag=None):
        s.txt = txt; s.kind = kind; s.rd = list(rd); s.wr = list(wr); s.dpp = dpp
        s.cregs = list(cregs); s.dregs = list(dregs); s.wide = wide; s.prio = prio; s.rfl = rfl
        s.cost = COST[kind]; s.tag = tag; s.lat = None; s.rel = 0
    def __repr__(s): return s.txt

class Prog:
    def __init__(s):
        s.L = []
    def add(s, ins):
        s.L.append(ins); return ins
    def mfma(s, D, Aop, Bop, C):
        crd = rg(C)
        return s.add(Ins(f"v_mfma_f32_16x16x32_bf16 {D}, {Aop}, {Bop}, {C}", 'mfma',
                         rd=rg(Aop) + rg(Bop) + crd, wr=rg(D), cregs=crd, dregs=rg(D)))
    def v(s, op, dst, *src, mod='', kind=None, rmw=False, extra_rd=(), extra_wr=()):
        dpp = ('dpp' in op)
        if kind is None:
            base = op.replace('_e64', '').replace('_e32', '')
            if base in ('v_exp_f32', 'v_rcp_f32', 'v_rsq_f32', 'v_log_f32', 'v_sqrt_f32'): kind = 'trans'
            elif base.startswith('v_permlane'): kind = 'perm'
            else: kind = 'valu'
        rd = []
        for x in src: rd += rg(x)
        if rmw or op.startswith('v_fmac') or op.startswith('v_permlane'): rd += rg(dst)
        wr = rg(dst)
        if op.startswith('v_permlane'): wr += rg(src[0])
        rd += list(extra_rd); wr += list(extra_wr)
        txt = f"{op} {dst}" + ''.join(f", {x}" for x in src) + (' ' + mod if mod else '')
        return s.add(Ins(txt, kind, rd=rd, wr=wr, dpp=dpp, rfl=op.startswith('v_readfirstlane') or op.startswith('v_readlane')))
    def cvt(s, d, a, b): return s.v('v_cvt_pk_bf16_f32', d, a, b)
    def s(s_, op, dst, *src, scc_w=True, scc_r=False):
        rd = []
        for x in src: rd += rg(x)
        wr = rg(dst)
        if op in ('s_mov_b32', 's_mov_b64', 's_mul_i32', 's_cselect_b32', 's_cselect_b64', 's_getpc_b64'): scc_w = False
        if op.startswith('s_cselect') or op.startswith('s_addc') or op.startswith('s_subb'): scc_r = True
        if op.startswith('s_cmp'):
            rd = rg(dst) + rd; wr = []
        if scc_w: wr = wr + ['scc']
        if scc_r: rd = rd + ['scc']
        txt = f"{op} {dst}" + ''.join(f", {x}" for x in src)
        return s_.add(Ins(txt, 'salu', rd=rd, wr=wr))
    def dsr(s, op, dst, addr, off=0, mrd=()):
        assert 0 <= off < 65536, off
        return s.add(Ins(f"{op} {dst}, {addr}" + (f" offset:{off}" if off else ''), 'ldsr',
                         rd=rg(addr) + list(mrd), wr=rg(dst)))
    def dsw(s, op, addr, data, off=0, mwr=(), mrd=()):
        assert 0 <= off < 65536, off
        return s.add(Ins(f"{op} {addr}, {data}" + (f" offset:{off}" if off else ''), 'ldsw',
                         rd=rg(addr) + rg(data) + list(mrd), wr=list(mwr)))
    def bload(s, op, dst, voff, srd, soff, off=0):
        assert 0 <= off < 4096
        return s.add(Ins(f"{op} {dst}, {voff}, {srd}, {soff} offen" + (f" offset:{off}" if off else ''), 'vmld',
                         rd=rg(voff) + rg(srd) + rg(soff), wr=rg(dst)))
    def dma(s, voff, srd, soff, off, tag, mod=''):
        assert 0 <= off < 4096
        return s.add(Ins(f"buffer_load_dwordx4 {voff}, {srd}, {soff} offen" + (f" offset:{off}" if off else '') + mod + " lds", 'dma',
                         rd=rg(voff) + rg(srd) + rg(soff) + ['m0'], wr=[tag]))
    def bstore(s, op, data, voff, srd, soff, off=0, mod=''):
        assert 0 <= off < 4096
        return s.add(Ins(f"{op} {data}, {voff}, {srd}, {soff} offen" + (f" offset:{off}" if off else '') + mod, 'vmst',
                         rd=rg(data) + rg(voff) + rg(srd) + rg(soff), wr=[], wide=(data.n >= 3), dregs=rg(data)))
    def raw(s, txt, kind='raw', rd=(), wr=()):
        return s.add(Ins(txt, kind, rd=rd, wr=wr))
    def label(s, name): return s.add(Ins(f"{name}:", 'label'))

def raw_edge(p, c, reg):
    pk, ck = p.kind, c.kind
    if reg.startswith('m:') or reg.startswith('o:'): return (4, 0)
    if pk == 'mfma':
        if ck == 'mfma' and reg in c.cregs and reg not in [r for r in c.rd if r not in c.cregs] :
            if c.cregs == p.dregs: return (8, 0)
            return (24, 6)
        return (28, 8)
    if pk in VALUK:
        ws = 0; lat = 8 if pk in ('trans', 'perm') else 4
        if reg[0] == 's' or reg == 'vcc':
            if ck in VALUK: ws = 2
            elif ck in ('vmld', 'vmst', 'dma'): ws = 5
            else: ws = 2
        else:
            if ck == 'mfma': ws = 2; lat += 4
            elif ck in VALUK:
                if c.dpp or ck == 'perm': ws = 2
                elif c.rfl: ws = 1
                elif pk == 'trans': ws = 1
        return (lat, ws)
    if pk == 'ldsr': return (LDS_LAT, 0)
    if pk in ('vmld', 'dma'): return (p.lat if p.lat is not None else VM_LAT, 0)
    if pk == 'smem': return (200, 0)
    if pk == 'salu':
        if reg == 'm0' and ck == 'dma': return (4, 1)
        return (4, 0)
    return (4, 0)
LDS_LAT = 128
VM_LAT = 1500

def war_edge(p, c, reg):
    if p.kind == 'mfma' and reg in p.cregs and c.kind in VALUK: return (8, 3)
    if p.kind == 'vmst' and p.wide and reg in p.dregs:
        return (4, 2 if c.kind in VALUK else 1)
    return (p.cost if p.kind != 'mfma' else 8, 0)

def waw_edge(p, c, reg):
    pk = p.kind
    if reg[1] == ':': return (4, 0)
    if pk == 'mfma':
        if c.kind == 'mfma': return (8, 0)
        return (28, 8)
    if pk == 'ldsr': return (LDS_LAT, 0)
    if pk in ('vmld', 'dma'): return (VM_LAT, 0)
    return (4, 0)

def build_dag(L):
    n = len(L)
    preds = [dict() for _ in range(n)]
    lastw = {}; readers = {}
    def add(i, j, e):
        if i == j: return
        o = preds[j].get(i)
        if o is None: preds[j][i] = e
        else: preds[j][i] = (max(o[0], e[0]), max(o[1], e[1]))
    last_lds_dma = None
    for j, c in enumerate(L):
        for r in c.rd:
            if r in lastw: add(lastw[r], j, raw_edge(L[lastw[r]], c, r))
        for r in c.wr:
            if r in lastw: add(lastw[r], j, waw_edge(L[lastw[r]], c, r))
            for i in readers.get(r, ()): add(i, j, war_edge(L[i], c, r))
        for r in c.rd: readers.setdefault(r, []).append(j)
        for r in c.wr:
            lastw[r] = j; readers[r] = []
    return preds

STALLLOG = None
def schedule(L, verbose=True, name='', window=None):
    n = len(L)
    preds = build_dag(L)
    succs = [[] for _ in range(n)]
    for j in range(n):
        for i, e in preds[j].items(): succs[i].append((j, e))
    height = [0] * n
    for i in range(n - 1, -1, -1):
        h = 0
        for j, e in succs[i]:
            h = max(h, e[0] + height[j])
        height[i] = h + L[i].cost + L[i].prio
    npred = [len(preds[j]) for j in range(n)]
    rtime = [L[i].rel for i in range(n)]
    ready = set(j for j in range(n) if npred[j] == 0)
    out = []; pos = [None] * n
    t = 0; mf = 0; idx = 0; stall = 0; nopc = 0
    lo = 0; done = [False] * n
    while ready:
        best = None; bk = None
        while lo < n and done[lo]: lo += 1
        for c in ready:
            if window is not None and c > lo + window: continue
            ins = L[c]
            est = max(rtime[c], t)
            if ins.kind == 'mfma': est = max(est, mf)
            need = 0
            for i, e in preds[c].items():
                if e[1]:
                    d = e[1] - (idx - pos[i] - 1)
                    if d > need: need = d
            if need > 0: est = max(est, t + 4 * need)
            now = est <= t
            if now:
                key = (0, 0 if ins.kind == 'mfma' else 1, -height[c], c)
            else:
                key = (1, est, -height[c], c)
            if bk is None or key < bk:
                bk = key; best = (c, est, need)
        c, est, need = best
        ins = L[c]
        if need > 0:
            out.append(Ins(f"s_nop {need-1}", 'nop')); idx += need; nopc += 1
        if est > t:
            stall += est - t
            if STALLLOG is not None: STALLLOG.append((t, est - t, ins.txt, c))
        t = est
        if ins.kind == 'mfma': mf = t + 16
        pos[c] = idx; idx += 1
        out.append(ins)
        ready.discard(c); done[c] = True
        for j, e in succs[c]:
            rtime[j] = max(rtime[j], t + e[0])
            npred[j] -= 1
            if npred[j] == 0: ready.add(j)
        t += ins.cost
    assert len([x for x in out if x.kind != 'nop']) == n
    if verbose:
        nm = sum(1 for x in L if x.kind == 'mfma')
        tot = sum(x.cost for x in L)
        print(f"[sched {name}] n={n} mfma={nm} (pipe {16*nm}) issue={tot} est={max(t,mf)} stall={stall} nops={nopc}", file=sys.stderr)
    return out

def strip_nops(L):
    return [x for x in L if x.kind != 'nop']

def insert_waits(L, vm0=(), lg0=()):
    vm = [list(x) for x in vm0]; lg = [list(x) for x in lg0]
    out = []
    for ins in L:
        if ins.kind in ('label',):
            out.append(ins); continue
        touched = set(ins.rd) | set(r for r in ins.wr if r[1] != ':')
        nv = None; nl = None
        for k, regs in enumerate(vm):
            if touched.intersection(regs):
                need = len(vm) - 1 - k
                nv = need if nv is None else min(nv, need)
        for k, regs in enumerate(lg):
            if touched.intersection(regs):
                need = len(lg) - 1 - k
                nl = need if nl is None else min(nl, need)
        if ins.kind == 'wait':
            a, b = ins.tag
            if a is not None: vm = vm[len(vm) - a:] if a < len(vm) else vm; vm = vm if a else []
            if b is not None: lg = lg[len(lg) - b:] if b < len(lg) else lg; lg = lg if b else []
            out.append(ins); continue
        if nv is not None or nl is not None:
            parts = []
            if nv is not None:
                nv = min(nv, 63); parts.append(f"vmcnt({nv})")
                vm = vm[len(vm) - nv:] if nv else []
            if nl is not None:
                nl = min(nl, 15); parts.append(f"lgkmcnt({nl})")
                lg = lg[len(lg) - nl:] if nl else []
            out.append(Ins("s_waitcnt " + ' '.join(parts), 'wait', tag=(nv, nl)))
        out.append(ins)
        if ins.kind in ('vmld', 'dma'): vm.append([r for r in ins.wr if not r.startswith('o:')])
        elif ins.kind == 'vmst': vm.append([])
        elif ins.kind == 'ldsr': lg.append([r for r in ins.wr if not r.startswith('m:')])
        elif ins.kind == 'ldsw': lg.append([])
        elif ins.kind == 'smem':
            raise Exception("smem only in fixed prologue")
        assert len(vm) <= 63, "vmcnt overflow"
    return out, vm, lg

def wait(P, vm=None, lg=None):
    parts = []
    if vm is not None: parts.append(f"vmcnt({vm})")
    if lg is not None: parts.append(f"lgkmcnt({lg})")
    return P.add(Ins("s_waitcnt " + ' '.join(parts), 'wait', tag=(vm, lg)))

def insert_nops(L, hist0=()):
    out = list(hist0)
    base = len(out)
    W = 12
    for c in L:
        if c.kind == 'label':
            out.append(c); continue
        need = 0
        dist = 0
        k = len(out) - 1
        rd = set(c.rd); wr = set(c.wr)
        while k >= 0 and dist < W:
            p = out[k]; k -= 1
            if p.kind == 'label': continue
            if p.kind == 'nop':
                dist += int(p.txt.split()[1]) + 1; continue
            ws = 0
            for r in p.wr:
                if r[1] == ':': continue
                if r in rd: ws = max(ws, raw_edge(p, c, r)[1])
                if r in wr: ws = max(ws, waw_edge(p, c, r)[1])
                if p.kind == 'mfma' and r in wr and c.kind in ('ldsr', 'vmld'): ws = max(ws, 8)
            for r in p.rd:
                if r in wr: ws = max(ws, war_edge(p, c, r)[1])
            if ws > dist: need = max(need, ws - dist)
            dist += 1
        while need > 0:
            m = min(need, 16)
            out.append(Ins(f"s_nop {m-1}", 'nop')); need -= m
        out.append(c)
    return out[base:]

class Pool:
    def __init__(s, f, start, size, count):
        s.f = f; s.start = start; s.size = size; s.count = count; s.k = 0
        s.end = start + size * count
    def get(s):
        r = R(s.f, s.start + s.size * s.k, s.size); s.k = (s.k + 1) % s.count
        return r
```

```python
import sys, struct, math
from core import *

DEBUG = None
for a in sys.argv[1:]:
    if a.startswith('--debug='): DEBUG = a.split('=')[1]

def f2u(x): return struct.unpack('<I', struct.pack('<f', x))[0]
def hx(x): return f"0x{x & 0xffffffff:x}"

TPL = 9633792
ROWB = 43008
WREG = 39936
EXO = 21504
SPARE = 4 * WREG
LDS_TOTAL = 163840
NPRE = 7

def pos0(tau): return 48 if tau == 0 else 4 * (tau - 1)
def goff(pos): return pos * 192 + (pos // 7) * 41664

sKA = S(0, 2); sWG = S(2)
sX = S(4, 4); sO = S(8, 4); sW = S(12, 4); sWo = S(16, 4)
sWave = S(20); sWin = S(21); sWB = S(22); sT0 = S(23)
sIT = [S(24 + i) for i in range(6)]
sMt = [None, S(30, 2), S(32, 2), S(34, 2)]
sValid = S(36, 2)
sG0 = S(38, 2)
sCross = {}
_i = 40
for k in range(3):
    for th in (1, 2, 3):
        sCross[(k, th)] = S(_i, 2); _i += 2
s96 = S(58); sC = S(59); sK41664 = S(60)
sSo = [S(61 + i) for i in range(4)]
sTmp = [S(65 + i) for i in range(16)]
sPtr = S(84, 12)
sDbg = S(96, 4)
sDbg2 = S(76, 4)
CODEPF = '--nocodepf' not in sys.argv
WPF = '--nowpf' not in sys.argv

VM1 = 224
def frag(mat, j, s):
    k = 3 * j + s
    if mat == 'M2': return A(4 * k, 4)
    if mat == 'W2': return A(72 + 4 * k, 4)
    if mat == 'W1': return A(144 + 4 * k, 4)
    if mat == 'M1': return A(216 + 4 * k, 4) if k < 10 else V(VM1 + 4 * (k - 10), 4)

vL = V(1); vN = V(2); vG = V(3)
vXA = V(4); vTR = V(5); vST = V(6)
vCst = [V(7), V(8), V(9)]; vCstX = [V(10), V(11), V(12)]
vEPS = V(13)
vOnes = V(16, 4)
vG16 = V(14)
vZero = V(15)

def setup(P):
    P.raw(f"s_cmp_ge_u32 s2, 256", 'salu', rd=['s2'], wr=['scc'])
    P.raw("s_cbranch_scc1 L_END", 'br', rd=['scc'])
    ts(P, 0)
    if PROBE: P.raw("s_memrealtime s[98:99]", 'raw')
    if DBGCLK:
        P.raw("s_memtime s[100:101]", 'raw'); P.raw("s_memrealtime s[98:99]", 'raw')
        P.raw("s_load_dwordx2 s[96:97], s[0:1], 48", 'raw')
    if CODEPF:
        P.raw("s_getpc_b64 s[4:5]", 'salu', wr=['s4', 's5'])
        P.label("L_PC")
        P.s('s_lshr_b32', S(6), sWG, 3); P.s('s_and_b32', S(6), S(6), 3); P.s('s_lshl_b32', S(6), S(6), 14)
        P.v('v_lshlrev_b32', V(2), 6, V(0))
        P.v('v_add_u32', V(2), S(6), V(2))
        P.raw("s_mov_b32 s7, L_END-L_PC", 'salu', wr=['s7'])
        P.v('v_min_u32', V(2), S(7), V(2))
        P.v('v_mov_b32', V(3), S(5))
        P.raw("v_add_co_u32 v2, vcc, s4, v2", 'valu', rd=['s4', 'v2'], wr=['v2', 'vcc'])
        P.raw("v_addc_co_u32 v3, vcc, 0, v3, vcc", 'valu', rd=['v3', 'vcc'], wr=['v3', 'vcc'])
        P.raw("global_load_dword v255, v[2:3], off", 'raw', rd=['v2', 'v3'])
    P.raw(f"s_load_dwordx8 s[84:91], s[0:1], 0", 'raw', wr=S(84, 8).regs())
    P.raw(f"s_load_dwordx4 s[92:95], s[0:1], 32", 'raw', wr=S(92, 4).regs())
    if DEBUG or TIME:
        P.raw(f"s_load_dwordx2 s[96:97], s[0:1], 56", 'raw', wr=S(96, 2).regs())
    P.v('v_and_b32', vL, 63, V(0))
    P.v('v_lshrrev_b32', V(20), 6, V(0))
    P.v('v_and_b32', vN, 15, V(0))
    P.v('v_readfirstlane_b32', sWave, V(20))
    P.v('v_lshrrev_b32', vG, 4, vL)
    P.v('v_lshlrev_b32', vG16, 4, vG)
    P.v('v_mov_b32', vZero, 0)
    P.s('s_lshl_b32', sT0, sWG, 2)
    P.s('s_add_u32', sT0, sT0, sWave)
    P.s('s_lshr_b32', sTmp[0], sT0, 5)
    P.s('s_and_b32', sTmp[1], sT0, 31)
    P.s('s_mul_i32', sTmp[0], sTmp[0], 301056)
    P.s('s_mul_i32', sTmp[1], sTmp[1], 1344)
    P.s('s_add_u32', sWin, sTmp[0], sTmp[1])
    P.s('s_mul_i32', sWB, sWave, WREG)
    for i in range(6): P.s('s_mov_b32', sIT[i], 9216 * i)
    P.s('s_mov_b32', s96, hx(f2u(1.0 / 96)))
    P.s('s_mov_b32', sC, hx(f2u(96 ** -0.5 * math.log2(math.e))))
    P.s('s_mov_b32', sK41664, 41664)
    dma_consts(P)
    lane_consts(P)
    P.s('s_lshr_b32', sTmp[4], sWG, 3); P.s('s_and_b32', sTmp[4], sTmp[4], 15); P.s('s_lshl_b32', sTmp[4], sTmp[4], 12)
    P.v('v_lshlrev_b32', V(20), 6, vL)
    P.v('v_mul_u32_u24', V(21), hx(576), vN)
    P.v('v_add_u32', V(21), V(21), vG16)
    P.v('v_lshlrev_b32', V(22), 4, vL)
    P.raw("s_waitcnt lgkmcnt(0)", 'raw')
    x, wt, wot, wsp, wos, out = [sPtr[2 * i:2 * i + 2] for i in range(6)]
    P.s('s_mov_b32', sX[0], x[0]); P.s('s_mov_b32', sX[1], x[1]); P.s('s_mov_b32', sX[2], 38535168); P.s('s_mov_b32', sX[3], '0x20000')
    P.s('s_mov_b32', sO[0], out[0]); P.s('s_mov_b32', sO[1], out[1]); P.s('s_mov_b32', sO[2], 38535168); P.s('s_mov_b32', sO[3], '0x20000')
    P.s('s_cmp_lt_u32', sWave, 2)
    P.s('s_cselect_b32', sW[0], wt[0], wsp[0]); P.s('s_cselect_b32', sW[1], wt[1], wsp[1])
    P.s('s_mov_b32', sW[2], 55296); P.s('s_mov_b32', sW[3], '0x20000')
    P.s('s_cselect_b32', sWo[0], wot[0], wos[0]); P.s('s_cselect_b32', sWo[1], wot[1], wos[1])
    P.s('s_mov_b32', sWo[2], 18432); P.s('s_mov_b32', sWo[3], '0x20000')
    if DEBUG or TIME:
        P.s('s_mov_b32', sDbg[2], hx(268435456)); P.s('s_mov_b32', sDbg[3], '0x20000')
    if WPF:
        P.s('s_and_b32', sTmp[5], sWave, 1)
        P.s('s_cmp_eq_u32', sTmp[5], 0)
        P.s('s_cselect_b32', sDbg2[0], sW[0], sWo[0]); P.s('s_cselect_b32', sDbg2[1], sW[1], sWo[1])
        P.s('s_cselect_b32', sDbg2[2], sW[2], sWo[2]); P.s('s_mov_b32', sDbg2[3], '0x20000')
        P.bload('buffer_load_dword', V(254), V(20), sDbg2, sTmp[4])
    ts(P, 1, grp='fold')

def dma_consts(P):
    u, rho, q, t, p, c, tmp = [V(20 + i) for i in range(7)]
    P.s('s_mov_b32', sTmp[2], 43691)
    P.s('s_mov_b32', sTmp[3], TPL)
    for k in range(3):
        P.v('v_add_u32', u, 64 * k if 64 * k <= 64 else hx(64 * k), vL)
        P.v('v_mul_u32_u24', rho, sTmp[2], u)
        P.v('v_lshrrev_b32', rho, 19, rho)
        P.v('v_mul_u32_u24', q, 12, rho)
        P.v('v_sub_u32', q, u, q)
        P.v('v_lshrrev_b32', t, 2, rho)
        P.v('v_and_b32', p, 3, rho)
        P.v('v_xor_b32', c, q, t)
        P.v('v_lshlrev_b32', c, 4, c)
        P.v('v_mul_lo_u32', tmp, t, sTmp[3])
        P.v('v_add_u32', c, c, tmp)
        P.v('v_mul_u32_u24', tmp, hx(192), p)
        P.v('v_add_u32', c, c, tmp)
        if k: P.v('v_subrev_u32', vCst[k], hx(1024 * k), c)
        else: P.v('v_mov_b32', vCst[k], c)
        P.v('v_add_u32', vCstX[k], hx(41664), vCst[k])
        for th in (1, 2, 3):
            P.v('v_cmp_le_u32_e64', sCross[(k, th)], th, p)

class M0: cur = None
XMOD = '' if '--noxnt' in sys.argv else ' nt'
SMOD = ' nt' if '--snt' in sys.argv else ''
for _a in sys.argv:
    if _a.startswith('--smod='): SMOD = ' ' + _a.split('=')[1].replace('+', ' ')
    if _a.startswith('--xmod='): XMOD = ' ' + _a.split('=')[1].replace('+', ' ')
def dma_piece(P, tau, k, tmp, cost=None, lat=None, rel=0, after=(), prio=0):
    p0 = pos0(tau)
    th = None
    if tau != 0:
        for p in range(1, 4):
            if (p0 + p) // 7 != p0 // 7: th = p; break
    so = sTmp[8 + (tau % 3)]
    if k == 0: P.s('s_add_u32', so, sWin, hx(goff(p0))).rel = rel
    if M0.cur != ('x', tau):
        i = P.s('s_add_u32', 'm0', sWB, hx(3072 * tau)); i.rel = rel; i.rd += list(after); M0.cur = ('x', tau)
    if th is None: vo = vCst[k]
    else:
        vo = tmp[k]
        P.v('v_cndmask_b32_e64', vo, vCst[k], vCstX[k], sCross[(k, th)]).rel = rel
    i = P.dma(vo, sX, so, 1024 * k, f"d:{tau}.{k}", mod=XMOD)
    i.rd.append('o:ord'); i.wr.append('o:ord'); i.rd += list(after)
    if cost: i.cost = cost
    i.lat = lat; i.rel = rel; i.prio = prio
    return i
def xtags(tau): return [f"d:{tau}.{k}" for k in range(3)]

def dma_slot(P, tau, tmp):
    p0 = pos0(tau)
    th = None
    if tau != 0:
        for p in range(1, 4):
            if (p0 + p) // 7 != p0 // 7: th = p; break
    so = sTmp[8 + (tau % 4)]
    P.s('s_add_u32', so, sWin, hx(goff(p0)))
    P.s('s_add_u32', 'm0', sWB, hx(3072 * tau))
    for k in range(3):
        if th is None: vo = vCst[k]
        else:
            vo = tmp[k]
            P.v('v_cndmask_b32_e64', vo, vCst[k], vCstX[k], sCross[(k, th)])
        P.dma(vo, sX, so, 1024 * k, f"d:{tau}").rd.append('o:ord')

sTS = [S(66 + 2 * i, 2) for i in range(0)]
TSREG = 100
def ts(P, k, rd=(), grp='main'):
    if not TIME: return
    if k != 0 and grp != TIMEG: return
    r = TSR[k]
    i = P.add(Ins(f"s_memtime {r}", 'salu', rd=list(rd), wr=r.regs())); i.prio = 9000
TIME = any(a.startswith('--time') for a in sys.argv)
DBGCLK = '--dbgclk' in sys.argv
PROBE = 0
for _a in sys.argv:
    if _a.startswith('--probe='): PROBE = int(_a.split('=')[1])
TIMEG = 'fold' if '--time=fold' in sys.argv else ('T' if '--time=T' in sys.argv else ('ev' if '--time=ev' in sys.argv else 'main'))
TSR = {0: S(100, 2), 1: S(84, 2), 2: S(86, 2), 3: S(88, 2), 4: S(90, 2), 5: S(92, 2), 6: S(94, 2), 7: S(78, 2), 8: S(80, 2)}
def lane_consts(P):
    t, p, r, c, tmp, tmp2 = [V(20 + i) for i in range(6)]
    P.v('v_and_b32', t, 3, vN)
    P.v('v_lshrrev_b32', p, 2, vN)
    P.v('v_lshl_add_u32', tmp, t, 2, p)
    P.v('v_mul_u32_u24', tmp, hx(192), tmp)
    P.v('v_xor_b32', tmp2, vG, t)
    P.v('v_lshl_add_u32', tmp, tmp2, 4, tmp)
    P.v('v_add_u32', vXA, sWB, tmp)
    P.v('v_lshrrev_b32', r, 2, vN)
    P.v('v_and_b32', c, 3, vN)
    P.v('v_lshl_add_u32', tmp, r, 2, vG)
    P.v('v_mul_u32_u24', tmp, hx(192), tmp)
    P.v('v_xor_b32', tmp2, c, r)
    P.v('v_lshl_add_u32', tmp, tmp2, 4, tmp)
    P.v('v_add_u32', vTR, sWB, tmp)
    for e in (1, 2, 3): P.v('v_cmp_eq_u32_e64', sMt[e], e, t)
    P.v('v_cmp_eq_u32_e64', sValid, vG, p)
    P.v('v_cmp_eq_u32_e64', sG0, 0, vG)
    P.v('v_mul_u32_u24', tmp, hx(768), t)
    P.v('v_lshl_add_u32', tmp, p, 2, tmp)
    P.v('v_add_u32', tmp, sWB, tmp)
    P.v('v_add_u32', tmp, hx(384), tmp)
    P.v('v_lshlrev_b32', tmp2, 2, vL)
    P.v('v_add_u32', tmp2, hx(SPARE), tmp2)
    P.v('v_cndmask_b32_e64', vST, tmp2, tmp, sValid)
    P.v('v_mov_b32', vEPS, hx(f2u(1e-5)))
    for i in range(4): P.v('v_mov_b32', vOnes[i], hx(0x3f803f80))

XD = 32
RB = 176
def xd(it, ot): return V(XD + (it * 6 + ot) * 4, 4)
def rb(ot, sg): return V(RB + (ot * 3 + sg) * 4, 4)

WCOST = 130; WLAT = 1400
XEVERY = 5
for _a in sys.argv:
    if _a.startswith('--xevery='): XEVERY = int(_a.split('=')[1])
NXF = 21
XDIST = 10; XMAXT = 4; BAR0 = 4300; XEVERY = 1000; XREL0 = 6300; XSTEP = 360; XBURST = 10; XFOLD = 5; XEXCH = 3; XT = 2.5
for _a in sys.argv:
    if _a.startswith('--xrel='): XREL0, XSTEP, XBURST, XFOLD, XEXCH = map(int, _a.split('=')[1].split(','))
    if _a.startswith('--xevery='): XEVERY = int(_a.split('=')[1])
    if _a.startswith('--xt='): XT = float(_a.split('=')[1])
    if _a.startswith('--xdist='): XDIST, XMAXT = map(int, _a.split('=')[1].split(','))
    if _a.startswith('--bar0='): BAR0 = int(_a.split('=')[1])
def fold_loads(P, isM):
    vA = V(21); vB = V(22)
    aoff = 0 if isM else 384
    seq = []
    def wl(dst, so, off):
        def f():
            i = P.bload('buffer_load_dwordx4', dst, vA, sW, so, off)
            i.wr.append('o:ord'); i.rd.append('o:ord'); i.cost = WCOST; i.lat = WLAT; i.prio = 5000
        seq.append(f)
    if isM:
        for s in range(3): wl(A(72 + s * 4, 4), sIT[0], 192 + 64 * s)
        for it in range(6):
            for s in range(3): wl(A((it * 3 + s) * 4, 4), sIT[it], aoff + 64 * s)
        for ot in range(1, 6):
            for s in range(3): wl(A(72 + (ot * 3 + s) * 4, 4), sIT[ot], 192 + 64 * s)
    else:
        def wo(k):
            def f():
                g4 = k // 4
                if k % 4 == 0:
                    P.s('s_mov_b32', sTmp[5 + (g4 & 1)], hx(4096 * g4))
                if M0.cur != ('wo', g4):
                    P.s('s_add_u32', 'm0', sTmp[4], hx(4096 * g4)); M0.cur = ('wo', g4)
                i = P.dma(vB, sWo, sTmp[5 + (g4 & 1)], 1024 * (k % 4), f"d:wo{k}")
                i.wr.append('o:ord'); i.rd.append('o:ord'); i.cost = WCOST - 40; i.lat = WLAT; i.prio = 5000
            seq.append(f)
        P.s('s_add_u32', sTmp[4], sWB, hx(EXO))
        for k in range(18): wo(k)
        for it in range(6):
            for s in range(3): wl(A((it * 3 + s) * 4, 4), sIT[it], aoff + 64 * s)
    M0.cur = None
    XQ.n = 0
    tmps = [V(29), V(30), V(31)]
    for i, f in enumerate(seq):
        f()
        if (i + 1) % XEVERY == 0:
            XQ.next(P, tmps, cost=WCOST - 40, lat=WLAT, prio=5000)
    ts(P, 2, rd=['o:ord'], grp='fold')
    if BAR0:
        i = P.raw('s_barrier', 'bar', rd=['o:ord'], wr=['o:ord']); i.prio = 5000
        if not isM: i.rel = BAR0
    for m in range(XBURST - XQ.n):
        XQ.next(P, tmps, cost=64, lat=WLAT, prio=5000)
    for m in range(XFOLD):
        XQ.next(P, tmps, cost=48, lat=WLAT, rel=XREL0 + XSTEP * m, prio=5000)

class XQ:
    n = 0
    @staticmethod
    def next(P, tmps, **kw):
        k = XQ.n; XQ.n += 1
        return dma_piece(P, k // 3, k % 3, tmps, **kw)

def fold_compute(P, isM):
    vW = V(22); vT = V(23); tmp = V(24); tmp2 = V(25); tmp3 = V(26)
    P.v('v_bfe_u32', tmp, vN, 2, 1)
    P.v('v_mul_u32_u24', vW, hx(3072), tmp)
    P.v('v_lshrrev_b32', tmp, 3, vN)
    P.v('v_lshlrev_b32', tmp, 6, tmp)
    P.v('v_add_u32', vW, vW, tmp)
    P.v('v_and_b32', tmp, 3, vN)
    P.v('v_lshl_add_u32', vW, tmp, 4, vW)
    P.v('v_lshrrev_b32', tmp, 1, vG)
    P.v('v_lshl_add_u32', vW, tmp, 8, vW)
    P.v('v_and_b32', tmp, 1, vG)
    P.v('v_lshl_add_u32', vW, tmp, 3, vW)
    P.v('v_add_u32', vW, sWB, vW)
    P.v('v_add_u32', vW, hx(EXO), vW)
    def woff(it, ot): return 6 * (ot >> 1) * 1024 + (ot & 1) * 128 + (it >> 1) * 1024 + (it & 1) * 512
    r = V(27); c = V(28)
    P.v('v_lshrrev_b32', r, 2, vN); P.v('v_and_b32', c, 3, vN)
    if not isM:
        P.v('v_lshl_add_u32', tmp, vG, 3, r)
        P.v('v_mul_u32_u24', tmp, hx(192), tmp)
        P.v('v_lshl_add_u32', vT, c, 3, tmp)
        P.v('v_add_u32', vT, sWB, vT)
        P.v('v_add_u32', vT, hx(EXO), vT)
        allwo = [f"d:wo{k}" for k in range(18)]
        for ot in range(6):
            for s in range(3):
                for hh in range(2):
                    rows = [32 * s + 4 * hh, 32 * s + 4 * hh + 24 + 3]
                    tags = [f"d:wo{k}" for k in range(rows[0] * 192 // 1024, min(17, ((rows[1] + 1) * 192 - 1) // 1024) + 1)]
                    P.dsr('ds_read_b64_tr_b16', A(72 + (ot * 3 + s) * 4 + 2 * hh, 2), vT, (32 * s + 4 * hh) * 192 + 32 * ot, mrd=tags + ['m:ex'])
    else:
        P.v('v_lshl_add_u32', tmp, vG, 2, r)
        P.v('v_lshlrev_b32', vT, 4, tmp)
        P.v('v_lshrrev_b32', tmp, 1, c)
        P.v('v_lshl_add_u32', vT, tmp, 8, vT)
        P.v('v_and_b32', tmp, 1, c)
        P.v('v_lshl_add_u32', vT, tmp, 3, vT)
        P.v('v_add_u32', vT, sWB, vT)
        P.v('v_add_u32', vT, hx(EXO), vT)
    for ot in range(6):
        for it in range(6):
            D = xd(it, ot)
            for s in range(3):
                P.mfma(D, A((it * 3 + s) * 4, 4), A(72 + (ot * 3 + s) * 4, 4), D if s else 0)
    ts(P, 3, rd=xd(0, 0).regs(), grp='fold')
    ts(P, 4, rd=[r for it in range(6) for ot in range(6) for r in xd(it, ot).regs()], grp='fold')
    for ot in range(6):
        for it in range(6):
            D = xd(it, ot); B = rb(ot, it >> 1)
            P.cvt(B[2 * (it & 1)], D[0], D[1]); P.cvt(B[2 * (it & 1) + 1], D[2], D[3])
    aD = [V(248, 4) if ot % 2 == 0 else V(252, 4) for ot in range(6)]
    aV = [V(20 + 0) for _ in range(6)]
    aS = [V(29), V(30), V(31), V(21), V(20), V(26)]
    for ot in range(6):
        D = aD[ot]
        for sg in range(3):
            P.mfma(D, vOnes, rb(ot, sg), D if sg else 0)
        P.v('v_mov_b32', aS[ot], D[0])
    ts(P, 5, rd=[r for a in aS for r in a.regs()], grp='fold')
    UV = A(144, 48)
    for i in range(48):
        if i % 4: P.v('v_accvgpr_write_b32', UV[i], 0)
    sNeg96 = sTmp[7]; sI9216 = sTmp[12]
    P.s('s_mov_b32', sNeg96, hx(f2u(-1.0 / 96)))
    one = '1.0'
    if isM:
        for ot in range(6):
            for it in range(6):
                B = rb(ot, it >> 1)
                P.dsw('ds_write_b64', vW, B[2 * (it & 1):2 * (it & 1) + 2], woff(it, ot), mwr=['m:ex'])
        for it in range(6):
            for so in range(3):
                B = V(RB + (it * 3 + so) * 4, 4)
                for hh in range(2):
                    P.dsr('ds_read_b64_tr_b16', B[2 * hh:2 * hh + 2], vT, (6 * so + 3 * hh + (it >> 1)) * 1024 + (it & 1) * 512, mrd=['m:ex'])
        cs = tmp
        P.v('v_add_f32', cs, aS[0], aS[1]); P.v('v_add_f32', tmp2, aS[2], aS[3]); P.v('v_add_f32', tmp2, tmp2, aS[4])
        P.v('v_add_f32', cs, cs, tmp2); P.v('v_add_f32', cs, cs, aS[5])
        for sh in (8, 4, 2, 1):
            P.v('v_add_f32_dpp', cs, cs, cs, mod=f"row_ror:{sh} row_mask:0xf bank_mask:0xf")
        P.s('s_mov_b32', sI9216, hx(f2u(1.0 / 9216)))
        P.v('v_mul_f32', cs, sI9216, cs)
        for ot in range(6):
            P.v('v_fma_f32', aS[ot], aS[ot], sNeg96, cs)
            P.cvt(aS[ot], aS[ot], one)
            P.v('v_accvgpr_write_b32', UV[24 + 4 * ot], aS[ot])
        for it in range(6):
            D = aD[it]
            for so in range(3):
                P.mfma(D, vOnes, V(RB + (it * 3 + so) * 4, 4), D if so else 0)
            u = V(25) if it % 2 else V(27)
            P.v('v_mul_f32', u, sNeg96, D[0])
            P.cvt(u, one, u)
            P.v('v_cndmask_b32_e64', u, 0, u, sG0)
            P.v('v_accvgpr_write_b32', UV[4 * it], u)
        Uf = lambda it: UV[4 * it:4 * it + 4]
    else:
        for ot in range(6):
            P.v('v_mul_f32', aS[ot], sNeg96, aS[ot])
            P.cvt(aS[ot], aS[ot], vZero)
            P.v('v_accvgpr_write_b32', UV[24 + 4 * ot], aS[ot])
        u = V(25)
        P.v('v_mov_b32', u, hx(0x3f80))
        P.v('v_cndmask_b32_e64', u, 0, u, sG0)
        P.v('v_accvgpr_write_b32', UV[0], u)
        Uf = lambda it: UV[0:4]
    ts(P, 6, rd=UV.regs(), grp='fold')
    for ot in range(6):
        for it in range(6):
            D = xd(it, ot)
            P.mfma(D, Uf(it), UV[24 + 4 * ot:28 + 4 * ot], D)
            B = rb(ot, it >> 1)
            P.cvt(B[2 * (it & 1)], D[0], D[1]); P.cvt(B[2 * (it & 1) + 1], D[2], D[3])
            P.dsw('ds_write_b64', vW, B[2 * (it & 1):2 * (it & 1) + 2], woff(it, ot), mwr=['m:ex'])

def read_weights(P, mats):
    va = [V(212), V(213), V(214), V(215)]
    P.v('v_lshlrev_b32', va[0], 4, vL)
    P.v('v_add_u32', va[0], hx(EXO), va[0])
    for w in range(1, 4): P.v('v_add_u32', va[w], hx(WREG * w), va[0])
    for w, mat in ((0, 'M1'), (1, 'W1'), (2, 'M2'), (3, 'W2')):
        if mat not in mats: continue
        for j in range(6):
            for s in range(3):
                P.dsr('ds_read_b128', frag(mat, j, s), va[w], (3 * j + s) * 1024)

class TP: pass
TDQ = 12; TDV = 0
for _a in sys.argv:
    if _a.startswith('--tdq='): TDQ, TDV = map(int, _a.split('=')[1].split(','))
def t_pools():
    T = TP()
    T.xf = Pool('v', 20, 12, 2)
    T.D = Pool('v', 44, 4, TDQ)
    T.Dv = Pool('v', 44 + 4 * TDQ, 4, TDV) if TDV else T.D
    T.Dp = Pool('v', 44 + 4 * (TDQ + TDV), 4, 12 - TDQ - TDV) if TDQ + TDV < 12 else T.D
    T.qB = Pool('v', 92, 12, 1)
    T.pvA = Pool('v', 104, 24, 2)
    T.sgm = Pool('v', 152, 12, 2)
    T.pB = Pool('v', 176, 4, 2)
    T.x1f = Pool('v', 184, 12, 1)
    T.tmp = Pool('v', 196, 8, 2)
    T.g2 = Pool('v', 212, 8, 1)
    T.dm = [V(220), V(221), V(222)]
    return T

def stats(P, G, Msum, tmp):
    d, a = tmp[0], tmp[1]
    P.v('v_cndmask_b32_e64', d, G[0], G[1], sMt[1])
    P.v('v_cndmask_b32_e64', d, d, G[2], sMt[2])
    P.v('v_cndmask_b32_e64', d, d, G[3], sMt[3])
    P.v('v_mul_f32', a, s96, Msum)
    P.v('v_fma_f32', d, Neg(a), Msum, d)
    P.v('v_fma_f32', d, d, s96, vEPS)
    P.v('v_rsq_f32', d, d)
    return d

def t_tile(P, T, tau):
    base = 3072 * tau
    xf = T.xf.get()
    for s in range(3):
        P.dsr('ds_read_b128', xf[4 * s:4 * s + 4], vXA, base + 64 * s, mrd=xtags(tau) + [f"m:{tau}"])
    X = lambda s: xf[4 * s:4 * s + 4]
    sgm = T.sgm.get(); Sd, G, M = sgm[0:4], sgm[4:8], sgm[8:12]
    for s in range(3): P.mfma(G, X(s), X(s), G if s else 0)
    P.L[-1].wr.append(f"o:t{tau}"); P.L[-1].wr.append(f"o:t{tau}a")
    for s in range(3): P.mfma(M, vOnes, X(s), M if s else 0)
    qB = T.qB.get()
    for j in range(6):
        D = T.D.get()
        for s in range(3): P.mfma(D, frag('M1', j, s), X(s), D if s else 0)
        if j == 4: P.L[-1].wr.append(f"o:t{tau}b")
        o = 4 * (j >> 1) + 2 * (j & 1)
        P.cvt(qB[o], D[0], D[1]); P.cvt(qB[o + 1], D[2], D[3])
    for s in range(3): P.mfma(Sd, X(s), qB[4 * s:4 * s + 4], Sd if s else 0)
    pvA = T.pvA.get()
    for j in range(6):
        D = T.Dv.get()
        for s in range(3): P.mfma(D, X(s), frag('W1', j, s), D if s else 0)
        if j == 4: P.L[-1].wr.append(f"o:t{tau}c")
        P.cvt(pvA[4 * j], D[0], D[1]); P.cvt(pvA[4 * j + 1], D[2], D[3])
        P.dsr('ds_read_b64_tr_b16', pvA[4 * j + 2:4 * j + 4], vTR, base + 64 * (j >> 1) + 8 * (j & 1), mrd=xtags(tau) + [f"m:{tau}"])
    tmp = T.tmp.get()
    r = stats(P, G, M[0], tmp)
    m, rq, nm, l, l2 = tmp[2], tmp[3], tmp[4], tmp[5], tmp[6]
    q = lambda e: f"quad_perm:[{e},{e},{e},{e}] row_mask:0xf bank_mask:0xf"
    for e in range(4): P.v('v_mul_f32_dpp', Sd[e], r, Sd[e], mod=q(e))
    P.v('v_max3_f32', m, Sd[0], Sd[1], Sd[2]); P.v('v_max_f32', m, m, Sd[3])
    P.v('v_mul_f32', rq, sC, r)
    P.v('v_mul_f32_e64', nm, Neg(m), rq)
    for e in range(4): P.v('v_fma_f32', Sd[e], Sd[e], rq, nm)
    for e in range(4): P.v('v_exp_f32', Sd[e], Sd[e])
    P.v('v_add_f32', l, Sd[0], Sd[1]); P.v('v_add_f32', l2, Sd[2], Sd[3]); P.v('v_add_f32', l, l, l2)
    P.v('v_rcp_f32', l, l)
    for e in range(4): P.v('v_mul_f32_dpp', Sd[e], r, Sd[e], mod=q(e))
    for e in range(4): P.v('v_mul_f32', Sd[e], Sd[e], l)
    pB = T.pB.get()
    P.cvt(Sd[0], Sd[0], Sd[1]); P.cvt(Sd[2], Sd[2], Sd[3])
    P.v('v_cndmask_b32_e64', pB[0], 0, Sd[0], sValid)
    P.v('v_cndmask_b32_e64', pB[1], 0, Sd[2], sValid)
    x1f = T.x1f.get()
    for j in range(6):
        D = T.Dp.get()
        P.mfma(D, pvA[4 * j:4 * j + 4], pB, 0)
        o = 4 * (j >> 1) + 2 * (j & 1)
        P.cvt(x1f[o], D[0], D[1]); P.cvt(x1f[o + 1], D[2], D[3])
    for s in range(3):
        P.dsw('ds_write_b128', vXA, x1f[4 * s:4 * s + 4], base + 64 * s, mwr=[f"m:{tau}"])
    g2 = T.g2.get(); G2, M2 = g2[0:4], g2[4:8]
    for s in range(3): P.mfma(G2, x1f[4 * s:4 * s + 4], x1f[4 * s:4 * s + 4], G2 if s else 0)
    for s in range(3): P.mfma(M2, vOnes, x1f[4 * s:4 * s + 4], M2 if s else 0)
    r2 = stats(P, G2, M2[0], [M2[1], M2[2]])
    P.dsw('ds_write_b32', vST, r2, 4 * pos0(tau), mwr=['m:st'], mrd=['m:0'])


sM = S(82, 2)
def onehot_pair(P, dst, d, lo, val, dh):
    P.v('v_and_b32', val, 1, d)
    P.v('v_lshlrev_b32', val, 4, val)
    P.v('v_lshlrev_b32', val, val, vC3f80)
    P.v('v_ashrrev_i32', dh, 1, d)
    P.v('v_cmp_eq_i32_e64', sM, lo // 2, dh)
    P.v('v_cndmask_b32_e64', dst, 0, val, sM)

vC3f80 = V(223)
def t_consts(P, T):
    d = V(220); a = V(221); b = V(222)
    P.v('v_mov_b32', vC3f80, hx(0x3f80))
    P.v('v_lshlrev_b32', d, 2, vG)
    P.v('v_sub_u32', d, vN, d)
    for k in range(2):
        pB = V(176 + 4 * k, 4)
        for h in range(2):
            onehot_pair(P, pB[2 + h], d, 2 * h, a, b)

class SP: pass
SDQ = 4
for _a in sys.argv:
    if _a.startswith('--sdq='): SDQ = int(_a.split('=')[1])
def s_pools():
    Q = SP()
    Q.V2A = V(20, 48)
    Q.D = Pool('v', 68, 4, SDQ)
    Q.Dp = Pool('v', 68 + 4 * SDQ, 4, 8 - SDQ)
    Q.XQ = Pool('v', 100, 12, 2)
    Q.qB = Pool('v', 124, 12, 1)
    Q.sD = Pool('v', 136, 16, 2)
    Q.PB = Pool('v', 168, 8, 2)
    Q.RK = V(184, 16)
    Q.tmp = Pool('v', 200, 8, 2)
    Q.outp = Pool('v', 216, 12, 1)
    Q.XK = Pool('a', 144, 48, 2)
    Q.K0 = V(228); Q.Q3 = V(229); Q.TA = [V(230 + j) for j in range(4)]; Q.OA = [V(234 + j) for j in range(4)]
    Q.vRK = V(238); Q.vRQ = V(239); Q.vWB = V(240); Q.XL0 = V(241)
    Q.cL = V(244, 4); Q.cD0 = V(242); Q.cD1 = V(243)
    Q.Kw = Pool('v', 248, 1, 2); Q.XLw = Pool('v', 250, 1, 1); Q.Qw = Pool('v', 251, 1, 2); Q.Tw = Pool('v', 253, 1, 2)
    Q.t0 = V(4); Q.t1 = V(5); Q.t2 = V(6); Q.t3 = V(7); Q.t4 = V(8)
    return Q

def s_consts(P, Q):
    t0, t1, t2, t3, t4 = Q.t0, Q.t1, Q.t2, Q.t3, Q.t4
    P.v('v_mov_b32', Q.vWB, sWB)
    P.v('v_add_u32', Q.XL0, Q.vWB, vG16)
    P.v('v_lshrrev_b32', t0, 2, vN); P.v('v_and_b32', t1, 3, vN)
    P.v('v_mul_u32_u24', t2, hx(3072), t0)
    P.v('v_mul_u32_u24', t3, hx(192), t1)
    P.v('v_add3_u32', t2, t2, t3, Q.XL0)
    P.v('v_add_u32', Q.K0, hx(3072), t2)
    P.v('v_add_u32', t2, hx(27648), Q.K0)
    P.v('v_cmp_le_u32_e64', sM, 12, vN)
    P.v('v_cndmask_b32_e64', Q.Q3, t2, Q.XL0, sM)
    P.v('v_lshl_add_u32', t2, vG, 2, t0)
    P.v('v_add_u32', t3, -1, t2)
    P.v('v_ashrrev_i32', t4, 2, t3)
    P.v('v_mul_i32_i24', t4, hx(3072), t4)
    P.v('v_and_b32', t3, 3, t3)
    P.v('v_mul_u32_u24', t3, hx(192), t3)
    P.v('v_lshl_add_u32', t1, t1, 4, Q.vWB)
    P.v('v_add3_u32', t3, t3, t4, t1)
    P.v('v_add_u32', t3, hx(3072), t3)
    P.v('v_add_u32', t4, hx(192), t1)
    sS0 = S(40, 2); sS13 = S(42, 2)
    P.v('v_cmp_eq_u32_e64', sS0, 0, t2)
    P.v('v_cmp_le_u32_e64', sS13, 13, t2)
    for j in range(4):
        if j: P.v('v_add_u32', t3, hx(9216), t3)
        if j < 3:
            P.v('v_cndmask_b32_e64', Q.TA[j], t3, t4, sS0)
        else:
            P.v('v_cndmask_b32_e64', Q.TA[j], t3, t1, sS13)
            P.v('v_cndmask_b32_e64', Q.TA[j], Q.TA[j], t4, sS0)
    for j in range(4):
        P.v('v_add_u32', t0, 12 * j, vN)
        P.v('v_mul_u32_u24', t2, 37, t0)
        P.v('v_lshrrev_b32', t2, 8, t2)
        P.v('v_mul_u32_u24', t2, sK41664, t2)
        P.v('v_mul_u32_u24', t0, hx(192), t0)
        P.v('v_add3_u32', t0, t0, t2, vG16)
        P.v('v_cmp_gt_u32_e64', sM, 12 if j < 3 else 13, vN)
        P.v('v_mov_b32', t2, hx(0x7f000000))
        P.v('v_cndmask_b32_e64', Q.OA[j], t2, t0, sM)
    P.v('v_add_u32', Q.vRK, hx(384), Q.XL0)
    P.v('v_lshl_add_u32', t0, vN, 2, Q.vWB)
    P.v('v_add_u32', Q.vRQ, hx(384), t0)
    P.v('v_mov_b32', t0, hx(0xff800000))
    P.v('v_cndmask_b32_e64', Q.cL[0], t0, 0, sG0)
    for e in (1, 2, 3): P.v('v_mov_b32', Q.cL[e], 0)
    P.v('v_lshlrev_b32', t0, 2, vG)
    P.v('v_sub_u32', t0, vN, t0)
    P.v('v_add_u32', t0, 1, t0)
    P.v('v_cmp_eq_u32_e64', sM, 0, t0)
    P.v('v_cndmask_b32_e64', t1, 0, 1.0, sM)
    P.v('v_cndmask_b32_e64', Q.cD0, t1, 0, sG0)
    P.v('v_cmp_eq_u32_e64', sM, 1, t0)
    P.v('v_cndmask_b32_e64', Q.cD1, 0, 1.0, sM)
    P.v('v_mov_b32', vC3f80, hx(0x3f80)) if False else None
    P.v('v_mov_b32', t4, hx(0x3f80))
    for k in range(2):
        dst = V(168 + 8 * k + 7)
        P.v('v_and_b32', t1, 1, t0)
        P.v('v_lshlrev_b32', t1, 4, t1)
        P.v('v_lshlrev_b32', t1, t1, t4)
        P.v('v_ashrrev_i32', t2, 1, t0)
        P.v('v_cmp_eq_i32_e64', sM, 1, t2)
        P.v('v_cndmask_b32_e64', dst, 0, t1, sM)
    for w in range(4):
        P.s('s_add_u32', sSo[w], sWin, hx(TPL * w))

def v2l(P, Q):
    t0, t1 = Q.t2, Q.t3
    XL = Q.XQ.get()
    P.v('v_and_b32', t0, 3, vN)
    P.v('v_xor_b32', t1, vG, t0)
    P.v('v_lshlrev_b32', t1, 4, t1)
    P.v('v_mul_u32_u24', t0, hx(768), t0)
    P.v('v_add3_u32', t0, t0, t1, Q.vWB)
    for s in range(3):
        P.dsr('ds_read_b128', XL[4 * s:4 * s + 4], t0, 64 * s, mrd=['m:0'])
    ob = Q.outp.get()
    for j in range(6):
        D = Q.D.get()
        for s in range(3): P.mfma(D, frag('W2', j, s), XL[4 * s:4 * s + 4], D if s else 0)
        o = 4 * (j >> 1) + 2 * (j & 1)
        P.cvt(ob[o], D[0], D[1]); P.cvt(ob[o + 1], D[2], D[3])
    for s in range(3):
        P.dsw('ds_write_b128', t0, ob[4 * s:4 * s + 4], 192 + 64 * s, mwr=['m:v2l'], mrd=['m:0'])

def s_window(P, Q, w):
    XK = Q.XK.get()
    if w:
        Kw = Q.Kw.get(); P.v('v_xor_b32', Kw, 16 * w, Q.K0)
        XLw = Q.XLw.get(); P.v('v_xor_b32', XLw, 16 * w, Q.XL0)
    else:
        Kw = Q.K0; XLw = Q.XL0
    xk = lambda kt, s: XK[12 * kt + 4 * s:12 * kt + 4 * s + 4]
    for kt in range(3):
        for s in range(3):
            P.dsr('ds_read_b128', xk(kt, s), Kw, 768 * w + 12288 * kt + 64 * s, mrd=[f"m:{4*kt+1+i}" for i in range(4)])
    for s in range(3):
        P.dsr('ds_read_b128', xk(3, s), XLw, 768 * w + 64 * s, mrd=['m:0'])
    RK = Q.RK
    for kt in range(3):
        P.dsr('ds_read_b128', RK[4 * kt:4 * kt + 4], Q.vRK, 768 * w + 64 * kt, mrd=['m:st'])
    P.dsr('ds_read_b32', RK[12], Q.vWB, 768 * w + 384 + 192, mrd=['m:st'])
    V2A = Q.V2A
    def v2a():
        for kt in range(3):
            for j in range(6):
                D = Q.Dp.get()
                for s in range(3): P.mfma(D, xk(kt, s), frag('W2', j, s), D if s else 0)
                o = 8 * j + 4 * (kt >> 1) + 2 * (kt & 1)
                P.cvt(V2A[o], D[0], D[1]); P.cvt(V2A[o + 1], D[2], D[3])
    for jq in range(4):
        XQ = Q.XQ.get()
        slots = sorted(set((((min(12 * jq + n, 48)) >> 2) + 1) % 13 for n in range(16)))
        mr = [f"m:{x}" for x in slots]
        if jq < 3:
            qa, qoff = Kw, 9216 * jq
        else:
            qoff = 0
            if w:
                qa = Q.Qw.get(); P.v('v_xor_b32', qa, 16 * w, Q.Q3)
            else: qa = Q.Q3
        for s in range(3):
            P.dsr('ds_read_b128', XQ[4 * s:4 * s + 4], qa, 768 * w + qoff + 64 * s, mrd=mr)
        tmp = Q.tmp.get()
        rq, m, y, nm, l, l2, l3 = tmp[0], tmp[1], tmp[2], tmp[3], tmp[4], tmp[5], tmp[6]
        P.dsr('ds_read_b32', rq, Q.vRQ, 768 * w + 48 * jq, mrd=['m:st'])
        qB = Q.qB.get()
        for j in range(6):
            D = Q.D.get()
            for s in range(3): P.mfma(D, frag('M2', j, s), XQ[4 * s:4 * s + 4], D if s else 0)
            o = 4 * (j >> 1) + 2 * (j & 1)
            P.cvt(qB[o], D[0], D[1]); P.cvt(qB[o + 1], D[2], D[3])
        SD = Q.sD.get()
        for kt in range(4):
            D = SD[4 * kt:4 * kt + 4]
            for s in range(3):
                P.mfma(D, xk(kt, s), qB[4 * s:4 * s + 4], D if s else (Q.cL if kt == 3 else 0))
        if jq == 0: v2a()
        if w:
            ta = Q.Tw.get(); P.v('v_xor_b32', ta, 16 * w, Q.TA[jq])
        else: ta = Q.TA[jq]
        for j in range(6):
            P.dsr('ds_read_b64_tr_b16', V2A[8 * j + 6:8 * j + 8], ta, 768 * w + 64 * (j >> 1) + 8 * (j & 1), mrd=mr + ['m:v2l', 'm:0'])
        vals = [SD[i] for i in range(13)]
        rks = [RK[i] for i in range(13)]
        P.v('v_mul_f32', rq, sC, rq)
        for i in range(13): P.v('v_mul_f32', vals[i], vals[i], rks[i])
        P.v('v_max3_f32', m, vals[0], vals[1], vals[2])
        P.v('v_max3_f32', y, vals[3], vals[4], vals[5])
        P.v('v_max3_f32', nm, vals[6], vals[7], vals[8])
        P.v('v_max3_f32', l, vals[9], vals[10], vals[11])
        P.v('v_max3_f32', m, m, y, nm)
        P.v('v_max3_f32', m, m, l, vals[12])
        for op in ('v_permlane32_swap_b32', 'v_permlane16_swap_b32'):
            P.v('v_mov_b32', y, m)
            P.v(op, m, y)
            P.v('v_max_f32', m, m, y)
        P.v('v_mul_f32_e64', nm, Neg(m), rq)
        for i in range(13): P.v('v_fma_f32', vals[i], vals[i], rq, nm)
        for i in range(13): P.v('v_exp_f32', vals[i], vals[i])
        P.v('v_add_f32', l, vals[0], vals[1]); P.v('v_add_f32', l2, vals[2], vals[3]); P.v('v_add_f32', l3, vals[4], vals[5])
        P.v('v_add_f32', m, vals[6], vals[7]); P.v('v_add_f32', y, vals[8], vals[9]); P.v('v_add_f32', nm, vals[10], vals[11])
        P.v('v_add_f32', l, l, l2); P.v('v_add_f32', l3, l3, m); P.v('v_add_f32', y, y, nm)
        P.v('v_add_f32', l, l, l3); P.v('v_add_f32', y, y, vals[12]); P.v('v_add_f32', l, l, y)
        for op in ('v_permlane32_swap_b32', 'v_permlane16_swap_b32'):
            P.v('v_mov_b32', y, l)
            P.v(op, l, y)
            P.v('v_add_f32', l, l, y)
        P.v('v_rcp_f32', l, l)
        for i in range(13): P.v('v_mul_f32', vals[i], vals[i], rks[i])
        for i in range(12): P.v('v_mul_f32', vals[i], vals[i], l)
        P.v('v_fma_f32', vals[12], vals[12], l, Q.cD0)
        PB = Q.PB.get()
        for i in range(6): P.cvt(PB[i], vals[2 * i], vals[2 * i + 1])
        P.cvt(PB[6], vals[12], Q.cD1)
        ob = Q.outp.get()
        for j in range(6):
            D = Q.Dp.get()
            P.mfma(D, V2A[8 * j:8 * j + 4], PB[0:4], 0)
            P.mfma(D, V2A[8 * j + 4:8 * j + 8], PB[4:8], D)
            o = 4 * (j >> 1) + 2 * (j & 1)
            P.cvt(ob[o], D[0], D[1]); P.cvt(ob[o + 1], D[2], D[3])
        for s in range(3):
            P.bstore('buffer_store_dwordx4', ob[4 * s:4 * s + 4], Q.OA[jq], sO, sSo[w], 64 * s, mod=SMOD).wr.append(f"o:w{w}")
    ts(P, 5 + w, rd=[f"o:w{w}"])

def dbg_srd(P):
    P.s('s_mov_b32', sDbg[0], S(96)) if False else None

def dump_regs(P, regs4, slot_bytes):
    va = V(0)
    P.s('s_lshl_b32', sT0, sWG, 2); P.s('s_add_u32', sT0, sT0, sWave)
    P.s('s_mul_i32', sT0, sT0, slot_bytes)
    P.v('v_lshlrev_b32', va, 4, vL)
    for k, r in enumerate(regs4):
        P.s('s_add_u32', sTmp[0], sT0, hx(1024 * k))
        P.bstore('buffer_store_dwordx4', r, va, sDbg, sTmp[0], 0)
        P.raw('s_waitcnt vmcnt(0)', 'raw')

def dump_lds(P, nbytes):
    va = V(0); vb = V(20); d = V(24, 4)
    P.s('s_lshl_b32', sT0, sWG, 2); P.s('s_add_u32', sT0, sT0, sWave)
    P.s('s_mul_i32', sT0, sT0, nbytes)
    P.v('v_lshlrev_b32', va, 4, vL)
    P.v('v_add_u32', vb, sWB, va)
    for k in range(nbytes // 1024):
        P.raw(f"ds_read_b128 {d}, {vb} offset:{1024*k}", 'raw')
        P.raw('s_waitcnt lgkmcnt(0)', 'raw')
        P.s('s_add_u32', sTmp[0], sT0, hx(1024 * k))
        P.raw(f"buffer_store_dwordx4 {d}, {va}, {sDbg}, {sTmp[0]} offen", 'raw')
        P.raw('s_waitcnt vmcnt(0)', 'raw')

NONOP = []
def finalize(L, vm0=(), lg0=(), hist=()):
    L = strip_nops(L)
    L, vm, lg = insert_waits(L, vm0, lg0)
    L = insert_nops(L, hist)
    return L, vm, lg

def main():
    out = []
    P = Prog(); setup(P)
    P.s('s_and_b32', sTmp[0], sWave, 1)
    P.s('s_cmp_eq_u32', sTmp[0], 1)
    P.raw("s_cbranch_scc1 L_FOLDW", 'br', rd=['scc'])
    pre, _, _ = finalize(P.L)
    out += pre
    ends = []
    for isM in (True, False):
        P = Prog()
        fold_loads(P, isM)
        fold_compute(P, isM)
        L = schedule(P.L, name='foldM' if isM else 'foldW')
        P2 = Prog(); wait(P2, lg=0); ts(P2, 1); ts(P2, 7, grp='fold')
        L += P2.L
        if not isM: out.append(Ins("L_FOLDW:", 'label'))
        L, vm, lg = finalize(L, hist=pre[-4:])
        out += L
        ends.append(vm)
        if isM: out.append(Ins("s_branch L_JOIN", 'br'))
    out.append(Ins("L_JOIN:", 'label'))
    vm0 = ends[0] if len(ends[0]) >= len(ends[1]) else ends[1]
    print("pending at join:", ends, file=sys.stderr)
    P = Prog()
    P.raw('s_nop 7', 'raw'); P.raw('s_barrier', 'bar')
    ts(P, 2); ts(P, 8, grp='fold')
    early = (DEBUG != 'fold')
    L, vm0, lg0 = finalize(P.L, vm0=vm0)
    out += L
    P = Prog()
    read_weights(P, ('M1', 'W1') if early else ('M1', 'W1', 'M2', 'W2'))
    M0.cur = None
    for m in range(XEXCH):
        XQ.next(P, [V(29), V(30), V(31)], cost=48, lat=WLAT, rel=100 + 300 * m, prio=5000)
    L = schedule(P.L, name='exch')
    P = Prog()
    if not early:
        wait(P, lg=0)
        P.raw('s_barrier', 'bar')
    ts(P, 3); ts(P, 1, grp='T')
    L += P.L
    L, vm0, lg0 = finalize(L, vm0=vm0, lg0=lg0)
    out += L
    if DEBUG == 'fold':
        P = Prog()
        regs = [frag(m, j, s) for m in ('M1', 'W1', 'M2', 'W2') for j in range(6) for s in range(3)]
        dump_regs(P, regs, 72 * 1024)
        out += insert_nops(P.L)
    else:
        P = Prog()
        T = t_pools()
        t_consts(P, T)
        vw = V(0)
        P.v('v_lshlrev_b32', vw, 4, vL)
        P.v('v_add_u32', vw, hx(EXO + 2 * WREG), vw)
        allf = []
        for w, mat in ((0, 'M2'), (1, 'W2')):
            for j in range(6):
                for sx in range(3):
                    i = P.dsr('ds_read_b128', frag(mat, j, sx), vw, (3 * j + sx) * 1024 + WREG * w)
                    allf += frag(mat, j, sx).regs()
        M0.cur = None
        for tau in range(13):
            t_tile(P, T, tau)
            if tau in TSTAMP: ts(P, TSTAMP[tau], rd=[f"m:{tau}"], grp='T')
            if tau == BAR2_TILE:
                i = P.raw('s_barrier', 'bar', rd=allf + [f"o:t{tau}"] + [r for m in ('M1', 'W1') for j in range(6) for sx in range(3) for r in frag(m, j, sx).regs()], wr=['o:bar2'])
                i.prio = 3000
            sub = 0
            while XQ.n < 39 and XQ.n <= 3 * tau + 2 + XDIST and sub < XMAXT:
                if XQ.n >= 3 * NPRE and tau < BAR2_TILE: break
                aft = [f"o:t{tau}" + 'abc'[min(sub, 2)]] + (['o:bar2'] if XQ.n >= 3 * NPRE else [])
                XQ.next(P, T.dm, cost=32, lat=3000, after=aft, prio=3000); sub += 1
        assert XQ.n == 39, XQ.n
        ts(P, 4, rd=['m:12'])
        if DEBUG != 'x1':
            Q = s_pools()
            s_consts(P, Q)
            v2l(P, Q)
            for w in range(4): s_window(P, Q, w)
        import core
        if '--stalls' in sys.argv: core.STALLLOG = []
        L = schedule(P.L, name='main', window=WINDOW)
        if '--stalls' in sys.argv:
            for e in core.STALLLOG: print('STALL', e, file=sys.stderr)
        for _a in sys.argv:
            if _a.startswith('--abl='):
                for ab in _a.split('=')[1].split(','):
                    n0 = len(L)
                    op = lambda x: x.txt.split()[0]
                    fl = ('v_mul_f32', 'v_fma_f32', 'v_exp_f32', 'v_add_f32', 'v_max', 'v_cvt_pk', 'v_rcp', 'v_rsq', 'v_permlane')
                    if ab == 'store': L = [x for x in L if x.kind != 'vmst']
                    elif ab == 'exp':
                        for x in L:
                            if x.kind == 'trans':
                                x.txt = 'v_mov_b32 ' + x.txt.split(None, 1)[1]; x.kind = 'valu'
                    elif ab == 'perm': L = [x for x in L if x.kind != 'perm']
                    elif ab == 'cvt': L = [x for x in L if not op(x).startswith('v_cvt_pk')]
                    elif ab == 'cvtmov':
                        for x in L:
                            if op(x).startswith('v_cvt_pk'):
                                a_ = x.txt.split(None, 1)[1].split(', ')
                                x.txt = f"v_mov_b32 {a_[0]}, {a_[1]}"
                    elif ab == 'ds128': L = [x for x in L if op(x) != 'ds_read_b128']
                    elif ab == 'tr': L = [x for x in L if not op(x).startswith('ds_read_b64_tr')]
                    elif ab == 'mfma': L = [x for x in L if x.kind != 'mfma']
                    elif ab == 'fl': L = [x for x in L if not op(x).startswith(fl)]
                    elif ab == 'mulf': L = [x for x in L if not op(x).startswith(('v_mul_f32', 'v_fma_f32', 'v_add_f32', 'v_max'))]
                    elif ab == 'nop': NONOP.append(1)
                    print('ablation', ab, n0, '->', len(L), file=sys.stderr)
        L, vm, lg = finalize(L, vm0=vm0, lg0=lg0)
        if TIMEG == 'ev':
            ev0 = int([a for a in sys.argv if a.startswith('--ev=')][0].split('=')[1])
            L2 = []; ev = 0; k = 1
            for ins in L:
                isev = ('vmcnt' in ins.txt and ins.kind == 'wait') or ins.kind == 'bar'
                if isev and ev0 <= ev < ev0 + 4:
                    L2.append(Ins(f"s_memtime {TSR[k]}", 'salu')); k += 1
                    L2.append(ins)
                    L2.append(Ins(f"s_memtime {TSR[k]}", 'salu')); k += 1
                else: L2.append(ins)
                if isev: ev += 1
            L = L2
        out += L
        if DEBUG == 'x1':
            P = Prog(); P.raw('s_waitcnt vmcnt(0) lgkmcnt(0)', 'raw')
            dump_lds(P, WREG)
            out += insert_nops(P.L)
    if TIME:
        P = Prog()
        P.raw('s_waitcnt lgkmcnt(0)', 'raw')
        P.s('s_lshl_b32', sT0, sWG, 2); P.s('s_add_u32', sT0, sT0, sWave)
        P.s('s_lshl_b32', sT0, sT0, 6)
        P.v('v_mov_b32', V(0), 0)
        for k in range(9):
            P.v('v_mov_b32', V(20 + k), TSR[k][0])
            P.raw(f"buffer_store_dword v{20+k}, v0, {sDbg}, {sT0} offen offset:{4*k}", 'raw')
        out += insert_nops(P.L)
    if PROBE:
        P = Prog()
        P.raw('s_waitcnt vmcnt(0) lgkmcnt(0)', 'raw')
        P.raw("s_memrealtime s[86:87]", 'raw')
        P.raw('s_waitcnt lgkmcnt(0)', 'raw')
        P.raw("s_sub_u32 s84, s86, s98", 'raw')
        P.raw(f"s_cmp_gt_u32 s84, {PROBE}", 'raw'); P.raw("s_cbranch_scc0 L_END", 'raw')
        P.raw("L_SPIN:", 'raw')
        P.raw("s_memrealtime s[88:89]", 'raw')
        P.raw('s_waitcnt lgkmcnt(0)', 'raw')
        P.raw("s_sub_u32 s84, s88, s86", 'raw')
        P.raw("s_cmp_lt_u32 s84, 1500", 'raw'); P.raw("s_cbranch_scc1 L_SPIN", 'raw')
        out += P.L
    if '--delay' in sys.argv:
        P = Prog()
        P.raw("s_mov_b32 s88, 300", 'raw')
        P.raw("L_DELAY:", 'raw')
        for _ in range(16): P.raw("v_fma_f32 v20, v20, v21, v22", 'raw')
        P.raw("s_sub_u32 s88, s88, 1", 'raw'); P.raw("s_cmp_lg_u32 s88, 0", 'raw'); P.raw("s_cbranch_scc1 L_DELAY", 'raw')
        out += P.L
    if DBGCLK:
        P = Prog()
        P.raw('s_waitcnt vmcnt(0) lgkmcnt(0)', 'raw')
        P.raw("s_memtime s[84:85]", 'raw'); P.raw("s_memrealtime s[86:87]", 'raw')
        P.raw('s_waitcnt lgkmcnt(0)', 'raw')
        P.raw("s_sub_u32 s84, s84, s100", 'raw'); P.raw("s_sub_u32 s86, s86, s98", 'raw')
        P.raw("s_and_b32 s88, s2, 63", 'raw'); P.raw("s_cmp_eq_u32 s88, 0", 'raw'); P.raw("s_cbranch_scc0 L_END", 'raw')
        P.raw("s_cmp_eq_u32 s20, 0", 'raw'); P.raw("s_cbranch_scc0 L_END", 'raw')
        P.raw("s_lshr_b32 s88, s2, 6", 'raw'); P.raw("s_lshl_b32 s88, s88, 4", 'raw')
        P.raw("v_mov_b32 v20, s84", 'raw'); P.raw("v_mov_b32 v21, s86", 'raw'); P.raw("v_mov_b32 v22, s98", 'raw'); P.raw("v_mov_b32 v23, s100", 'raw')
        P.raw("v_mov_b32 v24, s88", 'raw')
        P.raw("s_mov_b64 exec, 1", 'raw')
        P.raw("global_store_dwordx4 v24, v[20:23], s[96:97]", 'raw')
        out += P.L
    out.append(Ins("L_END:", 'label'))
    out.append(Ins("s_endpgm", 'raw'))
    hdr = open('orig.s').read()
    head = hdr[:hdr.index('; @launch')]
    txt = head + f"; @launch grid=(256,1,1) block=(256,1,1) lds={LDS_TOTAL}\n"
    txt += '.amdgcn_target "amdgcn-amd-amdhsa--gfx950"\n.text\n.globl standalone__video_video_swin__vision_kernel\n.p2align 8\n'
    txt += '.type standalone__video_video_swin__vision_kernel,@function\nstandalone__video_video_swin__vision_kernel:\n'
    for ins in out:
        txt += (ins.txt if ins.kind == 'label' else '  ' + ins.txt) + '\n'
    txt += """.section .rodata,"a"
.p2align 6
.amdhsa_kernel standalone__video_video_swin__vision_kernel
  .amdhsa_next_free_vgpr 512
  .amdhsa_next_free_sgpr 102
  .amdhsa_accum_offset 256
  .amdhsa_group_segment_fixed_size 0
  .amdhsa_kernarg_size 64
  .amdhsa_user_sgpr_count 2
  .amdhsa_user_sgpr_kernarg_segment_ptr 1
  .amdhsa_system_sgpr_workgroup_id_x 1
.end_amdhsa_kernel
"""
    o = [a for a in sys.argv[1:] if not a.startswith('--')]
    open(o[0] if o else 'out.s', 'w').write(txt)
    print("instructions:", len(out), file=sys.stderr)

WINDOW = 700
TSTAMP = {0: 2, 1: 3, 3: 4, 5: 5, 7: 6, 9: 7, 12: 8}
BAR2_TILE = 1
if __name__ == '__main__': main()
```

```python
import sys, struct, math
from core import *

DEBUG = None
for a in sys.argv[1:]:
    if a.startswith('--debug='): DEBUG = a.split('=')[1]

def f2u(x): return struct.unpack('<I', struct.pack('<f', x))[0]
def hx(x): return f"0x{x & 0xffffffff:x}"

TPL = 9633792
ROWB = 43008
WREG = 39936
EXO = 21504
SPARE = 4 * WREG
LDS_TOTAL = 163840
NPRE = 7

def pos0(tau): return 48 if tau == 0 else 4 * (tau - 1)
def goff(pos): return pos * 192 + (pos // 7) * 41664

sKA = S(0, 2); sWG = S(2)
sX = S(4, 4); sO = S(8, 4); sW = S(12, 4); sWo = S(16, 4)
sWave = S(20); sWin = S(21); sWB = S(22); sT0 = S(23)
sIT = [S(24 + i) for i in range(6)]
sMt = [None, S(30, 2), S(32, 2), S(34, 2)]
sValid = S(36, 2)
sG0 = S(38, 2)
sCross = {}
_i = 40
for k in range(3):
    for th in (1, 2, 3):
        sCross[(k, th)] = S(_i, 2); _i += 2
s96 = S(58); sC = S(59); sK41664 = S(60)
sSo = [S(61 + i) for i in range(4)]
sTmp = [S(65 + i) for i in range(16)]
sPtr = S(84, 12)
sDbg = S(96, 4)
sDbg2 = S(76, 4)
CODEPF = '--nocodepf' not in sys.argv
WPF = '--nowpf' not in sys.argv
OTLB = 0
for _a in sys.argv:
    if _a.startswith('--otlb'): OTLB = int(_a.split('=')[1]) if '=' in _a else 1

VM1 = 224
def frag(mat, j, s):
    k = 3 * j + s
    if mat == 'M2': return A(4 * k, 4)
    if mat == 'W2': return A(72 + 4 * k, 4)
    if mat == 'W1': return A(144 + 4 * k, 4)
    if mat == 'M1': return A(216 + 4 * k, 4) if k < 10 else V(VM1 + 4 * (k - 10), 4)

vL = V(1); vN = V(2); vG = V(3)
vXA = V(4); vTR = V(5); vST = V(6)
vCst = [V(7), V(8), V(9)]; vCstX = [V(10), V(11), V(12)]
vEPS = V(13)
vOnes = V(16, 4)
vG16 = V(14)
vZero = V(15)

def setup(P):
    P.raw(f"s_cmp_ge_u32 s2, 256", 'salu', rd=['s2'], wr=['scc'])
    P.raw("s_cbranch_scc1 L_END", 'br', rd=['scc'])
    ts(P, 0)
    if PROBE: P.raw("s_memrealtime s[98:99]", 'raw')
    if DBGCLK:
        P.raw("s_memtime s[100:101]", 'raw'); P.raw("s_memrealtime s[98:99]", 'raw')
        P.raw("s_load_dwordx2 s[96:97], s[0:1], 48", 'raw')
    if CODEPF:
        P.raw("s_getpc_b64 s[4:5]", 'salu', wr=['s4', 's5'])
        P.label("L_PC")
        P.s('s_lshr_b32', S(6), sWG, 3); P.s('s_and_b32', S(6), S(6), 3); P.s('s_lshl_b32', S(6), S(6), 14)
        P.v('v_lshlrev_b32', V(2), 6, V(0))
        P.v('v_add_u32', V(2), S(6), V(2))
        P.raw("s_mov_b32 s7, L_END-L_PC", 'salu', wr=['s7'])
        P.v('v_min_u32', V(2), S(7), V(2))
        P.v('v_mov_b32', V(3), S(5))
        P.raw("v_add_co_u32 v2, vcc, s4, v2", 'valu', rd=['s4', 'v2'], wr=['v2', 'vcc'])
        P.raw("v_addc_co_u32 v3, vcc, 0, v3, vcc", 'valu', rd=['v3', 'vcc'], wr=['v3', 'vcc'])
        P.raw("global_load_dword v255, v[2:3], off", 'raw', rd=['v2', 'v3'])
    P.raw(f"s_load_dwordx8 s[84:91], s[0:1], 0", 'raw', wr=S(84, 8).regs())
    P.raw(f"s_load_dwordx4 s[92:95], s[0:1], 32", 'raw', wr=S(92, 4).regs())
    if DEBUG or TIME:
        P.raw(f"s_load_dwordx2 s[96:97], s[0:1], 56", 'raw', wr=S(96, 2).regs())
    P.v('v_and_b32', vL, 63, V(0))
    P.v('v_lshrrev_b32', V(20), 6, V(0))
    P.v('v_and_b32', vN, 15, V(0))
    P.v('v_readfirstlane_b32', sWave, V(20))
    P.v('v_lshrrev_b32', vG, 4, vL)
    P.v('v_lshlrev_b32', vG16, 4, vG)
    P.v('v_mov_b32', vZero, 0)
    P.s('s_lshl_b32', sT0, sWG, 2)
    P.s('s_add_u32', sT0, sT0, sWave)
    P.s('s_lshr_b32', sTmp[0], sT0, 5)
    P.s('s_and_b32', sTmp[1], sT0, 31)
    P.s('s_mul_i32', sTmp[0], sTmp[0], 301056)
    P.s('s_mul_i32', sTmp[1], sTmp[1], 1344)
    P.s('s_add_u32', sWin, sTmp[0], sTmp[1])
    P.s('s_mul_i32', sWB, sWave, WREG)
    for i in range(6): P.s('s_mov_b32', sIT[i], 9216 * i)
    P.s('s_mov_b32', s96, hx(f2u(1.0 / 96)))
    P.s('s_mov_b32', sC, hx(f2u(96 ** -0.5 * math.log2(math.e))))
    P.s('s_mov_b32', sK41664, 41664)
    dma_consts(P)
    lane_consts(P)
    P.s('s_lshr_b32', sTmp[4], sWG, 3); P.s('s_and_b32', sTmp[4], sTmp[4], 15); P.s('s_lshl_b32', sTmp[4], sTmp[4], 12)
    P.v('v_lshlrev_b32', V(20), 6, vL)
    P.v('v_mul_u32_u24', V(21), hx(576), vN)
    P.v('v_add_u32', V(21), V(21), vG16)
    P.v('v_lshlrev_b32', V(22), 4, vL)
    if OTLB:
        P.v('v_bfe_u32', V(23), vL, 3, 2)
        P.s('s_mov_b32', sTmp[5], TPL)
        P.v('v_mul_lo_u32', V(23), V(23), sTmp[5])
        P.v('v_and_b32', V(24), 7, vL)
        P.v('v_min_u32', V(24), 6, V(24))
        P.v('v_mul_u32_u24', V(24), hx(43008), V(24))
        P.v('v_add_u32', V(28), V(23), V(24))
        P.v('v_lshrrev_b32', V(24), 5, vL)
        P.v('v_mul_u32_u24', V(24), hx(1280), V(24))
        P.v('v_add_u32', V(28), V(28), V(24))
    P.raw("s_waitcnt lgkmcnt(0)", 'raw')
    x, wt, wot, wsp, wos, out = [sPtr[2 * i:2 * i + 2] for i in range(6)]
    P.s('s_mov_b32', sX[0], x[0]); P.s('s_mov_b32', sX[1], x[1]); P.s('s_mov_b32', sX[2], 38535168); P.s('s_mov_b32', sX[3], '0x20000')
    P.s('s_mov_b32', sO[0], out[0]); P.s('s_mov_b32', sO[1], out[1]); P.s('s_mov_b32', sO[2], 38535168); P.s('s_mov_b32', sO[3], '0x20000')
    P.s('s_cmp_lt_u32', sWave, 2)
    P.s('s_cselect_b32', sW[0], wt[0], wsp[0]); P.s('s_cselect_b32', sW[1], wt[1], wsp[1])
    P.s('s_mov_b32', sW[2], 55296); P.s('s_mov_b32', sW[3], '0x20000')
    P.s('s_cselect_b32', sWo[0], wot[0], wos[0]); P.s('s_cselect_b32', sWo[1], wot[1], wos[1])
    P.s('s_mov_b32', sWo[2], 18432); P.s('s_mov_b32', sWo[3], '0x20000')
    if DEBUG or TIME:
        P.s('s_mov_b32', sDbg[2], hx(268435456)); P.s('s_mov_b32', sDbg[3], '0x20000')
    if WPF:
        P.s('s_and_b32', sTmp[5], sWave, 1)
        P.s('s_cmp_eq_u32', sTmp[5], 0)
        P.s('s_cselect_b32', sDbg2[0], sW[0], sWo[0]); P.s('s_cselect_b32', sDbg2[1], sW[1], sWo[1])
        P.s('s_cselect_b32', sDbg2[2], sW[2], sWo[2]); P.s('s_mov_b32', sDbg2[3], '0x20000')
        P.bload('buffer_load_dword', V(254), V(20), sDbg2, sTmp[4])
    ts(P, 1, grp='fold')

def dma_consts(P):
    u, rho, q, t, p, c, tmp = [V(20 + i) for i in range(7)]
    P.s('s_mov_b32', sTmp[2], 43691)
    P.s('s_mov_b32', sTmp[3], TPL)
    for k in range(3):
        P.v('v_add_u32', u, 64 * k if 64 * k <= 64 else hx(64 * k), vL)
        P.v('v_mul_u32_u24', rho, sTmp[2], u)
        P.v('v_lshrrev_b32', rho, 19, rho)
        P.v('v_mul_u32_u24', q, 12, rho)
        P.v('v_sub_u32', q, u, q)
        P.v('v_lshrrev_b32', t, 2, rho)
        P.v('v_and_b32', p, 3, rho)
        P.v('v_xor_b32', c, q, t)
        P.v('v_lshlrev_b32', c, 4, c)
        P.v('v_mul_lo_u32', tmp, t, sTmp[3])
        P.v('v_add_u32', c, c, tmp)
        P.v('v_mul_u32_u24', tmp, hx(192), p)
        P.v('v_add_u32', c, c, tmp)
        if k: P.v('v_subrev_u32', vCst[k], hx(1024 * k), c)
        else: P.v('v_mov_b32', vCst[k], c)
        P.v('v_add_u32', vCstX[k], hx(41664), vCst[k])
        for th in (1, 2, 3):
            P.v('v_cmp_le_u32_e64', sCross[(k, th)], th, p)

class M0: cur = None
XMOD = '' if '--noxnt' in sys.argv else ' nt'
SMOD = ' nt' if '--snt' in sys.argv else ''
for _a in sys.argv:
    if _a.startswith('--smod='): SMOD = ' ' + _a.split('=')[1].replace('+', ' ')
    if _a.startswith('--xmod='): XMOD = ' ' + _a.split('=')[1].replace('+', ' ')
def dma_piece(P, tau, k, tmp, cost=None, lat=None, rel=0, after=(), prio=0):
    p0 = pos0(tau)
    th = None
    if tau != 0:
        for p in range(1, 4):
            if (p0 + p) // 7 != p0 // 7: th = p; break
    so = sTmp[8 + (tau % 3)]
    if k == 0: P.s('s_add_u32', so, sWin, hx(goff(p0))).rel = rel
    if M0.cur != ('x', tau):
        i = P.s('s_add_u32', 'm0', sWB, hx(3072 * tau)); i.rel = rel; i.rd += list(after); M0.cur = ('x', tau)
    if th is None: vo = vCst[k]
    else:
        vo = tmp[k]
        P.v('v_cndmask_b32_e64', vo, vCst[k], vCstX[k], sCross[(k, th)]).rel = rel
    i = P.dma(vo, sX, so, 1024 * k, f"d:{tau}.{k}", mod=XMOD)
    i.rd.append('o:ord'); i.wr.append('o:ord'); i.rd += list(after)
    if cost: i.cost = cost
    i.lat = lat; i.rel = rel; i.prio = prio
    return i
def xtags(tau): return [f"d:{tau}.{k}" for k in range(3)]

def dma_slot(P, tau, tmp):
    p0 = pos0(tau)
    th = None
    if tau != 0:
        for p in range(1, 4):
            if (p0 + p) // 7 != p0 // 7: th = p; break
    so = sTmp[8 + (tau % 4)]
    P.s('s_add_u32', so, sWin, hx(goff(p0)))
    P.s('s_add_u32', 'm0', sWB, hx(3072 * tau))
    for k in range(3):
        if th is None: vo = vCst[k]
        else:
            vo = tmp[k]
            P.v('v_cndmask_b32_e64', vo, vCst[k], vCstX[k], sCross[(k, th)])
        P.dma(vo, sX, so, 1024 * k, f"d:{tau}").rd.append('o:ord')

sTS = [S(66 + 2 * i, 2) for i in range(0)]
TSREG = 100
ENC = None
for _a in sys.argv:
    if _a.startswith('--enc='):
        _g, _k, _kind, _sh = _a.split('=')[1].split(','); ENC = (_g, int(_k), _kind, int(_sh))
def ts(P, k, rd=(), grp='main'):
    if ENC:
        if k == 0 and grp == 'main':
            P.add(Ins("s_memrealtime s[98:99]", 'raw')); P.add(Ins("s_memtime s[100:101]", 'raw'))
        elif (grp, k) == ENC[:2]:
            op = 's_memrealtime' if ENC[2] == 'r' else 's_memtime'
            i = P.add(Ins(f"{op} s[82:83]" if False else f"{op} s[96:97]", 'salu', rd=list(rd), wr=['s96', 's97'])); i.prio = 9000
        return
    if not TIME: return
    if k != 0 and grp != TIMEG: return
    r = TSR[k]
    i = P.add(Ins(f"s_memtime {r}", 'salu', rd=list(rd), wr=r.regs())); i.prio = 9000
TIME = any(a.startswith('--time') for a in sys.argv)
DBGCLK = '--dbgclk' in sys.argv
PROBE = 0
for _a in sys.argv:
    if _a.startswith('--probe='): PROBE = int(_a.split('=')[1])
TIMEG = 'fold' if '--time=fold' in sys.argv else ('T' if '--time=T' in sys.argv else ('ev' if '--time=ev' in sys.argv else 'main'))
TSR = {0: S(100, 2), 1: S(84, 2), 2: S(86, 2), 3: S(88, 2), 4: S(90, 2), 5: S(92, 2), 6: S(94, 2), 7: S(78, 2), 8: S(80, 2)}
def lane_consts(P):
    t, p, r, c, tmp, tmp2 = [V(20 + i) for i in range(6)]
    P.v('v_and_b32', t, 3, vN)
    P.v('v_lshrrev_b32', p, 2, vN)
    P.v('v_lshl_add_u32', tmp, t, 2, p)
    P.v('v_mul_u32_u24', tmp, hx(192), tmp)
    P.v('v_xor_b32', tmp2, vG, t)
    P.v('v_lshl_add_u32', tmp, tmp2, 4, tmp)
    P.v('v_add_u32', vXA, sWB, tmp)
    P.v('v_lshrrev_b32', r, 2, vN)
    P.v('v_and_b32', c, 3, vN)
    P.v('v_lshl_add_u32', tmp, r, 2, vG)
    P.v('v_mul_u32_u24', tmp, hx(192), tmp)
    P.v('v_xor_b32', tmp2, c, r)
    P.v('v_lshl_add_u32', tmp, tmp2, 4, tmp)
    P.v('v_add_u32', vTR, sWB, tmp)
    for e in (1, 2, 3): P.v('v_cmp_eq_u32_e64', sMt[e], e, t)
    P.v('v_cmp_eq_u32_e64', sValid, vG, p)
    P.v('v_cmp_eq_u32_e64', sG0, 0, vG)
    P.v('v_mul_u32_u24', tmp, hx(768), t)
    P.v('v_lshl_add_u32', tmp, p, 2, tmp)
    P.v('v_add_u32', tmp, sWB, tmp)
    P.v('v_add_u32', tmp, hx(384), tmp)
    P.v('v_lshlrev_b32', tmp2, 2, vL)
    P.v('v_add_u32', tmp2, hx(SPARE), tmp2)
    P.v('v_cndmask_b32_e64', vST, tmp2, tmp, sValid)
    P.v('v_mov_b32', vEPS, hx(f2u(1e-5)))
    for i in range(4): P.v('v_mov_b32', vOnes[i], hx(0x3f803f80))

XD = 32
RB = 176
def xd(it, ot): return V(XD + (it * 6 + ot) * 4, 4)
def rb(ot, sg): return V(RB + (ot * 3 + sg) * 4, 4)

WCOST = 130; WLAT = 1400
XEVERY = 5
for _a in sys.argv:
    if _a.startswith('--xevery='): XEVERY = int(_a.split('=')[1])
NXF = 21
XDIST = 10; XMAXT = 4; BAR0 = 4300; XEVERY = 1000; XREL0 = 6300; XSTEP = 360; XBURST = 10; XFOLD = 5; XEXCH = 3; XT = 2.5
for _a in sys.argv:
    if _a.startswith('--xrel='): XREL0, XSTEP, XBURST, XFOLD, XEXCH = map(int, _a.split('=')[1].split(','))
    if _a.startswith('--xevery='): XEVERY = int(_a.split('=')[1])
    if _a.startswith('--xt='): XT = float(_a.split('=')[1])
    if _a.startswith('--xdist='): XDIST, XMAXT = map(int, _a.split('=')[1].split(','))
    if _a.startswith('--bar0='): BAR0 = int(_a.split('=')[1])
def fold_loads(P, isM):
    vA = V(21); vB = V(22)
    aoff = 0 if isM else 384
    seq = []
    def wl(dst, so, off):
        def f():
            i = P.bload('buffer_load_dwordx4', dst, vA, sW, so, off)
            i.wr.append('o:ord'); i.rd.append('o:ord'); i.cost = WCOST; i.lat = WLAT; i.prio = 5000
        seq.append(f)
    if isM:
        for s in range(3): wl(A(72 + s * 4, 4), sIT[0], 192 + 64 * s)
        for it in range(6):
            for s in range(3): wl(A((it * 3 + s) * 4, 4), sIT[it], aoff + 64 * s)
        for ot in range(1, 6):
            for s in range(3): wl(A(72 + (ot * 3 + s) * 4, 4), sIT[ot], 192 + 64 * s)
    else:
        def wo(k):
            def f():
                g4 = k // 4
                if k % 4 == 0:
                    P.s('s_mov_b32', sTmp[5 + (g4 & 1)], hx(4096 * g4))
                if M0.cur != ('wo', g4):
                    P.s('s_add_u32', 'm0', sTmp[4], hx(4096 * g4)); M0.cur = ('wo', g4)
                i = P.dma(vB, sWo, sTmp[5 + (g4 & 1)], 1024 * (k % 4), f"d:wo{k}")
                i.wr.append('o:ord'); i.rd.append('o:ord'); i.cost = WCOST - 40; i.lat = WLAT; i.prio = 5000
            seq.append(f)
        P.s('s_add_u32', sTmp[4], sWB, hx(EXO))
        for k in range(18): wo(k)
        for it in range(6):
            for s in range(3): wl(A((it * 3 + s) * 4, 4), sIT[it], aoff + 64 * s)
    M0.cur = None
    XQ.n = 0
    tmps = [V(29), V(30), V(31)]
    for i, f in enumerate(seq):
        f()
        if (i + 1) % XEVERY == 0:
            XQ.next(P, tmps, cost=WCOST - 40, lat=WLAT, prio=5000)
    ts(P, 2, rd=['o:ord'], grp='fold')
    if BAR0:
        i = P.raw('s_barrier', 'bar', rd=['o:ord'], wr=['o:ord']); i.prio = 5000
        if not isM: i.rel = BAR0
    for m in range(XBURST - XQ.n):
        XQ.next(P, tmps, cost=64, lat=WLAT, prio=5000)
    if OTLB:
        i = P.s('s_mov_b32', 'm0', hx(SPARE + 1024)); i.rd.append('o:ord'); M0.cur = None
        i = P.add(Ins(f"buffer_load_dword {V(28)}, {sO}, {sWin} offen" + (' nt' if OTLB == 2 else '') + " lds", 'dma', rd=['v28', 'm0'] + sO.regs() + sWin.regs() + ['o:ord'], wr=['d:otlb', 'o:ord']))
        i.cost = 32; i.lat = WLAT; i.prio = 5000
    for m in range(XFOLD):
        XQ.next(P, tmps, cost=48, lat=WLAT, rel=XREL0 + XSTEP * m, prio=5000)

class XQ:
    n = 0
    @staticmethod
    def next(P, tmps, **kw):
        k = XQ.n; XQ.n += 1
        return dma_piece(P, k // 3, k % 3, tmps, **kw)

def fold_compute(P, isM):
    vW = V(22); vT = V(23); tmp = V(24); tmp2 = V(25); tmp3 = V(26)
    P.v('v_bfe_u32', tmp, vN, 2, 1)
    P.v('v_mul_u32_u24', vW, hx(3072), tmp)
    P.v('v_lshrrev_b32', tmp, 3, vN)
    P.v('v_lshlrev_b32', tmp, 6, tmp)
    P.v('v_add_u32', vW, vW, tmp)
    P.v('v_and_b32', tmp, 3, vN)
    P.v('v_lshl_add_u32', vW, tmp, 4, vW)
    P.v('v_lshrrev_b32', tmp, 1, vG)
    P.v('v_lshl_add_u32', vW, tmp, 8, vW)
    P.v('v_and_b32', tmp, 1, vG)
    P.v('v_lshl_add_u32', vW, tmp, 3, vW)
    P.v('v_add_u32', vW, sWB, vW)
    P.v('v_add_u32', vW, hx(EXO), vW)
    def woff(it, ot): return 6 * (ot >> 1) * 1024 + (ot & 1) * 128 + (it >> 1) * 1024 + (it & 1) * 512
    r = V(27); c = V(28)
    P.v('v_lshrrev_b32', r, 2, vN); P.v('v_and_b32', c, 3, vN)
    if not isM:
        P.v('v_lshl_add_u32', tmp, vG, 3, r)
        P.v('v_mul_u32_u24', tmp, hx(192), tmp)
        P.v('v_lshl_add_u32', vT, c, 3, tmp)
        P.v('v_add_u32', vT, sWB, vT)
        P.v('v_add_u32', vT, hx(EXO), vT)
        allwo = [f"d:wo{k}" for k in range(18)]
        for ot in range(6):
            for s in range(3):
                for hh in range(2):
                    rows = [32 * s + 4 * hh, 32 * s + 4 * hh + 24 + 3]
                    tags = [f"d:wo{k}" for k in range(rows[0] * 192 // 1024, min(17, ((rows[1] + 1) * 192 - 1) // 1024) + 1)]
                    P.dsr('ds_read_b64_tr_b16', A(72 + (ot * 3 + s) * 4 + 2 * hh, 2), vT, (32 * s + 4 * hh) * 192 + 32 * ot, mrd=tags + ['m:ex'])
    else:
        P.v('v_lshl_add_u32', tmp, vG, 2, r)
        P.v('v_lshlrev_b32', vT, 4, tmp)
        P.v('v_lshrrev_b32', tmp, 1, c)
        P.v('v_lshl_add_u32', vT, tmp, 8, vT)
        P.v('v_and_b32', tmp, 1, c)
        P.v('v_lshl_add_u32', vT, tmp, 3, vT)
        P.v('v_add_u32', vT, sWB, vT)
        P.v('v_add_u32', vT, hx(EXO), vT)
    for ot in range(6):
        for it in range(6):
            D = xd(it, ot)
            for s in range(3):
                P.mfma(D, A((it * 3 + s) * 4, 4), A(72 + (ot * 3 + s) * 4, 4), D if s else 0)
    ts(P, 3, rd=xd(0, 0).regs(), grp='fold')
    ts(P, 4, rd=[r for it in range(6) for ot in range(6) for r in xd(it, ot).regs()], grp='fold')
    for ot in range(6):
        for it in range(6):
            D = xd(it, ot); B = rb(ot, it >> 1)
            P.cvt(B[2 * (it & 1)], D[0], D[1]); P.cvt(B[2 * (it & 1) + 1], D[2], D[3])
    aD = [V(248, 4) if ot % 2 == 0 else V(252, 4) for ot in range(6)]
    aV = [V(20 + 0) for _ in range(6)]
    aS = [V(29), V(30), V(31), V(21), V(20), V(26)]
    for ot in range(6):
        D = aD[ot]
        for sg in range(3):
            P.mfma(D, vOnes, rb(ot, sg), D if sg else 0)
        P.v('v_mov_b32', aS[ot], D[0])
    ts(P, 5, rd=[r for a in aS for r in a.regs()], grp='fold')
    UV = A(144, 48)
    for i in range(48):
        if i % 4: P.v('v_accvgpr_write_b32', UV[i], 0)
    sNeg96 = sTmp[7]; sI9216 = sTmp[12]
    P.s('s_mov_b32', sNeg96, hx(f2u(-1.0 / 96)))
    one = '1.0'
    if isM:
        for ot in range(6):
            for it in range(6):
                B = rb(ot, it >> 1)
                P.dsw('ds_write_b64', vW, B[2 * (it & 1):2 * (it & 1) + 2], woff(it, ot), mwr=['m:ex'])
        for it in range(6):
            for so in range(3):
                B = V(RB + (it * 3 + so) * 4, 4)
                for hh in range(2):
                    P.dsr('ds_read_b64_tr_b16', B[2 * hh:2 * hh + 2], vT, (6 * so + 3 * hh + (it >> 1)) * 1024 + (it & 1) * 512, mrd=['m:ex'])
        cs = tmp
        P.v('v_add_f32', cs, aS[0], aS[1]); P.v('v_add_f32', tmp2, aS[2], aS[3]); P.v('v_add_f32', tmp2, tmp2, aS[4])
        P.v('v_add_f32', cs, cs, tmp2); P.v('v_add_f32', cs, cs, aS[5])
        for sh in (8, 4, 2, 1):
            P.v('v_add_f32_dpp', cs, cs, cs, mod=f"row_ror:{sh} row_mask:0xf bank_mask:0xf")
        P.s('s_mov_b32', sI9216, hx(f2u(1.0 / 9216)))
        P.v('v_mul_f32', cs, sI9216, cs)
        for ot in range(6):
            P.v('v_fma_f32', aS[ot], aS[ot], sNeg96, cs)
            P.cvt(aS[ot], aS[ot], one)
            P.v('v_accvgpr_write_b32', UV[24 + 4 * ot], aS[ot])
        for it in range(6):
            D = aD[it]
            for so in range(3):
                P.mfma(D, vOnes, V(RB + (it * 3 + so) * 4, 4), D if so else 0)
            u = V(25) if it % 2 else V(27)
            P.v('v_mul_f32', u, sNeg96, D[0])
            P.cvt(u, one, u)
            P.v('v_cndmask_b32_e64', u, 0, u, sG0)
            P.v('v_accvgpr_write_b32', UV[4 * it], u)
        Uf = lambda it: UV[4 * it:4 * it + 4]
    else:
        for ot in range(6):
            P.v('v_mul_f32', aS[ot], sNeg96, aS[ot])
            P.cvt(aS[ot], aS[ot], vZero)
            P.v('v_accvgpr_write_b32', UV[24 + 4 * ot], aS[ot])
        u = V(25)
        P.v('v_mov_b32', u, hx(0x3f80))
        P.v('v_cndmask_b32_e64', u, 0, u, sG0)
        P.v('v_accvgpr_write_b32', UV[0], u)
        Uf = lambda it: UV[0:4]
    ts(P, 6, rd=UV.regs(), grp='fold')
    for ot in range(6):
        for it in range(6):
            D = xd(it, ot)
            P.mfma(D, Uf(it), UV[24 + 4 * ot:28 + 4 * ot], D)
            B = rb(ot, it >> 1)
            P.cvt(B[2 * (it & 1)], D[0], D[1]); P.cvt(B[2 * (it & 1) + 1], D[2], D[3])
            P.dsw('ds_write_b64', vW, B[2 * (it & 1):2 * (it & 1) + 2], woff(it, ot), mwr=['m:ex'])

def read_weights(P, mats):
    va = [V(212), V(213), V(214), V(215)]
    P.v('v_lshlrev_b32', va[0], 4, vL)
    P.v('v_add_u32', va[0], hx(EXO), va[0])
    for w in range(1, 4): P.v('v_add_u32', va[w], hx(WREG * w), va[0])
    for w, mat in ((0, 'M1'), (1, 'W1'), (2, 'M2'), (3, 'W2')):
        if mat not in mats: continue
        for j in range(6):
            for s in range(3):
                P.dsr('ds_read_b128', frag(mat, j, s), va[w], (3 * j + s) * 1024)

class TP: pass
TDQ = 12; TDV = 0
for _a in sys.argv:
    if _a.startswith('--tdq='): TDQ, TDV = map(int, _a.split('=')[1].split(','))
def t_pools():
    T = TP()
    T.xf = Pool('v', 20, 12, 2)
    T.D = Pool('v', 44, 4, TDQ)
    T.Dv = Pool('v', 44 + 4 * TDQ, 4, TDV) if TDV else T.D
    T.Dp = Pool('v', 44 + 4 * (TDQ + TDV), 4, 12 - TDQ - TDV) if TDQ + TDV < 12 else T.D
    T.qB = Pool('v', 92, 12, 1)
    T.pvA = Pool('v', 104, 24, 2)
    T.sgm = Pool('v', 152, 12, 2)
    T.pB = Pool('v', 176, 4, 2)
    T.x1f = Pool('v', 184, 12, 1)
    T.tmp = Pool('v', 196, 8, 2)
    T.g2 = Pool('v', 212, 8, 1)
    T.dm = [V(220), V(221), V(222)]
    return T

def stats(P, G, Msum, tmp):
    d, a = tmp[0], tmp[1]
    P.v('v_cndmask_b32_e64', d, G[0], G[1], sMt[1])
    P.v('v_cndmask_b32_e64', d, d, G[2], sMt[2])
    P.v('v_cndmask_b32_e64', d, d, G[3], sMt[3])
    P.v('v_mul_f32', a, s96, Msum)
    P.v('v_fma_f32', d, Neg(a), Msum, d)
    P.v('v_fma_f32', d, d, s96, vEPS)
    P.v('v_rsq_f32', d, d)
    return d

def t_tile(P, T, tau):
    base = 3072 * tau
    xf = T.xf.get()
    for s in range(3):
        P.dsr('ds_read_b128', xf[4 * s:4 * s + 4], vXA, base + 64 * s, mrd=xtags(tau) + [f"m:{tau}"])
    X = lambda s: xf[4 * s:4 * s + 4]
    sgm = T.sgm.get(); Sd, G, M = sgm[0:4], sgm[4:8], sgm[8:12]
    for s in range(3): P.mfma(G, X(s), X(s), G if s else 0)
    P.L[-1].wr.append(f"o:t{tau}"); P.L[-1].wr.append(f"o:t{tau}a")
    for s in range(3): P.mfma(M, vOnes, X(s), M if s else 0)
    qB = T.qB.get()
    for j in range(6):
        D = T.D.get()
        for s in range(3): P.mfma(D, frag('M1', j, s), X(s), D if s else 0)
        if j == 4: P.L[-1].wr.append(f"o:t{tau}b")
        o = 4 * (j >> 1) + 2 * (j & 1)
        P.cvt(qB[o], D[0], D[1]); P.cvt(qB[o + 1], D[2], D[3])
    for s in range(3): P.mfma(Sd, X(s), qB[4 * s:4 * s + 4], Sd if s else 0)
    pvA = T.pvA.get()
    for j in range(6):
        D = T.Dv.get()
        for s in range(3): P.mfma(D, X(s), frag('W1', j, s), D if s else 0)
        if j == 4: P.L[-1].wr.append(f"o:t{tau}c")
        P.cvt(pvA[4 * j], D[0], D[1]); P.cvt(pvA[4 * j + 1], D[2], D[3])
        P.dsr('ds_read_b64_tr_b16', pvA[4 * j + 2:4 * j + 4], vTR, base + 64 * (j >> 1) + 8 * (j & 1), mrd=xtags(tau) + [f"m:{tau}"])
    tmp = T.tmp.get()
    r = stats(P, G, M[0], tmp)
    m, rq, nm, l, l2 = tmp[2], tmp[3], tmp[4], tmp[5], tmp[6]
    q = lambda e: f"quad_perm:[{e},{e},{e},{e}] row_mask:0xf bank_mask:0xf"
    for e in range(4): P.v('v_mul_f32_dpp', Sd[e], r, Sd[e], mod=q(e))
    P.v('v_max3_f32', m, Sd[0], Sd[1], Sd[2]); P.v('v_max_f32', m, m, Sd[3])
    P.v('v_mul_f32', rq, sC, r)
    P.v('v_mul_f32_e64', nm, Neg(m), rq)
    for e in range(4): P.v('v_fma_f32', Sd[e], Sd[e], rq, nm)
    for e in range(4): P.v('v_exp_f32', Sd[e], Sd[e])
    P.v('v_add_f32', l, Sd[0], Sd[1]); P.v('v_add_f32', l2, Sd[2], Sd[3]); P.v('v_add_f32', l, l, l2)
    P.v('v_rcp_f32', l, l)
    for e in range(4): P.v('v_mul_f32_dpp', Sd[e], r, Sd[e], mod=q(e))
    for e in range(4): P.v('v_mul_f32', Sd[e], Sd[e], l)
    pB = T.pB.get()
    P.cvt(Sd[0], Sd[0], Sd[1]); P.cvt(Sd[2], Sd[2], Sd[3])
    P.v('v_cndmask_b32_e64', pB[0], 0, Sd[0], sValid)
    P.v('v_cndmask_b32_e64', pB[1], 0, Sd[2], sValid)
    x1f = T.x1f.get()
    for j in range(6):
        D = T.Dp.get()
        P.mfma(D, pvA[4 * j:4 * j + 4], pB, 0)
        o = 4 * (j >> 1) + 2 * (j & 1)
        P.cvt(x1f[o], D[0], D[1]); P.cvt(x1f[o + 1], D[2], D[3])
    for s in range(3):
        P.dsw('ds_write_b128', vXA, x1f[4 * s:4 * s + 4], base + 64 * s, mwr=[f"m:{tau}"])
    g2 = T.g2.get(); G2, M2 = g2[0:4], g2[4:8]
    for s in range(3): P.mfma(G2, x1f[4 * s:4 * s + 4], x1f[4 * s:4 * s + 4], G2 if s else 0)
    for s in range(3): P.mfma(M2, vOnes, x1f[4 * s:4 * s + 4], M2 if s else 0)
    r2 = stats(P, G2, M2[0], [M2[1], M2[2]])
    P.dsw('ds_write_b32', vST, r2, 4 * pos0(tau), mwr=['m:st'], mrd=['m:0'])


sM = S(82, 2)
def onehot_pair(P, dst, d, lo, val, dh):
    P.v('v_and_b32', val, 1, d)
    P.v('v_lshlrev_b32', val, 4, val)
    P.v('v_lshlrev_b32', val, val, vC3f80)
    P.v('v_ashrrev_i32', dh, 1, d)
    P.v('v_cmp_eq_i32_e64', sM, lo // 2, dh)
    P.v('v_cndmask_b32_e64', dst, 0, val, sM)

vC3f80 = V(223)
def t_consts(P, T):
    d = V(220); a = V(221); b = V(222)
    P.v('v_mov_b32', vC3f80, hx(0x3f80))
    P.v('v_lshlrev_b32', d, 2, vG)
    P.v('v_sub_u32', d, vN, d)
    for k in range(2):
        pB = V(176 + 4 * k, 4)
        for h in range(2):
            onehot_pair(P, pB[2 + h], d, 2 * h, a, b)

class SP: pass
SDQ = 4
for _a in sys.argv:
    if _a.startswith('--sdq='): SDQ = int(_a.split('=')[1])
def s_pools():
    Q = SP()
    Q.V2A = V(20, 48)
    Q.D = Pool('v', 68, 4, SDQ)
    Q.Dp = Pool('v', 68 + 4 * SDQ, 4, 8 - SDQ)
    Q.XQ = Pool('v', 100, 12, 2)
    Q.qB = Pool('v', 124, 12, 1)
    Q.sD = Pool('v', 136, 16, 2)
    Q.PB = Pool('v', 168, 8, 2)
    Q.RK = V(184, 16)
    Q.tmp = Pool('v', 200, 8, 2)
    Q.outp = Pool('v', 216, 12, 1)
    Q.XK = Pool('a', 144, 48, 2)
    Q.K0 = V(228); Q.Q3 = V(229); Q.TA = [V(230 + j) for j in range(4)]; Q.OA = [V(234 + j) for j in range(4)]
    Q.vRK = V(238); Q.vRQ = V(239); Q.vWB = V(240); Q.XL0 = V(241)
    Q.cL = V(244, 4); Q.cD0 = V(242); Q.cD1 = V(243)
    Q.Kw = Pool('v', 248, 1, 2); Q.XLw = Pool('v', 250, 1, 1); Q.Qw = Pool('v', 251, 1, 2); Q.Tw = Pool('v', 253, 1, 2)
    Q.t0 = V(4); Q.t1 = V(5); Q.t2 = V(6); Q.t3 = V(7); Q.t4 = V(8)
    return Q

def s_consts(P, Q):
    t0, t1, t2, t3, t4 = Q.t0, Q.t1, Q.t2, Q.t3, Q.t4
    P.v('v_mov_b32', Q.vWB, sWB)
    P.v('v_add_u32', Q.XL0, Q.vWB, vG16)
    P.v('v_lshrrev_b32', t0, 2, vN); P.v('v_and_b32', t1, 3, vN)
    P.v('v_mul_u32_u24', t2, hx(3072), t0)
    P.v('v_mul_u32_u24', t3, hx(192), t1)
    P.v('v_add3_u32', t2, t2, t3, Q.XL0)
    P.v('v_add_u32', Q.K0, hx(3072), t2)
    P.v('v_add_u32', t2, hx(27648), Q.K0)
    P.v('v_cmp_le_u32_e64', sM, 12, vN)
    P.v('v_cndmask_b32_e64', Q.Q3, t2, Q.XL0, sM)
    P.v('v_lshl_add_u32', t2, vG, 2, t0)
    P.v('v_add_u32', t3, -1, t2)
    P.v('v_ashrrev_i32', t4, 2, t3)
    P.v('v_mul_i32_i24', t4, hx(3072), t4)
    P.v('v_and_b32', t3, 3, t3)
    P.v('v_mul_u32_u24', t3, hx(192), t3)
    P.v('v_lshl_add_u32', t1, t1, 4, Q.vWB)
    P.v('v_add3_u32', t3, t3, t4, t1)
    P.v('v_add_u32', t3, hx(3072), t3)
    P.v('v_add_u32', t4, hx(192), t1)
    sS0 = S(40, 2); sS13 = S(42, 2)
    P.v('v_cmp_eq_u32_e64', sS0, 0, t2)
    P.v('v_cmp_le_u32_e64', sS13, 13, t2)
    for j in range(4):
        if j: P.v('v_add_u32', t3, hx(9216), t3)
        if j < 3:
            P.v('v_cndmask_b32_e64', Q.TA[j], t3, t4, sS0)
        else:
            P.v('v_cndmask_b32_e64', Q.TA[j], t3, t1, sS13)
            P.v('v_cndmask_b32_e64', Q.TA[j], Q.TA[j], t4, sS0)
    for j in range(4):
        P.v('v_add_u32', t0, 12 * j, vN)
        P.v('v_mul_u32_u24', t2, 37, t0)
        P.v('v_lshrrev_b32', t2, 8, t2)
        P.v('v_mul_u32_u24', t2, sK41664, t2)
        P.v('v_mul_u32_u24', t0, hx(192), t0)
        P.v('v_add3_u32', t0, t0, t2, vG16)
        P.v('v_cmp_gt_u32_e64', sM, 12 if j < 3 else 13, vN)
        P.v('v_mov_b32', t2, hx(0x7f000000))
        P.v('v_cndmask_b32_e64', Q.OA[j], t2, t0, sM)
    P.v('v_add_u32', Q.vRK, hx(384), Q.XL0)
    P.v('v_lshl_add_u32', t0, vN, 2, Q.vWB)
    P.v('v_add_u32', Q.vRQ, hx(384), t0)
    P.v('v_mov_b32', t0, hx(0xff800000))
    P.v('v_cndmask_b32_e64', Q.cL[0], t0, 0, sG0)
    for e in (1, 2, 3): P.v('v_mov_b32', Q.cL[e], 0)
    P.v('v_lshlrev_b32', t0, 2, vG)
    P.v('v_sub_u32', t0, vN, t0)
    P.v('v_add_u32', t0, 1, t0)
    P.v('v_cmp_eq_u32_e64', sM, 0, t0)
    P.v('v_cndmask_b32_e64', t1, 0, 1.0, sM)
    P.v('v_cndmask_b32_e64', Q.cD0, t1, 0, sG0)
    P.v('v_cmp_eq_u32_e64', sM, 1, t0)
    P.v('v_cndmask_b32_e64', Q.cD1, 0, 1.0, sM)
    P.v('v_mov_b32', vC3f80, hx(0x3f80)) if False else None
    P.v('v_mov_b32', t4, hx(0x3f80))
    for k in range(2):
        dst = V(168 + 8 * k + 7)
        P.v('v_and_b32', t1, 1, t0)
        P.v('v_lshlrev_b32', t1, 4, t1)
        P.v('v_lshlrev_b32', t1, t1, t4)
        P.v('v_ashrrev_i32', t2, 1, t0)
        P.v('v_cmp_eq_i32_e64', sM, 1, t2)
        P.v('v_cndmask_b32_e64', dst, 0, t1, sM)
    for w in range(4):
        P.s('s_add_u32', sSo[w], sWin, hx(TPL * w))

CPF2 = []
for _a in sys.argv:
    if _a.startswith('--cpf2='): CPF2 = _a.split('=')[1].split(',')
class CPN: n = 0
def code_pf(P, tmp, after=(), nk=2):
    k = CPN.n; CPN.n += 1
    pc = S(24, 2); sR = S(26)
    a, b, o = tmp[0], tmp[1], tmp[2]
    assert b.i == a.i + 1 and a.i % 2 == 0
    i = P.add(Ins(f"s_getpc_b64 {pc}\nL_PCX{k}:", 'salu', rd=list(after), wr=pc.regs()))
    P.add(Ins(f"s_mov_b32 {sR}, L_END-L_PCX{k}-4", 'salu', rd=list(after), wr=sR.regs()))
    P.s('s_lshl_b32', S(27), sWave, 12)
    i = P.s('s_mov_b32', 'm0', hx(SPARE + 1024)); i.rd += list(after); M0.cur = None
    for q in range(nk):
        P.v('v_lshlrev_b32', o, 6, vL)
        P.v('v_add_u32', o, S(27), o)
        if q: P.v('v_add_u32', o, hx(16384 * q), o)
        P.v('v_min_u32', o, sR, o)
        P.add(Ins(f"v_add_co_u32 {a}, vcc, {pc[0]}, {o}", 'valu', rd=[str(pc[0]), str(o)], wr=[str(a), 'vcc']))
        P.v('v_mov_b32', b, pc[1])
        P.add(Ins(f"v_addc_co_u32 {b}, vcc, 0, {b}, vcc", 'valu', rd=[str(b), 'vcc'], wr=[str(b), 'vcc']))
        i = P.add(Ins(f"global_load_lds_dword {R('v', a.i, 2)}, off", 'dma', rd=[str(a), str(b), 'm0'], wr=[f'd:cpf{k}.{q}']))
        i.cost = 32; i.lat = 1500

def v2l(P, Q):
    t0, t1 = Q.t2, Q.t3
    XL = Q.XQ.get()
    P.v('v_and_b32', t0, 3, vN)
    P.v('v_xor_b32', t1, vG, t0)
    P.v('v_lshlrev_b32', t1, 4, t1)
    P.v('v_mul_u32_u24', t0, hx(768), t0)
    P.v('v_add3_u32', t0, t0, t1, Q.vWB)
    for s in range(3):
        P.dsr('ds_read_b128', XL[4 * s:4 * s + 4], t0, 64 * s, mrd=['m:0'])
    ob = Q.outp.get()
    for j in range(6):
        D = Q.D.get()
        for s in range(3): P.mfma(D, frag('W2', j, s), XL[4 * s:4 * s + 4], D if s else 0)
        o = 4 * (j >> 1) + 2 * (j & 1)
        P.cvt(ob[o], D[0], D[1]); P.cvt(ob[o + 1], D[2], D[3])
    for s in range(3):
        P.dsw('ds_write_b128', t0, ob[4 * s:4 * s + 4], 192 + 64 * s, mwr=['m:v2l'], mrd=['m:0'])

def s_window(P, Q, w):
    XK = Q.XK.get()
    if w:
        Kw = Q.Kw.get(); P.v('v_xor_b32', Kw, 16 * w, Q.K0)
        XLw = Q.XLw.get(); P.v('v_xor_b32', XLw, 16 * w, Q.XL0)
    else:
        Kw = Q.K0; XLw = Q.XL0
    xk = lambda kt, s: XK[12 * kt + 4 * s:12 * kt + 4 * s + 4]
    for kt in range(3):
        for s in range(3):
            P.dsr('ds_read_b128', xk(kt, s), Kw, 768 * w + 12288 * kt + 64 * s, mrd=[f"m:{4*kt+1+i}" for i in range(4)])
    for s in range(3):
        P.dsr('ds_read_b128', xk(3, s), XLw, 768 * w + 64 * s, mrd=['m:0'])
    RK = Q.RK
    for kt in range(3):
        P.dsr('ds_read_b128', RK[4 * kt:4 * kt + 4], Q.vRK, 768 * w + 64 * kt, mrd=['m:st'])
    P.dsr('ds_read_b32', RK[12], Q.vWB, 768 * w + 384 + 192, mrd=['m:st'])
    V2A = Q.V2A
    def v2a():
        for kt in range(3):
            for j in range(6):
                D = Q.Dp.get()
                for s in range(3): P.mfma(D, xk(kt, s), frag('W2', j, s), D if s else 0)
                o = 8 * j + 4 * (kt >> 1) + 2 * (kt & 1)
                P.cvt(V2A[o], D[0], D[1]); P.cvt(V2A[o + 1], D[2], D[3])
    for jq in range(4):
        XQ = Q.XQ.get()
        slots = sorted(set((((min(12 * jq + n, 48)) >> 2) + 1) % 13 for n in range(16)))
        mr = [f"m:{x}" for x in slots]
        if jq < 3:
            qa, qoff = Kw, 9216 * jq
        else:
            qoff = 0
            if w:
                qa = Q.Qw.get(); P.v('v_xor_b32', qa, 16 * w, Q.Q3)
            else: qa = Q.Q3
        for s in range(3):
            P.dsr('ds_read_b128', XQ[4 * s:4 * s + 4], qa, 768 * w + qoff + 64 * s, mrd=mr)
        tmp = Q.tmp.get()
        rq, m, y, nm, l, l2, l3 = tmp[0], tmp[1], tmp[2], tmp[3], tmp[4], tmp[5], tmp[6]
        P.dsr('ds_read_b32', rq, Q.vRQ, 768 * w + 48 * jq, mrd=['m:st'])
        qB = Q.qB.get()
        for j in range(6):
            D = Q.D.get()
            for s in range(3): P.mfma(D, frag('M2', j, s), XQ[4 * s:4 * s + 4], D if s else 0)
            o = 4 * (j >> 1) + 2 * (j & 1)
            P.cvt(qB[o], D[0], D[1]); P.cvt(qB[o + 1], D[2], D[3])
        SD = Q.sD.get()
        for kt in range(4):
            D = SD[4 * kt:4 * kt + 4]
            for s in range(3):
                P.mfma(D, xk(kt, s), qB[4 * s:4 * s + 4], D if s else (Q.cL if kt == 3 else 0))
        if jq == 0: v2a()
        if w:
            ta = Q.Tw.get(); P.v('v_xor_b32', ta, 16 * w, Q.TA[jq])
        else: ta = Q.TA[jq]
        for j in range(6):
            P.dsr('ds_read_b64_tr_b16', V2A[8 * j + 6:8 * j + 8], ta, 768 * w + 64 * (j >> 1) + 8 * (j & 1), mrd=mr + ['m:v2l', 'm:0'])
        vals = [SD[i] for i in range(13)]
        rks = [RK[i] for i in range(13)]
        P.v('v_mul_f32', rq, sC, rq)
        for i in range(13): P.v('v_mul_f32', vals[i], vals[i], rks[i])
        P.v('v_max3_f32', m, vals[0], vals[1], vals[2])
        P.v('v_max3_f32', y, vals[3], vals[4], vals[5])
        P.v('v_max3_f32', nm, vals[6], vals[7], vals[8])
        P.v('v_max3_f32', l, vals[9], vals[10], vals[11])
        P.v('v_max3_f32', m, m, y, nm)
        P.v('v_max3_f32', m, m, l, vals[12])
        for op in ('v_permlane32_swap_b32', 'v_permlane16_swap_b32'):
            P.v('v_mov_b32', y, m)
            P.v(op, m, y)
            P.v('v_max_f32', m, m, y)
        P.v('v_mul_f32_e64', nm, Neg(m), rq)
        for i in range(13): P.v('v_fma_f32', vals[i], vals[i], rq, nm)
        for i in range(13): P.v('v_exp_f32', vals[i], vals[i])
        P.v('v_add_f32', l, vals[0], vals[1]); P.v('v_add_f32', l2, vals[2], vals[3]); P.v('v_add_f32', l3, vals[4], vals[5])
        P.v('v_add_f32', m, vals[6], vals[7]); P.v('v_add_f32', y, vals[8], vals[9]); P.v('v_add_f32', nm, vals[10], vals[11])
        P.v('v_add_f32', l, l, l2); P.v('v_add_f32', l3, l3, m); P.v('v_add_f32', y, y, nm)
        P.v('v_add_f32', l, l, l3); P.v('v_add_f32', y, y, vals[12]); P.v('v_add_f32', l, l, y)
        for op in ('v_permlane32_swap_b32', 'v_permlane16_swap_b32'):
            P.v('v_mov_b32', y, l)
            P.v(op, l, y)
            P.v('v_add_f32', l, l, y)
        P.v('v_rcp_f32', l, l)
        for i in range(13): P.v('v_mul_f32', vals[i], vals[i], rks[i])
        for i in range(12): P.v('v_mul_f32', vals[i], vals[i], l)
        P.v('v_fma_f32', vals[12], vals[12], l, Q.cD0)
        PB = Q.PB.get()
        for i in range(6): P.cvt(PB[i], vals[2 * i], vals[2 * i + 1])
        P.cvt(PB[6], vals[12], Q.cD1)
        ob = Q.outp.get()
        for j in range(6):
            D = Q.Dp.get()
            P.mfma(D, V2A[8 * j:8 * j + 4], PB[0:4], 0)
            P.mfma(D, V2A[8 * j + 4:8 * j + 8], PB[4:8], D)
            o = 4 * (j >> 1) + 2 * (j & 1)
            P.cvt(ob[o], D[0], D[1]); P.cvt(ob[o + 1], D[2], D[3])
        for s in range(3):
            P.bstore('buffer_store_dwordx4', ob[4 * s:4 * s + 4], Q.OA[jq], sO, sSo[w], 64 * s, mod=SMOD).wr.append(f"o:w{w}")
    ts(P, 5 + w, rd=[f"o:w{w}"])

def dbg_srd(P):
    P.s('s_mov_b32', sDbg[0], S(96)) if False else None

def dump_regs(P, regs4, slot_bytes):
    va = V(0)
    P.s('s_lshl_b32', sT0, sWG, 2); P.s('s_add_u32', sT0, sT0, sWave)
    P.s('s_mul_i32', sT0, sT0, slot_bytes)
    P.v('v_lshlrev_b32', va, 4, vL)
    for k, r in enumerate(regs4):
        P.s('s_add_u32', sTmp[0], sT0, hx(1024 * k))
        P.bstore('buffer_store_dwordx4', r, va, sDbg, sTmp[0], 0)
        P.raw('s_waitcnt vmcnt(0)', 'raw')

def dump_lds(P, nbytes):
    va = V(0); vb = V(20); d = V(24, 4)
    P.s('s_lshl_b32', sT0, sWG, 2); P.s('s_add_u32', sT0, sT0, sWave)
    P.s('s_mul_i32', sT0, sT0, nbytes)
    P.v('v_lshlrev_b32', va, 4, vL)
    P.v('v_add_u32', vb, sWB, va)
    for k in range(nbytes // 1024):
        P.raw(f"ds_read_b128 {d}, {vb} offset:{1024*k}", 'raw')
        P.raw('s_waitcnt lgkmcnt(0)', 'raw')
        P.s('s_add_u32', sTmp[0], sT0, hx(1024 * k))
        P.raw(f"buffer_store_dwordx4 {d}, {va}, {sDbg}, {sTmp[0]} offen", 'raw')
        P.raw('s_waitcnt vmcnt(0)', 'raw')

NONOP = []
def finalize(L, vm0=(), lg0=(), hist=()):
    L = strip_nops(L)
    L, vm, lg = insert_waits(L, vm0, lg0)
    L = insert_nops(L, hist)
    return L, vm, lg

def main():
    out = []
    P = Prog(); setup(P)
    P.s('s_and_b32', sTmp[0], sWave, 1)
    P.s('s_cmp_eq_u32', sTmp[0], 1)
    P.raw("s_cbranch_scc1 L_FOLDW", 'br', rd=['scc'])
    pre, _, _ = finalize(P.L)
    out += pre
    ends = []
    for isM in (True, False):
        P = Prog()
        fold_loads(P, isM)
        fold_compute(P, isM)
        L = schedule(P.L, name='foldM' if isM else 'foldW')
        P2 = Prog(); wait(P2, lg=0); ts(P2, 1); ts(P2, 7, grp='fold')
        L += P2.L
        if not isM: out.append(Ins("L_FOLDW:", 'label'))
        L, vm, lg = finalize(L, hist=pre[-4:])
        out += L
        ends.append(vm)
        if isM: out.append(Ins("s_branch L_JOIN", 'br'))
    out.append(Ins("L_JOIN:", 'label'))
    vm0 = ends[0] if len(ends[0]) >= len(ends[1]) else ends[1]
    print("pending at join:", ends, file=sys.stderr)
    P = Prog()
    P.raw('s_nop 7', 'raw'); P.raw('s_barrier', 'bar')
    ts(P, 2); ts(P, 8, grp='fold')
    early = (DEBUG != 'fold')
    L, vm0, lg0 = finalize(P.L, vm0=vm0)
    out += L
    P = Prog()
    read_weights(P, ('M1', 'W1') if early else ('M1', 'W1', 'M2', 'W2'))
    M0.cur = None
    for m in range(XEXCH):
        XQ.next(P, [V(29), V(30), V(31)], cost=48, lat=WLAT, rel=100 + 300 * m, prio=5000)
    L = schedule(P.L, name='exch')
    P = Prog()
    if not early:
        wait(P, lg=0)
        P.raw('s_barrier', 'bar')
    ts(P, 3); ts(P, 1, grp='T')
    L += P.L
    L, vm0, lg0 = finalize(L, vm0=vm0, lg0=lg0)
    out += L
    if DEBUG == 'fold':
        P = Prog()
        regs = [frag(m, j, s) for m in ('M1', 'W1', 'M2', 'W2') for j in range(6) for s in range(3)]
        dump_regs(P, regs, 72 * 1024)
        out += insert_nops(P.L)
    else:
        P = Prog()
        T = t_pools()
        t_consts(P, T)
        vw = V(0)
        P.v('v_lshlrev_b32', vw, 4, vL)
        P.v('v_add_u32', vw, hx(EXO + 2 * WREG), vw)
        allf = []
        for w, mat in ((0, 'M2'), (1, 'W2')):
            for j in range(6):
                for sx in range(3):
                    i = P.dsr('ds_read_b128', frag(mat, j, sx), vw, (3 * j + sx) * 1024 + WREG * w)
                    allf += frag(mat, j, sx).regs()
        M0.cur = None
        for tau in range(13):
            t_tile(P, T, tau)
            if tau in TSTAMP: ts(P, TSTAMP[tau], rd=[f"m:{tau}"], grp='T')
            if tau == BAR2_TILE:
                i = P.raw('s_barrier', 'bar', rd=allf + [f"o:t{tau}"] + [r for m in ('M1', 'W1') for j in range(6) for sx in range(3) for r in frag(m, j, sx).regs()], wr=['o:bar2'])
                i.prio = 3000
            sub = 0
            while XQ.n < 39 and XQ.n <= 3 * tau + 2 + XDIST and sub < XMAXT:
                if XQ.n >= 3 * NPRE and tau < BAR2_TILE: break
                aft = [f"o:t{tau}" + 'abc'[min(sub, 2)]] + (['o:bar2'] if XQ.n >= 3 * NPRE else [])
                XQ.next(P, T.dm, cost=32, lat=3000, after=aft, prio=3000); sub += 1
        assert XQ.n == 39, XQ.n
        ts(P, 4, rd=['m:12'])
        if DEBUG != 'x1':
            Q = s_pools()
            if 's' in CPF2: code_pf(P, [V(220), V(221), V(222)], after=['m:12'])
            s_consts(P, Q)
            v2l(P, Q)
            for w in range(4):
                if f'w{w}' in CPF2: code_pf(P, [V(254), V(255), V(253)], after=[f'o:w{w-1}'], nk=2 if w < 2 else 1)
                s_window(P, Q, w)
        import core
        if '--stalls' in sys.argv: core.STALLLOG = []
        L = schedule(P.L, name='main', window=WINDOW)
        if '--stalls' in sys.argv:
            for e in core.STALLLOG: print('STALL', e, file=sys.stderr)
        for _a in sys.argv:
            if _a.startswith('--abl='):
                for ab in _a.split('=')[1].split(','):
                    n0 = len(L)
                    op = lambda x: x.txt.split()[0]
                    fl = ('v_mul_f32', 'v_fma_f32', 'v_exp_f32', 'v_add_f32', 'v_max', 'v_cvt_pk', 'v_rcp', 'v_rsq', 'v_permlane')
                    if ab == 'store': L = [x for x in L if x.kind != 'vmst']
                    elif ab == 'exp':
                        for x in L:
                            if x.kind == 'trans':
                                x.txt = 'v_mov_b32 ' + x.txt.split(None, 1)[1]; x.kind = 'valu'
                    elif ab == 'perm': L = [x for x in L if x.kind != 'perm']
                    elif ab == 'cvt': L = [x for x in L if not op(x).startswith('v_cvt_pk')]
                    elif ab == 'cvtmov':
                        for x in L:
                            if op(x).startswith('v_cvt_pk'):
                                a_ = x.txt.split(None, 1)[1].split(', ')
                                x.txt = f"v_mov_b32 {a_[0]}, {a_[1]}"
                    elif ab == 'ds128': L = [x for x in L if op(x) != 'ds_read_b128']
                    elif ab == 'tr': L = [x for x in L if not op(x).startswith('ds_read_b64_tr')]
                    elif ab == 'mfma': L = [x for x in L if x.kind != 'mfma']
                    elif ab == 'fl': L = [x for x in L if not op(x).startswith(fl)]
                    elif ab == 'mulf': L = [x for x in L if not op(x).startswith(('v_mul_f32', 'v_fma_f32', 'v_add_f32', 'v_max'))]
                    elif ab == 'nop': NONOP.append(1)
                    print('ablation', ab, n0, '->', len(L), file=sys.stderr)
        L, vm, lg = finalize(L, vm0=vm0, lg0=lg0)
        if TIMEG == 'ev':
            ev0 = int([a for a in sys.argv if a.startswith('--ev=')][0].split('=')[1])
            L2 = []; ev = 0; k = 1
            for ins in L:
                isev = ('vmcnt' in ins.txt and ins.kind == 'wait') or ins.kind == 'bar'
                if isev and ev0 <= ev < ev0 + 4:
                    L2.append(Ins(f"s_memtime {TSR[k]}", 'salu')); k += 1
                    L2.append(ins)
                    L2.append(Ins(f"s_memtime {TSR[k]}", 'salu')); k += 1
                else: L2.append(ins)
                if isev: ev += 1
            L = L2
        out += L
        if DEBUG == 'x1':
            P = Prog(); P.raw('s_waitcnt vmcnt(0) lgkmcnt(0)', 'raw')
            dump_lds(P, WREG)
            out += insert_nops(P.L)
    if TIME:
        P = Prog()
        if '--tend' in sys.argv:
            P.raw(f's_memtime {TSR[2]}', 'raw')
            P.raw('s_waitcnt vmcnt(0)', 'raw')
            P.raw(f's_memtime {TSR[1]}', 'raw')
        P.raw('s_waitcnt lgkmcnt(0)', 'raw')
        P.s('s_lshl_b32', sT0, sWG, 2); P.s('s_add_u32', sT0, sT0, sWave)
        P.s('s_lshl_b32', sT0, sT0, 6)
        P.v('v_mov_b32', V(0), 0)
        for k in range(9):
            P.v('v_mov_b32', V(20 + k), TSR[k][0])
            P.raw(f"buffer_store_dword v{20+k}, v0, {sDbg}, {sT0} offen offset:{4*k}", 'raw')
        out += insert_nops(P.L)
    if PROBE:
        P = Prog()
        P.raw('s_waitcnt vmcnt(0) lgkmcnt(0)', 'raw')
        P.raw("s_memrealtime s[86:87]", 'raw')
        P.raw('s_waitcnt lgkmcnt(0)', 'raw')
        P.raw("s_sub_u32 s84, s86, s98", 'raw')
        P.raw(f"s_cmp_gt_u32 s84, {PROBE}", 'raw'); P.raw("s_cbranch_scc0 L_END", 'raw')
        P.raw("L_SPIN:", 'raw')
        P.raw("s_memrealtime s[88:89]", 'raw')
        P.raw('s_waitcnt lgkmcnt(0)', 'raw')
        P.raw("s_sub_u32 s84, s88, s86", 'raw')
        P.raw("s_cmp_lt_u32 s84, 1500", 'raw'); P.raw("s_cbranch_scc1 L_SPIN", 'raw')
        out += P.L
    if ENC:
        P = Prog()
        P.raw('s_waitcnt vmcnt(0) lgkmcnt(0)', 'raw')
        if ENC[0] == 'end':
            P.raw(('s_memrealtime' if ENC[2] == 'r' else 's_memtime') + " s[96:97]", 'raw')
        P.raw("s_memrealtime s[86:87]", 'raw')
        P.raw('s_waitcnt lgkmcnt(0)', 'raw')
        P.raw("s_sub_u32 s84, s96, " + ('s98' if ENC[2] == 'r' else 's100'), 'raw')
        if ENC[3] >= 0: P.raw(f"s_lshl_b32 s84, s84, {ENC[3]}", 'raw')
        else: P.raw(f"s_lshr_b32 s84, s84, {-ENC[3]}", 'raw')
        P.raw("L_SPIN:", 'raw')
        P.raw("s_memrealtime s[88:89]", 'raw')
        P.raw('s_waitcnt lgkmcnt(0)', 'raw')
        P.raw("s_sub_u32 s90, s88, s86", 'raw')
        P.raw("s_cmp_lt_u32 s90, s84", 'raw'); P.raw("s_cbranch_scc1 L_SPIN", 'raw')
        out += P.L
    if '--delay' in sys.argv:
        P = Prog()
        P.raw("s_mov_b32 s88, 300", 'raw')
        P.raw("L_DELAY:", 'raw')
        for _ in range(16): P.raw("v_fma_f32 v20, v20, v21, v22", 'raw')
        P.raw("s_sub_u32 s88, s88, 1", 'raw'); P.raw("s_cmp_lg_u32 s88, 0", 'raw'); P.raw("s_cbranch_scc1 L_DELAY", 'raw')
        out += P.L
    if DBGCLK:
        P = Prog()
        P.raw('s_waitcnt vmcnt(0) lgkmcnt(0)', 'raw')
        P.raw("s_memtime s[84:85]", 'raw'); P.raw("s_memrealtime s[86:87]", 'raw')
        P.raw('s_waitcnt lgkmcnt(0)', 'raw')
        P.raw("s_sub_u32 s84, s84, s100", 'raw'); P.raw("s_sub_u32 s86, s86, s98", 'raw')
        P.raw("s_and_b32 s88, s2, 63", 'raw'); P.raw("s_cmp_eq_u32 s88, 0", 'raw'); P.raw("s_cbranch_scc0 L_END", 'raw')
        P.raw("s_cmp_eq_u32 s20, 0", 'raw'); P.raw("s_cbranch_scc0 L_END", 'raw')
        P.raw("s_lshr_b32 s88, s2, 6", 'raw'); P.raw("s_lshl_b32 s88, s88, 4", 'raw')
        P.raw("v_mov_b32 v20, s84", 'raw'); P.raw("v_mov_b32 v21, s86", 'raw'); P.raw("v_mov_b32 v22, s98", 'raw'); P.raw("v_mov_b32 v23, s100", 'raw')
        P.raw("v_mov_b32 v24, s88", 'raw')
        P.raw("s_mov_b64 exec, 1", 'raw')
        P.raw("global_store_dwordx4 v24, v[20:23], s[96:97]", 'raw')
        out += P.L
    out.append(Ins("L_END:", 'label'))
    out.append(Ins("s_endpgm", 'raw'))
    hdr = open('orig.s').read()
    head = hdr[:hdr.index('; @launch')]
    txt = head + f"; @launch grid=(256,1,1) block=(256,1,1) lds={LDS_TOTAL}\n"
    txt += '.amdgcn_target "amdgcn-amd-amdhsa--gfx950"\n.text\n.globl standalone__video_video_swin__vision_kernel\n.p2align 8\n'
    txt += '.type standalone__video_video_swin__vision_kernel,@function\nstandalone__video_video_swin__vision_kernel:\n'
    for ins in out:
        txt += (ins.txt if ins.kind == 'label' else '  ' + ins.txt) + '\n'
    txt += """.section .rodata,"a"
.p2align 6
.amdhsa_kernel standalone__video_video_swin__vision_kernel
  .amdhsa_next_free_vgpr 512
  .amdhsa_next_free_sgpr 102
  .amdhsa_accum_offset 256
  .amdhsa_group_segment_fixed_size 0
  .amdhsa_kernarg_size 64
  .amdhsa_user_sgpr_count 2
  .amdhsa_user_sgpr_kernarg_segment_ptr 1
  .amdhsa_system_sgpr_workgroup_id_x 1
.end_amdhsa_kernel
"""
    o = [a for a in sys.argv[1:] if not a.startswith('--')]
    open(o[0] if o else 'out.s', 'w').write(txt)
    print("instructions:", len(out), file=sys.stderr)

WINDOW = 700
TSTAMP = {0: 2, 1: 3, 3: 4, 5: 5, 7: 6, 9: 7, 12: 8}
BAR2_TILE = 1
if __name__ == '__main__': main()
```

```python
import sys, struct, math
from core import *

DEBUG = None
for a in sys.argv[1:]:
    if a.startswith('--debug='): DEBUG = a.split('=')[1]

def f2u(x): return struct.unpack('<I', struct.pack('<f', x))[0]
def hx(x): return f"0x{x & 0xffffffff:x}"

TPL = 9633792
ROWB = 43008
WREG = 39936
EXO = 21504
SPARE = 4 * WREG
LDS_TOTAL = 163840
NPRE = 7

def pos0(tau): return 48 if tau == 0 else 4 * (tau - 1)
def goff(pos): return pos * 192 + (pos // 7) * 41664

sKA = S(0, 2); sWG = S(2)
sX = S(4, 4); sO = S(8, 4); sW = S(12, 4); sWo = S(16, 4)
sWave = S(20); sWin = S(21); sWB = S(22); sT0 = S(23)
sIT = [S(24 + i) for i in range(6)]
sMt = [None, S(30, 2), S(32, 2), S(34, 2)]
sValid = S(36, 2)
sG0 = S(38, 2)
sCross = {}
_i = 40
for k in range(3):
    for th in (1, 2, 3):
        sCross[(k, th)] = S(_i, 2); _i += 2
s96 = S(58); sC = S(59); sK41664 = S(60)
sSo = [S(61 + i) for i in range(4)]
sTmp = [S(65 + i) for i in range(16)]
sPtr = S(84, 12)
sDbg = S(96, 4)
sDbg2 = S(76, 4)
CODEPF = '--nocodepf' not in sys.argv
WPF = '--nowpf' not in sys.argv
OTLB = 0
for _a in sys.argv:
    if _a.startswith('--otlb'): OTLB = int(_a.split('=')[1]) if '=' in _a else 1

VM1 = 224
def frag(mat, j, s):
    k = 3 * j + s
    if mat == 'M2': return A(4 * k, 4)
    if mat == 'W2': return A(72 + 4 * k, 4)
    if mat == 'W1': return A(144 + 4 * k, 4)
    if mat == 'M1': return A(216 + 4 * k, 4) if k < 10 else V(VM1 + 4 * (k - 10), 4)

vL = V(1); vN = V(2); vG = V(3)
vXA = V(4); vTR = V(5); vST = V(6)
vCst = [V(7), V(8), V(9)]; vCstX = [V(10), V(11), V(12)]
vEPS = V(13)
vOnes = V(16, 4)
vG16 = V(14)
vZero = V(15)

def setup(P):
    P.raw(f"s_cmp_ge_u32 s2, 256", 'salu', rd=['s2'], wr=['scc'])
    P.raw("s_cbranch_scc1 L_END", 'br', rd=['scc'])
    ts(P, 0)
    if '--rt' in sys.argv: P.raw("s_memrealtime s[98:99]", 'raw')
    if PROBE: P.raw("s_memrealtime s[98:99]", 'raw')
    if DBGCLK:
        P.raw("s_memtime s[100:101]", 'raw'); P.raw("s_memrealtime s[98:99]", 'raw')
        P.raw("s_load_dwordx2 s[96:97], s[0:1], 48", 'raw')
    if CODEPF:
        P.raw("s_getpc_b64 s[4:5]", 'salu', wr=['s4', 's5'])
        P.label("L_PC")
        P.s('s_lshr_b32', S(6), sWG, 3); P.s('s_and_b32', S(6), S(6), 3); P.s('s_lshl_b32', S(6), S(6), 14)
        P.v('v_lshlrev_b32', V(2), 6, V(0))
        P.v('v_add_u32', V(2), S(6), V(2))
        P.raw("s_mov_b32 s7, L_END-L_PC", 'salu', wr=['s7'])
        P.v('v_min_u32', V(2), S(7), V(2))
        P.v('v_mov_b32', V(3), S(5))
        P.raw("v_add_co_u32 v2, vcc, s4, v2", 'valu', rd=['s4', 'v2'], wr=['v2', 'vcc'])
        P.raw("v_addc_co_u32 v3, vcc, 0, v3, vcc", 'valu', rd=['v3', 'vcc'], wr=['v3', 'vcc'])
        P.raw("global_load_dword v255, v[2:3], off", 'raw', rd=['v2', 'v3'])
    P.raw(f"s_load_dwordx8 s[84:91], s[0:1], 0", 'raw', wr=S(84, 8).regs())
    P.raw(f"s_load_dwordx4 s[92:95], s[0:1], 32", 'raw', wr=S(92, 4).regs())
    if DEBUG or TIME:
        P.raw(f"s_load_dwordx2 s[96:97], s[0:1], 56", 'raw', wr=S(96, 2).regs())
    P.v('v_and_b32', vL, 63, V(0))
    P.v('v_lshrrev_b32', V(20), 6, V(0))
    P.v('v_and_b32', vN, 15, V(0))
    P.v('v_readfirstlane_b32', sWave, V(20))
    P.v('v_lshrrev_b32', vG, 4, vL)
    P.v('v_lshlrev_b32', vG16, 4, vG)
    P.v('v_mov_b32', vZero, 0)
    P.s('s_lshl_b32', sT0, sWG, 2)
    P.s('s_add_u32', sT0, sT0, sWave)
    P.s('s_lshr_b32', sTmp[0], sT0, 5)
    P.s('s_and_b32', sTmp[1], sT0, 31)
    P.s('s_mul_i32', sTmp[0], sTmp[0], 301056)
    P.s('s_mul_i32', sTmp[1], sTmp[1], 1344)
    P.s('s_add_u32', sWin, sTmp[0], sTmp[1])
    P.s('s_mul_i32', sWB, sWave, WREG)
    for i in range(6): P.s('s_mov_b32', sIT[i], 9216 * i)
    P.s('s_mov_b32', s96, hx(f2u(1.0 / 96)))
    P.s('s_mov_b32', sC, hx(f2u(96 ** -0.5 * math.log2(math.e))))
    P.s('s_mov_b32', sK41664, 41664)
    dma_consts(P)
    lane_consts(P)
    P.s('s_lshr_b32', sTmp[4], sWG, 3); P.s('s_and_b32', sTmp[4], sTmp[4], 15); P.s('s_lshl_b32', sTmp[4], sTmp[4], 12)
    P.v('v_lshlrev_b32', V(20), 6, vL)
    P.v('v_mul_u32_u24', V(21), hx(576), vN)
    P.v('v_add_u32', V(21), V(21), vG16)
    P.v('v_lshlrev_b32', V(22), 4, vL)
    if OTLB:
        P.v('v_bfe_u32', V(23), vL, 3, 2)
        P.s('s_mov_b32', sTmp[5], TPL)
        P.v('v_mul_lo_u32', V(23), V(23), sTmp[5])
        P.v('v_and_b32', V(24), 7, vL)
        P.v('v_min_u32', V(24), 6, V(24))
        P.v('v_mul_u32_u24', V(24), hx(43008), V(24))
        P.v('v_add_u32', V(28), V(23), V(24))
        P.v('v_lshrrev_b32', V(24), 5, vL)
        P.v('v_mul_u32_u24', V(24), hx(1280), V(24))
        P.v('v_add_u32', V(28), V(28), V(24))
    P.raw("s_waitcnt lgkmcnt(0)", 'raw')
    if '--rt' in sys.argv: P.raw("s_mov_b32 s3, s98", 'raw')
    x, wt, wot, wsp, wos, out = [sPtr[2 * i:2 * i + 2] for i in range(6)]
    P.s('s_mov_b32', sX[0], x[0]); P.s('s_mov_b32', sX[1], x[1]); P.s('s_mov_b32', sX[2], 38535168); P.s('s_mov_b32', sX[3], '0x20000')
    P.s('s_mov_b32', sO[0], out[0]); P.s('s_mov_b32', sO[1], out[1]); P.s('s_mov_b32', sO[2], 38535168); P.s('s_mov_b32', sO[3], '0x20000')
    P.s('s_cmp_lt_u32', sWave, 2)
    P.s('s_cselect_b32', sW[0], wt[0], wsp[0]); P.s('s_cselect_b32', sW[1], wt[1], wsp[1])
    P.s('s_mov_b32', sW[2], 55296); P.s('s_mov_b32', sW[3], '0x20000')
    P.s('s_cselect_b32', sWo[0], wot[0], wos[0]); P.s('s_cselect_b32', sWo[1], wot[1], wos[1])
    P.s('s_mov_b32', sWo[2], 18432); P.s('s_mov_b32', sWo[3], '0x20000')
    if DEBUG or TIME:
        P.s('s_mov_b32', sDbg[2], hx(268435456)); P.s('s_mov_b32', sDbg[3], '0x20000')
    if WPF:
        P.s('s_and_b32', sTmp[5], sWave, 1)
        P.s('s_cmp_eq_u32', sTmp[5], 0)
        P.s('s_cselect_b32', sDbg2[0], sW[0], sWo[0]); P.s('s_cselect_b32', sDbg2[1], sW[1], sWo[1])
        P.s('s_cselect_b32', sDbg2[2], sW[2], sWo[2]); P.s('s_mov_b32', sDbg2[3], '0x20000')
        P.bload('buffer_load_dword', V(254), V(20), sDbg2, sTmp[4])
    ts(P, 1, grp='fold')

def dma_consts(P):
    u, rho, q, t, p, c, tmp = [V(20 + i) for i in range(7)]
    P.s('s_mov_b32', sTmp[2], 43691)
    P.s('s_mov_b32', sTmp[3], TPL)
    for k in range(3):
        P.v('v_add_u32', u, 64 * k if 64 * k <= 64 else hx(64 * k), vL)
        P.v('v_mul_u32_u24', rho, sTmp[2], u)
        P.v('v_lshrrev_b32', rho, 19, rho)
        P.v('v_mul_u32_u24', q, 12, rho)
        P.v('v_sub_u32', q, u, q)
        P.v('v_lshrrev_b32', t, 2, rho)
        P.v('v_and_b32', p, 3, rho)
        P.v('v_xor_b32', c, q, t)
        P.v('v_lshlrev_b32', c, 4, c)
        P.v('v_mul_lo_u32', tmp, t, sTmp[3])
        P.v('v_add_u32', c, c, tmp)
        P.v('v_mul_u32_u24', tmp, hx(192), p)
        P.v('v_add_u32', c, c, tmp)
        if k: P.v('v_subrev_u32', vCst[k], hx(1024 * k), c)
        else: P.v('v_mov_b32', vCst[k], c)
        P.v('v_add_u32', vCstX[k], hx(41664), vCst[k])
        for th in (1, 2, 3):
            P.v('v_cmp_le_u32_e64', sCross[(k, th)], th, p)

class M0: cur = None
XMOD = '' if '--noxnt' in sys.argv else ' nt'
SMOD = ' nt' if '--snt' in sys.argv else ''
for _a in sys.argv:
    if _a.startswith('--smod='): SMOD = ' ' + _a.split('=')[1].replace('+', ' ')
    if _a.startswith('--xmod='): XMOD = ' ' + _a.split('=')[1].replace('+', ' ')
def dma_piece(P, tau, k, tmp, cost=None, lat=None, rel=0, after=(), prio=0):
    p0 = pos0(tau)
    th = None
    if tau != 0:
        for p in range(1, 4):
            if (p0 + p) // 7 != p0 // 7: th = p; break
    so = sTmp[8 + (tau % 3)]
    if k == 0: P.s('s_add_u32', so, sWin, hx(goff(p0))).rel = rel
    if M0.cur != ('x', tau):
        i = P.s('s_add_u32', 'm0', sWB, hx(3072 * tau)); i.rel = rel; i.rd += list(after); M0.cur = ('x', tau)
    if th is None: vo = vCst[k]
    else:
        vo = tmp[k]
        P.v('v_cndmask_b32_e64', vo, vCst[k], vCstX[k], sCross[(k, th)]).rel = rel
    i = P.dma(vo, sX, so, 1024 * k, f"d:{tau}.{k}", mod=XMOD)
    i.rd.append('o:ord'); i.wr.append('o:ord'); i.rd += list(after)
    if cost: i.cost = cost
    i.lat = lat; i.rel = rel; i.prio = prio
    return i
def xtags(tau): return [f"d:{tau}.{k}" for k in range(3)]

def dma_slot(P, tau, tmp):
    p0 = pos0(tau)
    th = None
    if tau != 0:
        for p in range(1, 4):
            if (p0 + p) // 7 != p0 // 7: th = p; break
    so = sTmp[8 + (tau % 4)]
    P.s('s_add_u32', so, sWin, hx(goff(p0)))
    P.s('s_add_u32', 'm0', sWB, hx(3072 * tau))
    for k in range(3):
        if th is None: vo = vCst[k]
        else:
            vo = tmp[k]
            P.v('v_cndmask_b32_e64', vo, vCst[k], vCstX[k], sCross[(k, th)])
        P.dma(vo, sX, so, 1024 * k, f"d:{tau}").rd.append('o:ord')

sTS = [S(66 + 2 * i, 2) for i in range(0)]
TSREG = 100
ENC = None
for _a in sys.argv:
    if _a.startswith('--enc='):
        _g, _k, _kind, _sh = _a.split('=')[1].split(','); ENC = (_g, int(_k), _kind, int(_sh))
def ts(P, k, rd=(), grp='main'):
    if ENC:
        if k == 0 and grp == 'main':
            P.add(Ins("s_memrealtime s[98:99]", 'raw')); P.add(Ins("s_memtime s[100:101]", 'raw'))
        elif (grp, k) == ENC[:2]:
            op = 's_memrealtime' if ENC[2] == 'r' else 's_memtime'
            i = P.add(Ins(f"{op} s[82:83]" if False else f"{op} s[96:97]", 'salu', rd=list(rd), wr=['s96', 's97'])); i.prio = 9000
        return
    if not TIME: return
    if k != 0 and grp != TIMEG: return
    r = TSR[k]
    i = P.add(Ins(f"s_memtime {r}", 'salu', rd=list(rd), wr=r.regs())); i.prio = 9000
TIME = any(a.startswith('--time') for a in sys.argv)
DBGCLK = '--dbgclk' in sys.argv
PROBE = 0
for _a in sys.argv:
    if _a.startswith('--probe='): PROBE = int(_a.split('=')[1])
TIMEG = 'fold' if '--time=fold' in sys.argv else ('T' if '--time=T' in sys.argv else ('ev' if '--time=ev' in sys.argv else 'main'))
TSR = {0: S(100, 2), 1: S(84, 2), 2: S(86, 2), 3: S(88, 2), 4: S(90, 2), 5: S(92, 2), 6: S(94, 2), 7: S(78, 2), 8: S(80, 2)}
def lane_consts(P):
    t, p, r, c, tmp, tmp2 = [V(20 + i) for i in range(6)]
    P.v('v_and_b32', t, 3, vN)
    P.v('v_lshrrev_b32', p, 2, vN)
    P.v('v_lshl_add_u32', tmp, t, 2, p)
    P.v('v_mul_u32_u24', tmp, hx(192), tmp)
    P.v('v_xor_b32', tmp2, vG, t)
    P.v('v_lshl_add_u32', tmp, tmp2, 4, tmp)
    P.v('v_add_u32', vXA, sWB, tmp)
    P.v('v_lshrrev_b32', r, 2, vN)
    P.v('v_and_b32', c, 3, vN)
    P.v('v_lshl_add_u32', tmp, r, 2, vG)
    P.v('v_mul_u32_u24', tmp, hx(192), tmp)
    P.v('v_xor_b32', tmp2, c, r)
    P.v('v_lshl_add_u32', tmp, tmp2, 4, tmp)
    P.v('v_add_u32', vTR, sWB, tmp)
    for e in (1, 2, 3): P.v('v_cmp_eq_u32_e64', sMt[e], e, t)
    P.v('v_cmp_eq_u32_e64', sValid, vG, p)
    P.v('v_cmp_eq_u32_e64', sG0, 0, vG)
    P.v('v_mul_u32_u24', tmp, hx(768), t)
    P.v('v_lshl_add_u32', tmp, p, 2, tmp)
    P.v('v_add_u32', tmp, sWB, tmp)
    P.v('v_add_u32', tmp, hx(384), tmp)
    P.v('v_lshlrev_b32', tmp2, 2, vL)
    P.v('v_add_u32', tmp2, hx(SPARE), tmp2)
    P.v('v_cndmask_b32_e64', vST, tmp2, tmp, sValid)
    P.v('v_mov_b32', vEPS, hx(f2u(1e-5)))
    for i in range(4): P.v('v_mov_b32', vOnes[i], hx(0x3f803f80))

XD = 32
RB = 176
def xd(it, ot): return V(XD + (it * 6 + ot) * 4, 4)
def rb(ot, sg): return V(RB + (ot * 3 + sg) * 4, 4)

WCOST = 130; WLAT = 1400
XEVERY = 5
for _a in sys.argv:
    if _a.startswith('--xevery='): XEVERY = int(_a.split('=')[1])
NXF = 21
XDIST = 10; XMAXT = 4; BAR0 = 4300; XEVERY = 1000; XREL0 = 6300; XSTEP = 360; XBURST = 10; XFOLD = 5; XEXCH = 3; XT = 2.5
for _a in sys.argv:
    if _a.startswith('--xrel='): XREL0, XSTEP, XBURST, XFOLD, XEXCH = map(int, _a.split('=')[1].split(','))
    if _a.startswith('--xevery='): XEVERY = int(_a.split('=')[1])
    if _a.startswith('--xt='): XT = float(_a.split('=')[1])
    if _a.startswith('--xdist='): XDIST, XMAXT = map(int, _a.split('=')[1].split(','))
    if _a.startswith('--bar0='): BAR0 = int(_a.split('=')[1])
def fold_loads(P, isM):
    vA = V(21); vB = V(22)
    aoff = 0 if isM else 384
    seq = []
    def wl(dst, so, off):
        def f():
            i = P.bload('buffer_load_dwordx4', dst, vA, sW, so, off)
            i.wr.append('o:ord'); i.rd.append('o:ord'); i.cost = WCOST; i.lat = WLAT; i.prio = 5000
            if isM and MPACE:
                k = MK.n; MK.n += 1
                i.cost = MPACE[0]; i.rel = MPACE[1] * k; i.lat = MPACE[2]
            if (not isM) and WPACE:
                k = MK.w; MK.w += 1
                i.cost = WPACE[0]; i.rel = WPACE[3] + WPACE[1] * k; i.lat = WPACE[2]
        seq.append(f)
    if isM:
        for s in range(3): wl(A(72 + s * 4, 4), sIT[0], 192 + 64 * s)
        for it in range(6):
            for s in range(3): wl(A((it * 3 + s) * 4, 4), sIT[it], aoff + 64 * s)
        for ot in range(1, 6):
            for s in range(3): wl(A(72 + (ot * 3 + s) * 4, 4), sIT[ot], 192 + 64 * s)
    else:
        def wo(k):
            def f():
                g4 = k // 4
                if k % 4 == 0:
                    P.s('s_mov_b32', sTmp[5 + (g4 & 1)], hx(4096 * g4))
                if M0.cur != ('wo', g4):
                    P.s('s_add_u32', 'm0', sTmp[4], hx(4096 * g4)); M0.cur = ('wo', g4)
                i = P.dma(vB, sWo, sTmp[5 + (g4 & 1)], 1024 * (k % 4), f"d:wo{k}")
                i.wr.append('o:ord'); i.rd.append('o:ord'); i.cost = WCOST - 40; i.lat = WLAT; i.prio = 5000
            seq.append(f)
        P.s('s_add_u32', sTmp[4], sWB, hx(EXO))
        for k in range(18): wo(k)
        for it in range(6):
            for s in range(3): wl(A((it * 3 + s) * 4, 4), sIT[it], aoff + 64 * s)
    M0.cur = None
    XQ.n = 0
    tmps = [V(29), V(30), V(31)]
    for i, f in enumerate(seq):
        f()
        if (i + 1) % XEVERY == 0:
            XQ.next(P, tmps, cost=WCOST - 40, lat=WLAT, prio=5000)
    ts(P, 2, rd=['o:ord'], grp='fold')
    if BAR0:
        i = P.raw('s_barrier', 'bar', rd=['o:ord'], wr=['o:ord']); i.prio = 5000
        if not isM: i.rel = BAR0
    xb, xr0, xst = (XM if (isM and XM) else (XBURST, XREL0, XSTEP))
    nfold = XBURST + XFOLD - xb
    for m in range(xb - XQ.n):
        XQ.next(P, tmps, cost=64, lat=WLAT, prio=5000, rel=(0 if isM else XBW))
    if OTLB:
        i = P.s('s_mov_b32', 'm0', hx(SPARE + 1024)); i.rd.append('o:ord'); M0.cur = None
        i = P.add(Ins(f"buffer_load_dword {V(28)}, {sO}, {sWin} offen" + (' nt' if OTLB == 2 else '') + " lds", 'dma', rd=['v28', 'm0'] + sO.regs() + sWin.regs() + ['o:ord'], wr=['d:otlb', 'o:ord']))
        i.cost = 32; i.lat = WLAT; i.prio = 5000
    for m in range(nfold):
        XQ.next(P, tmps, cost=48, lat=WLAT, rel=xr0 + xst * m, prio=5000)

XM = None
XBW = 0
for _a in sys.argv:
    if _a.startswith('--xbw='): XBW = int(_a.split('=')[1])
for _a in sys.argv:
    if _a.startswith('--xm='): XM = tuple(map(int, _a.split('=')[1].split(',')))
MPACE = None; WPACE = None
for _a in sys.argv:
    if _a.startswith('--mpace='): MPACE = tuple(map(int, _a.split('=')[1].split(',')))
    if _a.startswith('--wpace='): WPACE = tuple(map(int, _a.split('=')[1].split(',')))
class MK: n = 0; w = 0
class XQ:
    n = 0
    @staticmethod
    def next(P, tmps, **kw):
        k = XQ.n; XQ.n += 1
        return dma_piece(P, k // 3, k % 3, tmps, **kw)

def fold_compute(P, isM):
    vW = V(22); vT = V(23); tmp = V(24); tmp2 = V(25); tmp3 = V(26)
    P.v('v_bfe_u32', tmp, vN, 2, 1)
    P.v('v_mul_u32_u24', vW, hx(3072), tmp)
    P.v('v_lshrrev_b32', tmp, 3, vN)
    P.v('v_lshlrev_b32', tmp, 6, tmp)
    P.v('v_add_u32', vW, vW, tmp)
    P.v('v_and_b32', tmp, 3, vN)
    P.v('v_lshl_add_u32', vW, tmp, 4, vW)
    P.v('v_lshrrev_b32', tmp, 1, vG)
    P.v('v_lshl_add_u32', vW, tmp, 8, vW)
    P.v('v_and_b32', tmp, 1, vG)
    P.v('v_lshl_add_u32', vW, tmp, 3, vW)
    P.v('v_add_u32', vW, sWB, vW)
    P.v('v_add_u32', vW, hx(EXO), vW)
    def woff(it, ot): return 6 * (ot >> 1) * 1024 + (ot & 1) * 128 + (it >> 1) * 1024 + (it & 1) * 512
    r = V(27); c = V(28)
    P.v('v_lshrrev_b32', r, 2, vN); P.v('v_and_b32', c, 3, vN)
    if not isM:
        P.v('v_lshl_add_u32', tmp, vG, 3, r)
        P.v('v_mul_u32_u24', tmp, hx(192), tmp)
        P.v('v_lshl_add_u32', vT, c, 3, tmp)
        P.v('v_add_u32', vT, sWB, vT)
        P.v('v_add_u32', vT, hx(EXO), vT)
        allwo = [f"d:wo{k}" for k in range(18)]
        for ot in range(6):
            for s in range(3):
                for hh in range(2):
                    rows = [32 * s + 4 * hh, 32 * s + 4 * hh + 24 + 3]
                    tags = [f"d:wo{k}" for k in range(rows[0] * 192 // 1024, min(17, ((rows[1] + 1) * 192 - 1) // 1024) + 1)]
                    P.dsr('ds_read_b64_tr_b16', A(72 + (ot * 3 + s) * 4 + 2 * hh, 2), vT, (32 * s + 4 * hh) * 192 + 32 * ot, mrd=tags + ['m:ex'])
    else:
        P.v('v_lshl_add_u32', tmp, vG, 2, r)
        P.v('v_lshlrev_b32', vT, 4, tmp)
        P.v('v_lshrrev_b32', tmp, 1, c)
        P.v('v_lshl_add_u32', vT, tmp, 8, vT)
        P.v('v_and_b32', tmp, 1, c)
        P.v('v_lshl_add_u32', vT, tmp, 3, vT)
        P.v('v_add_u32', vT, sWB, vT)
        P.v('v_add_u32', vT, hx(EXO), vT)
    for ot in range(6):
        for it in range(6):
            D = xd(it, ot)
            for s in range(3):
                P.mfma(D, A((it * 3 + s) * 4, 4), A(72 + (ot * 3 + s) * 4, 4), D if s else 0)
    ts(P, 3, rd=xd(0, 0).regs(), grp='fold')
    ts(P, 4, rd=[r for it in range(6) for ot in range(6) for r in xd(it, ot).regs()], grp='fold')
    for ot in range(6):
        for it in range(6):
            D = xd(it, ot); B = rb(ot, it >> 1)
            P.cvt(B[2 * (it & 1)], D[0], D[1]); P.cvt(B[2 * (it & 1) + 1], D[2], D[3])
    aD = [V(248, 4) if ot % 2 == 0 else V(252, 4) for ot in range(6)]
    aV = [V(20 + 0) for _ in range(6)]
    aS = [V(29), V(30), V(31), V(21), V(20), V(26)]
    for ot in range(6):
        D = aD[ot]
        for sg in range(3):
            P.mfma(D, vOnes, rb(ot, sg), D if sg else 0)
        P.v('v_mov_b32', aS[ot], D[0])
    ts(P, 5, rd=[r for a in aS for r in a.regs()], grp='fold')
    UV = A(144, 48)
    for i in range(48):
        if i % 4: P.v('v_accvgpr_write_b32', UV[i], 0)
    sNeg96 = sTmp[7]; sI9216 = sTmp[12]
    P.s('s_mov_b32', sNeg96, hx(f2u(-1.0 / 96)))
    one = '1.0'
    if isM:
        for ot in range(6):
            for it in range(6):
                B = rb(ot, it >> 1)
                P.dsw('ds_write_b64', vW, B[2 * (it & 1):2 * (it & 1) + 2], woff(it, ot), mwr=['m:ex'])
        for it in range(6):
            for so in range(3):
                B = V(RB + (it * 3 + so) * 4, 4)
                for hh in range(2):
                    P.dsr('ds_read_b64_tr_b16', B[2 * hh:2 * hh + 2], vT, (6 * so + 3 * hh + (it >> 1)) * 1024 + (it & 1) * 512, mrd=['m:ex'])
        cs = tmp
        P.v('v_add_f32', cs, aS[0], aS[1]); P.v('v_add_f32', tmp2, aS[2], aS[3]); P.v('v_add_f32', tmp2, tmp2, aS[4])
        P.v('v_add_f32', cs, cs, tmp2); P.v('v_add_f32', cs, cs, aS[5])
        for sh in (8, 4, 2, 1):
            P.v('v_add_f32_dpp', cs, cs, cs, mod=f"row_ror:{sh} row_mask:0xf bank_mask:0xf")
        P.s('s_mov_b32', sI9216, hx(f2u(1.0 / 9216)))
        P.v('v_mul_f32', cs, sI9216, cs)
        for ot in range(6):
            P.v('v_fma_f32', aS[ot], aS[ot], sNeg96, cs)
            P.cvt(aS[ot], aS[ot], one)
            P.v('v_accvgpr_write_b32', UV[24 + 4 * ot], aS[ot])
        for it in range(6):
            D = aD[it]
            for so in range(3):
                P.mfma(D, vOnes, V(RB + (it * 3 + so) * 4, 4), D if so else 0)
            u = V(25) if it % 2 else V(27)
            P.v('v_mul_f32', u, sNeg96, D[0])
            P.cvt(u, one, u)
            P.v('v_cndmask_b32_e64', u, 0, u, sG0)
            P.v('v_accvgpr_write_b32', UV[4 * it], u)
        Uf = lambda it: UV[4 * it:4 * it + 4]
    else:
        for ot in range(6):
            P.v('v_mul_f32', aS[ot], sNeg96, aS[ot])
            P.cvt(aS[ot], aS[ot], vZero)
            P.v('v_accvgpr_write_b32', UV[24 + 4 * ot], aS[ot])
        u = V(25)
        P.v('v_mov_b32', u, hx(0x3f80))
        P.v('v_cndmask_b32_e64', u, 0, u, sG0)
        P.v('v_accvgpr_write_b32', UV[0], u)
        Uf = lambda it: UV[0:4]
    ts(P, 6, rd=UV.regs(), grp='fold')
    for ot in range(6):
        for it in range(6):
            D = xd(it, ot)
            P.mfma(D, Uf(it), UV[24 + 4 * ot:28 + 4 * ot], D)
            B = rb(ot, it >> 1)
            P.cvt(B[2 * (it & 1)], D[0], D[1]); P.cvt(B[2 * (it & 1) + 1], D[2], D[3])
            P.dsw('ds_write_b64', vW, B[2 * (it & 1):2 * (it & 1) + 2], woff(it, ot), mwr=['m:ex'])

def read_weights(P, mats):
    va = [V(212), V(213), V(214), V(215)]
    P.v('v_lshlrev_b32', va[0], 4, vL)
    P.v('v_add_u32', va[0], hx(EXO), va[0])
    for w in range(1, 4): P.v('v_add_u32', va[w], hx(WREG * w), va[0])
    for w, mat in ((0, 'M1'), (1, 'W1'), (2, 'M2'), (3, 'W2')):
        if mat not in mats: continue
        for j in range(6):
            for s in range(3):
                P.dsr('ds_read_b128', frag(mat, j, s), va[w], (3 * j + s) * 1024)

class TP: pass
TDQ = 12; TDV = 0
for _a in sys.argv:
    if _a.startswith('--tdq='): TDQ, TDV = map(int, _a.split('=')[1].split(','))
def t_pools():
    T = TP()
    T.xf = Pool('v', 20, 12, 2)
    T.D = Pool('v', 44, 4, TDQ)
    T.Dv = Pool('v', 44 + 4 * TDQ, 4, TDV) if TDV else T.D
    T.Dp = Pool('v', 44 + 4 * (TDQ + TDV), 4, 12 - TDQ - TDV) if TDQ + TDV < 12 else T.D
    T.qB = Pool('v', 92, 12, 1)
    T.pvA = Pool('v', 104, 24, 2)
    T.sgm = Pool('v', 152, 12, 2)
    T.pB = Pool('v', 176, 4, 2)
    T.x1f = Pool('v', 184, 12, 1)
    T.tmp = Pool('v', 196, 8, 2)
    T.g2 = Pool('v', 212, 8, 1)
    T.dm = [V(220), V(221), V(222)]
    return T

def stats(P, G, Msum, tmp):
    d, a = tmp[0], tmp[1]
    P.v('v_cndmask_b32_e64', d, G[0], G[1], sMt[1])
    P.v('v_cndmask_b32_e64', d, d, G[2], sMt[2])
    P.v('v_cndmask_b32_e64', d, d, G[3], sMt[3])
    P.v('v_mul_f32', a, s96, Msum)
    P.v('v_fma_f32', d, Neg(a), Msum, d)
    P.v('v_fma_f32', d, d, s96, vEPS)
    P.v('v_rsq_f32', d, d)
    return d

def t_tile(P, T, tau):
    base = 3072 * tau
    xf = T.xf.get()
    for s in range(3):
        P.dsr('ds_read_b128', xf[4 * s:4 * s + 4], vXA, base + 64 * s, mrd=xtags(tau) + [f"m:{tau}"])
    X = lambda s: xf[4 * s:4 * s + 4]
    sgm = T.sgm.get(); Sd, G, M = sgm[0:4], sgm[4:8], sgm[8:12]
    for s in range(3): P.mfma(G, X(s), X(s), G if s else 0)
    P.L[-1].wr.append(f"o:t{tau}"); P.L[-1].wr.append(f"o:t{tau}a")
    for s in range(3): P.mfma(M, vOnes, X(s), M if s else 0)
    qB = T.qB.get()
    for j in range(6):
        D = T.D.get()
        for s in range(3): P.mfma(D, frag('M1', j, s), X(s), D if s else 0)
        if j == 4: P.L[-1].wr.append(f"o:t{tau}b")
        o = 4 * (j >> 1) + 2 * (j & 1)
        P.cvt(qB[o], D[0], D[1]); P.cvt(qB[o + 1], D[2], D[3])
    for s in range(3): P.mfma(Sd, X(s), qB[4 * s:4 * s + 4], Sd if s else 0)
    pvA = T.pvA.get()
    for j in range(6):
        D = T.Dv.get()
        for s in range(3): P.mfma(D, X(s), frag('W1', j, s), D if s else 0)
        if j == 4: P.L[-1].wr.append(f"o:t{tau}c")
        P.cvt(pvA[4 * j], D[0], D[1]); P.cvt(pvA[4 * j + 1], D[2], D[3])
        P.dsr('ds_read_b64_tr_b16', pvA[4 * j + 2:4 * j + 4], vTR, base + 64 * (j >> 1) + 8 * (j & 1), mrd=xtags(tau) + [f"m:{tau}"])
    tmp = T.tmp.get()
    r = stats(P, G, M[0], tmp)
    m, rq, nm, l, l2 = tmp[2], tmp[3], tmp[4], tmp[5], tmp[6]
    q = lambda e: f"quad_perm:[{e},{e},{e},{e}] row_mask:0xf bank_mask:0xf"
    for e in range(4): P.v('v_mul_f32_dpp', Sd[e], r, Sd[e], mod=q(e))
    P.v('v_max3_f32', m, Sd[0], Sd[1], Sd[2]); P.v('v_max_f32', m, m, Sd[3])
    P.v('v_mul_f32', rq, sC, r)
    P.v('v_mul_f32_e64', nm, Neg(m), rq)
    for e in range(4): P.v('v_fma_f32', Sd[e], Sd[e], rq, nm)
    for e in range(4): P.v('v_exp_f32', Sd[e], Sd[e])
    P.v('v_add_f32', l, Sd[0], Sd[1]); P.v('v_add_f32', l2, Sd[2], Sd[3]); P.v('v_add_f32', l, l, l2)
    P.v('v_rcp_f32', l, l)
    for e in range(4): P.v('v_mul_f32_dpp', Sd[e], r, Sd[e], mod=q(e))
    for e in range(4): P.v('v_mul_f32', Sd[e], Sd[e], l)
    pB = T.pB.get()
    P.cvt(Sd[0], Sd[0], Sd[1]); P.cvt(Sd[2], Sd[2], Sd[3])
    P.v('v_cndmask_b32_e64', pB[0], 0, Sd[0], sValid)
    P.v('v_cndmask_b32_e64', pB[1], 0, Sd[2], sValid)
    x1f = T.x1f.get()
    for j in range(6):
        D = T.Dp.get()
        P.mfma(D, pvA[4 * j:4 * j + 4], pB, 0)
        o = 4 * (j >> 1) + 2 * (j & 1)
        P.cvt(x1f[o], D[0], D[1]); P.cvt(x1f[o + 1], D[2], D[3])
    for s in range(3):
        P.dsw('ds_write_b128', vXA, x1f[4 * s:4 * s + 4], base + 64 * s, mwr=[f"m:{tau}"])
    g2 = T.g2.get(); G2, M2 = g2[0:4], g2[4:8]
    for s in range(3): P.mfma(G2, x1f[4 * s:4 * s + 4], x1f[4 * s:4 * s + 4], G2 if s else 0)
    for s in range(3): P.mfma(M2, vOnes, x1f[4 * s:4 * s + 4], M2 if s else 0)
    r2 = stats(P, G2, M2[0], [M2[1], M2[2]])
    P.dsw('ds_write_b32', vST, r2, 4 * pos0(tau), mwr=['m:st'], mrd=['m:0'])


sM = S(82, 2)
def onehot_pair(P, dst, d, lo, val, dh):
    P.v('v_and_b32', val, 1, d)
    P.v('v_lshlrev_b32', val, 4, val)
    P.v('v_lshlrev_b32', val, val, vC3f80)
    P.v('v_ashrrev_i32', dh, 1, d)
    P.v('v_cmp_eq_i32_e64', sM, lo // 2, dh)
    P.v('v_cndmask_b32_e64', dst, 0, val, sM)

vC3f80 = V(223)
def t_consts(P, T):
    d = V(220); a = V(221); b = V(222)
    P.v('v_mov_b32', vC3f80, hx(0x3f80))
    P.v('v_lshlrev_b32', d, 2, vG)
    P.v('v_sub_u32', d, vN, d)
    for k in range(2):
        pB = V(176 + 4 * k, 4)
        for h in range(2):
            onehot_pair(P, pB[2 + h], d, 2 * h, a, b)

class SP: pass
SDQ = 4
for _a in sys.argv:
    if _a.startswith('--sdq='): SDQ = int(_a.split('=')[1])
def s_pools():
    Q = SP()
    Q.V2A = V(20, 48)
    Q.D = Pool('v', 68, 4, SDQ)
    Q.Dp = Pool('v', 68 + 4 * SDQ, 4, 8 - SDQ) if SDQ < 8 else Q.D
    Q.XQ = Pool('v', 100, 12, 2)
    Q.qB = Pool('v', 124, 12, 1)
    Q.sD = Pool('v', 136, 16, 2)
    Q.PB = Pool('v', 168, 8, 2)
    Q.RK = V(184, 16)
    Q.tmp = Pool('v', 200, 8, 2)
    Q.outp = Pool('v', 216, 12, 1)
    Q.XK = Pool('a', 144, 48, 2)
    Q.K0 = V(228); Q.Q3 = V(229); Q.TA = [V(230 + j) for j in range(4)]; Q.OA = [V(234 + j) for j in range(4)]
    Q.vRK = V(238); Q.vRQ = V(239); Q.vWB = V(240); Q.XL0 = V(241)
    Q.cL = V(244, 4); Q.cD0 = V(242); Q.cD1 = V(243)
    Q.Kw = Pool('v', 248, 1, 2); Q.XLw = Pool('v', 250, 1, 1); Q.Qw = Pool('v', 251, 1, 2); Q.Tw = Pool('v', 253, 1, 2)
    Q.t0 = V(4); Q.t1 = V(5); Q.t2 = V(6); Q.t3 = V(7); Q.t4 = V(8)
    return Q

def s_consts(P, Q):
    t0, t1, t2, t3, t4 = Q.t0, Q.t1, Q.t2, Q.t3, Q.t4
    P.v('v_mov_b32', Q.vWB, sWB)
    P.v('v_add_u32', Q.XL0, Q.vWB, vG16)
    P.v('v_lshrrev_b32', t0, 2, vN); P.v('v_and_b32', t1, 3, vN)
    P.v('v_mul_u32_u24', t2, hx(3072), t0)
    P.v('v_mul_u32_u24', t3, hx(192), t1)
    P.v('v_add3_u32', t2, t2, t3, Q.XL0)
    P.v('v_add_u32', Q.K0, hx(3072), t2)
    P.v('v_add_u32', t2, hx(27648), Q.K0)
    P.v('v_cmp_le_u32_e64', sM, 12, vN)
    P.v('v_cndmask_b32_e64', Q.Q3, t2, Q.XL0, sM)
    P.v('v_lshl_add_u32', t2, vG, 2, t0)
    P.v('v_add_u32', t3, -1, t2)
    P.v('v_ashrrev_i32', t4, 2, t3)
    P.v('v_mul_i32_i24', t4, hx(3072), t4)
    P.v('v_and_b32', t3, 3, t3)
    P.v('v_mul_u32_u24', t3, hx(192), t3)
    P.v('v_lshl_add_u32', t1, t1, 4, Q.vWB)
    P.v('v_add3_u32', t3, t3, t4, t1)
    P.v('v_add_u32', t3, hx(3072), t3)
    P.v('v_add_u32', t4, hx(192), t1)
    sS0 = S(40, 2); sS13 = S(42, 2)
    P.v('v_cmp_eq_u32_e64', sS0, 0, t2)
    P.v('v_cmp_le_u32_e64', sS13, 13, t2)
    for j in range(4):
        if j: P.v('v_add_u32', t3, hx(9216), t3)
        if j < 3:
            P.v('v_cndmask_b32_e64', Q.TA[j], t3, t4, sS0)
        else:
            P.v('v_cndmask_b32_e64', Q.TA[j], t3, t1, sS13)
            P.v('v_cndmask_b32_e64', Q.TA[j], Q.TA[j], t4, sS0)
    for j in range(4):
        P.v('v_add_u32', t0, 12 * j, vN)
        P.v('v_mul_u32_u24', t2, 37, t0)
        P.v('v_lshrrev_b32', t2, 8, t2)
        P.v('v_mul_u32_u24', t2, sK41664, t2)
        P.v('v_mul_u32_u24', t0, hx(192), t0)
        P.v('v_add3_u32', t0, t0, t2, vG16)
        P.v('v_cmp_gt_u32_e64', sM, 12 if j < 3 else 13, vN)
        P.v('v_mov_b32', t2, hx(0x7f000000))
        P.v('v_cndmask_b32_e64', Q.OA[j], t2, t0, sM)
    P.v('v_add_u32', Q.vRK, hx(384), Q.XL0)
    P.v('v_lshl_add_u32', t0, vN, 2, Q.vWB)
    P.v('v_add_u32', Q.vRQ, hx(384), t0)
    P.v('v_mov_b32', t0, hx(0xff800000))
    P.v('v_cndmask_b32_e64', Q.cL[0], t0, 0, sG0)
    for e in (1, 2, 3): P.v('v_mov_b32', Q.cL[e], 0)
    P.v('v_lshlrev_b32', t0, 2, vG)
    P.v('v_sub_u32', t0, vN, t0)
    P.v('v_add_u32', t0, 1, t0)
    P.v('v_cmp_eq_u32_e64', sM, 0, t0)
    P.v('v_cndmask_b32_e64', t1, 0, 1.0, sM)
    P.v('v_cndmask_b32_e64', Q.cD0, t1, 0, sG0)
    P.v('v_cmp_eq_u32_e64', sM, 1, t0)
    P.v('v_cndmask_b32_e64', Q.cD1, 0, 1.0, sM)
    P.v('v_mov_b32', vC3f80, hx(0x3f80)) if False else None
    P.v('v_mov_b32', t4, hx(0x3f80))
    for k in range(2):
        dst = V(168 + 8 * k + 7)
        P.v('v_and_b32', t1, 1, t0)
        P.v('v_lshlrev_b32', t1, 4, t1)
        P.v('v_lshlrev_b32', t1, t1, t4)
        P.v('v_ashrrev_i32', t2, 1, t0)
        P.v('v_cmp_eq_i32_e64', sM, 1, t2)
        P.v('v_cndmask_b32_e64', dst, 0, t1, sM)
    for w in range(4):
        P.s('s_add_u32', sSo[w], sWin, hx(TPL * w))

CPF2 = []
for _a in sys.argv:
    if _a.startswith('--cpf2='): CPF2 = _a.split('=')[1].split(',')
class CPN: n = 0
def code_pf(P, tmp, after=(), nk=2):
    k = CPN.n; CPN.n += 1
    pc = S(24, 2); sR = S(26)
    a, b, o = tmp[0], tmp[1], tmp[2]
    assert b.i == a.i + 1 and a.i % 2 == 0
    i = P.add(Ins(f"s_getpc_b64 {pc}\nL_PCX{k}:", 'salu', rd=list(after), wr=pc.regs()))
    P.add(Ins(f"s_mov_b32 {sR}, L_END-L_PCX{k}-4", 'salu', rd=list(after), wr=sR.regs()))
    P.s('s_lshl_b32', S(27), sWave, 12)
    i = P.s('s_mov_b32', 'm0', hx(SPARE + 1024)); i.rd += list(after); M0.cur = None
    for q in range(nk):
        P.v('v_lshlrev_b32', o, 6, vL)
        P.v('v_add_u32', o, S(27), o)
        if q: P.v('v_add_u32', o, hx(16384 * q), o)
        P.v('v_min_u32', o, sR, o)
        P.add(Ins(f"v_add_co_u32 {a}, vcc, {pc[0]}, {o}", 'valu', rd=[str(pc[0]), str(o)], wr=[str(a), 'vcc']))
        P.v('v_mov_b32', b, pc[1])
        P.add(Ins(f"v_addc_co_u32 {b}, vcc, 0, {b}, vcc", 'valu', rd=[str(b), 'vcc'], wr=[str(b), 'vcc']))
        i = P.add(Ins(f"global_load_lds_dword {R('v', a.i, 2)}, off", 'dma', rd=[str(a), str(b), 'm0'], wr=[f'd:cpf{k}.{q}']))
        i.cost = 32; i.lat = 1500

def v2l(P, Q):
    t0, t1 = Q.t2, Q.t3
    XL = Q.XQ.get()
    P.v('v_and_b32', t0, 3, vN)
    P.v('v_xor_b32', t1, vG, t0)
    P.v('v_lshlrev_b32', t1, 4, t1)
    P.v('v_mul_u32_u24', t0, hx(768), t0)
    P.v('v_add3_u32', t0, t0, t1, Q.vWB)
    for s in range(3):
        P.dsr('ds_read_b128', XL[4 * s:4 * s + 4], t0, 64 * s, mrd=['m:0'])
    ob = Q.outp.get()
    for j in range(6):
        D = Q.D.get()
        for s in range(3): P.mfma(D, frag('W2', j, s), XL[4 * s:4 * s + 4], D if s else 0)
        o = 4 * (j >> 1) + 2 * (j & 1)
        P.cvt(ob[o], D[0], D[1]); P.cvt(ob[o + 1], D[2], D[3])
    for s in range(3):
        P.dsw('ds_write_b128', t0, ob[4 * s:4 * s + 4], 192 + 64 * s, mwr=['m:v2l'], mrd=['m:0'])

def s_window(P, Q, w):
    XK = Q.XK.get()
    if w:
        Kw = Q.Kw.get(); P.v('v_xor_b32', Kw, 16 * w, Q.K0)
        XLw = Q.XLw.get(); P.v('v_xor_b32', XLw, 16 * w, Q.XL0)
    else:
        Kw = Q.K0; XLw = Q.XL0
    xk = lambda kt, s: XK[12 * kt + 4 * s:12 * kt + 4 * s + 4]
    for kt in range(3):
        for s in range(3):
            P.dsr('ds_read_b128', xk(kt, s), Kw, 768 * w + 12288 * kt + 64 * s, mrd=[f"m:{4*kt+1+i}" for i in range(4)])
    for s in range(3):
        P.dsr('ds_read_b128', xk(3, s), XLw, 768 * w + 64 * s, mrd=['m:0'])
    RK = Q.RK
    for kt in range(3):
        P.dsr('ds_read_b128', RK[4 * kt:4 * kt + 4], Q.vRK, 768 * w + 64 * kt, mrd=['m:st'])
    P.dsr('ds_read_b32', RK[12], Q.vWB, 768 * w + 384 + 192, mrd=['m:st'])
    V2A = Q.V2A
    def v2a():
        for kt in range(3):
            for j in range(6):
                D = Q.Dp.get()
                for s in range(3): P.mfma(D, xk(kt, s), frag('W2', j, s), D if s else 0)
                o = 8 * j + 4 * (kt >> 1) + 2 * (kt & 1)
                P.cvt(V2A[o], D[0], D[1]); P.cvt(V2A[o + 1], D[2], D[3])
    if SDQ == 8: v2a()
    for jq in range(4):
        XQ = Q.XQ.get()
        slots = sorted(set((((min(12 * jq + n, 48)) >> 2) + 1) % 13 for n in range(16)))
        mr = [f"m:{x}" for x in slots]
        if jq < 3:
            qa, qoff = Kw, 9216 * jq
        else:
            qoff = 0
            if w:
                qa = Q.Qw.get(); P.v('v_xor_b32', qa, 16 * w, Q.Q3)
            else: qa = Q.Q3
        for s in range(3):
            P.dsr('ds_read_b128', XQ[4 * s:4 * s + 4], qa, 768 * w + qoff + 64 * s, mrd=mr)
        tmp = Q.tmp.get()
        rq, m, y, nm, l, l2, l3 = tmp[0], tmp[1], tmp[2], tmp[3], tmp[4], tmp[5], tmp[6]
        P.dsr('ds_read_b32', rq, Q.vRQ, 768 * w + 48 * jq, mrd=['m:st'])
        qB = Q.qB.get()
        for j in range(6):
            D = Q.D.get()
            for s in range(3): P.mfma(D, frag('M2', j, s), XQ[4 * s:4 * s + 4], D if s else 0)
            o = 4 * (j >> 1) + 2 * (j & 1)
            P.cvt(qB[o], D[0], D[1]); P.cvt(qB[o + 1], D[2], D[3])
        SD = Q.sD.get()
        for kt in range(4):
            D = SD[4 * kt:4 * kt + 4]
            for s in range(3):
                P.mfma(D, xk(kt, s), qB[4 * s:4 * s + 4], D if s else (Q.cL if kt == 3 else 0))
        if jq == 0 and SDQ < 8: v2a()
        if w:
            ta = Q.Tw.get(); P.v('v_xor_b32', ta, 16 * w, Q.TA[jq])
        else: ta = Q.TA[jq]
        for j in range(6):
            P.dsr('ds_read_b64_tr_b16', V2A[8 * j + 6:8 * j + 8], ta, 768 * w + 64 * (j >> 1) + 8 * (j & 1), mrd=mr + ['m:v2l', 'm:0'])
        vals = [SD[i] for i in range(13)]
        rks = [RK[i] for i in range(13)]
        P.v('v_mul_f32', rq, sC, rq)
        for i in range(13): P.v('v_mul_f32', vals[i], vals[i], rks[i])
        P.v('v_max3_f32', m, vals[0], vals[1], vals[2])
        P.v('v_max3_f32', y, vals[3], vals[4], vals[5])
        P.v('v_max3_f32', nm, vals[6], vals[7], vals[8])
        P.v('v_max3_f32', l, vals[9], vals[10], vals[11])
        P.v('v_max3_f32', m, m, y, nm)
        P.v('v_max3_f32', m, m, l, vals[12])
        for op in ('v_permlane32_swap_b32', 'v_permlane16_swap_b32'):
            P.v('v_mov_b32', y, m)
            P.v(op, m, y)
            P.v('v_max_f32', m, m, y)
        P.v('v_mul_f32_e64', nm, Neg(m), rq)
        for i in range(13): P.v('v_fma_f32', vals[i], vals[i], rq, nm)
        for i in range(13): P.v('v_exp_f32', vals[i], vals[i])
        P.v('v_add_f32', l, vals[0], vals[1]); P.v('v_add_f32', l2, vals[2], vals[3]); P.v('v_add_f32', l3, vals[4], vals[5])
        P.v('v_add_f32', m, vals[6], vals[7]); P.v('v_add_f32', y, vals[8], vals[9]); P.v('v_add_f32', nm, vals[10], vals[11])
        P.v('v_add_f32', l, l, l2); P.v('v_add_f32', l3, l3, m); P.v('v_add_f32', y, y, nm)
        P.v('v_add_f32', l, l, l3); P.v('v_add_f32', y, y, vals[12]); P.v('v_add_f32', l, l, y)
        for op in ('v_permlane32_swap_b32', 'v_permlane16_swap_b32'):
            P.v('v_mov_b32', y, l)
            P.v(op, l, y)
            P.v('v_add_f32', l, l, y)
        P.v('v_rcp_f32', l, l)
        for i in range(13): P.v('v_mul_f32', vals[i], vals[i], rks[i])
        for i in range(12): P.v('v_mul_f32', vals[i], vals[i], l)
        P.v('v_fma_f32', vals[12], vals[12], l, Q.cD0)
        PB = Q.PB.get()
        for i in range(6): P.cvt(PB[i], vals[2 * i], vals[2 * i + 1])
        P.cvt(PB[6], vals[12], Q.cD1)
        ob = Q.outp.get()
        for j in range(6):
            D = Q.Dp.get()
            P.mfma(D, V2A[8 * j:8 * j + 4], PB[0:4], 0)
            P.mfma(D, V2A[8 * j + 4:8 * j + 8], PB[4:8], D)
            o = 4 * (j >> 1) + 2 * (j & 1)
            P.cvt(ob[o], D[0], D[1]); P.cvt(ob[o + 1], D[2], D[3])
        for s in range(3):
            P.bstore('buffer_store_dwordx4', ob[4 * s:4 * s + 4], Q.OA[jq], sO, sSo[w], 64 * s, mod=SMOD).wr.append(f"o:w{w}")
    ts(P, 5 + w, rd=[f"o:w{w}"])

def dbg_srd(P):
    P.s('s_mov_b32', sDbg[0], S(96)) if False else None

def dump_regs(P, regs4, slot_bytes):
    va = V(0)
    P.s('s_lshl_b32', sT0, sWG, 2); P.s('s_add_u32', sT0, sT0, sWave)
    P.s('s_mul_i32', sT0, sT0, slot_bytes)
    P.v('v_lshlrev_b32', va, 4, vL)
    for k, r in enumerate(regs4):
        P.s('s_add_u32', sTmp[0], sT0, hx(1024 * k))
        P.bstore('buffer_store_dwordx4', r, va, sDbg, sTmp[0], 0)
        P.raw('s_waitcnt vmcnt(0)', 'raw')

def dump_lds(P, nbytes):
    va = V(0); vb = V(20); d = V(24, 4)
    P.s('s_lshl_b32', sT0, sWG, 2); P.s('s_add_u32', sT0, sT0, sWave)
    P.s('s_mul_i32', sT0, sT0, nbytes)
    P.v('v_lshlrev_b32', va, 4, vL)
    P.v('v_add_u32', vb, sWB, va)
    for k in range(nbytes // 1024):
        P.raw(f"ds_read_b128 {d}, {vb} offset:{1024*k}", 'raw')
        P.raw('s_waitcnt lgkmcnt(0)', 'raw')
        P.s('s_add_u32', sTmp[0], sT0, hx(1024 * k))
        P.raw(f"buffer_store_dwordx4 {d}, {va}, {sDbg}, {sTmp[0]} offen", 'raw')
        P.raw('s_waitcnt vmcnt(0)', 'raw')

NONOP = []
def finalize(L, vm0=(), lg0=(), hist=()):
    L = strip_nops(L)
    L, vm, lg = insert_waits(L, vm0, lg0)
    L = insert_nops(L, hist)
    return L, vm, lg

def main():
    out = []
    P = Prog(); setup(P)
    P.s('s_and_b32', sTmp[0], sWave, 1)
    P.s('s_cmp_eq_u32', sTmp[0], 1)
    P.raw("s_cbranch_scc1 L_FOLDW", 'br', rd=['scc'])
    pre, _, _ = finalize(P.L)
    out += pre
    ends = []
    for isM in (True, False):
        P = Prog()
        fold_loads(P, isM)
        fold_compute(P, isM)
        L = schedule(P.L, name='foldM' if isM else 'foldW')
        P2 = Prog(); wait(P2, lg=0); ts(P2, 1); ts(P2, 7, grp='fold')
        L += P2.L
        if not isM: out.append(Ins("L_FOLDW:", 'label'))
        L, vm, lg = finalize(L, hist=pre[-4:])
        out += L
        ends.append(vm)
        if isM: out.append(Ins("s_branch L_JOIN", 'br'))
    out.append(Ins("L_JOIN:", 'label'))
    vm0 = ends[0] if len(ends[0]) >= len(ends[1]) else ends[1]
    print("pending at join:", ends, file=sys.stderr)
    P = Prog()
    P.raw('s_nop 7', 'raw'); P.raw('s_barrier', 'bar')
    ts(P, 2); ts(P, 8, grp='fold')
    early = (DEBUG != 'fold')
    L, vm0, lg0 = finalize(P.L, vm0=vm0)
    out += L
    P = Prog()
    read_weights(P, ('M1', 'W1') if early else ('M1', 'W1', 'M2', 'W2'))
    M0.cur = None
    for m in range(XEXCH):
        XQ.next(P, [V(29), V(30), V(31)], cost=48, lat=WLAT, rel=100 + 300 * m, prio=5000)
    L = schedule(P.L, name='exch')
    P = Prog()
    if not early:
        wait(P, lg=0)
        P.raw('s_barrier', 'bar')
    ts(P, 3); ts(P, 1, grp='T')
    L += P.L
    L, vm0, lg0 = finalize(L, vm0=vm0, lg0=lg0)
    out += L
    if DEBUG == 'fold':
        P = Prog()
        regs = [frag(m, j, s) for m in ('M1', 'W1', 'M2', 'W2') for j in range(6) for s in range(3)]
        dump_regs(P, regs, 72 * 1024)
        out += insert_nops(P.L)
    else:
        P = Prog()
        T = t_pools()
        t_consts(P, T)
        vw = V(0)
        P.v('v_lshlrev_b32', vw, 4, vL)
        P.v('v_add_u32', vw, hx(EXO + 2 * WREG), vw)
        allf = []
        for w, mat in ((0, 'M2'), (1, 'W2')):
            for j in range(6):
                for sx in range(3):
                    i = P.dsr('ds_read_b128', frag(mat, j, sx), vw, (3 * j + sx) * 1024 + WREG * w)
                    allf += frag(mat, j, sx).regs()
        M0.cur = None
        for tau in range(13):
            t_tile(P, T, tau)
            if tau in TSTAMP: ts(P, TSTAMP[tau], rd=[f"m:{tau}"], grp='T')
            if tau == BAR2_TILE:
                i = P.raw('s_barrier', 'bar', rd=allf + [f"o:t{tau}"] + [r for m in ('M1', 'W1') for j in range(6) for sx in range(3) for r in frag(m, j, sx).regs()], wr=['o:bar2'])
                i.prio = 3000
            sub = 0
            while XQ.n < 39 and XQ.n <= 3 * tau + 2 + XDIST and sub < XMAXT:
                if XQ.n >= 3 * NPRE and tau < BAR2_TILE: break
                aft = [f"o:t{tau}" + 'abc'[min(sub, 2)]] + (['o:bar2'] if XQ.n >= 3 * NPRE else [])
                XQ.next(P, T.dm, cost=32, lat=3000, after=aft, prio=3000); sub += 1
        assert XQ.n == 39, XQ.n
        ts(P, 4, rd=['m:12'])
        if DEBUG != 'x1':
            Q = s_pools()
            if 's' in CPF2: code_pf(P, [V(220), V(221), V(222)], after=['m:12'])
            s_consts(P, Q)
            v2l(P, Q)
            for w in range(4):
                if f'w{w}' in CPF2: code_pf(P, [V(254), V(255), V(253)], after=[f'o:w{w-1}'], nk=2 if w < 3 else 1)
                s_window(P, Q, w)
        import core
        if '--stalls' in sys.argv: core.STALLLOG = []
        L = schedule(P.L, name='main', window=WINDOW)
        if '--stalls' in sys.argv:
            for e in core.STALLLOG: print('STALL', e, file=sys.stderr)
        for _a in sys.argv:
            if _a.startswith('--abl='):
                for ab in _a.split('=')[1].split(','):
                    n0 = len(L)
                    op = lambda x: x.txt.split()[0]
                    fl = ('v_mul_f32', 'v_fma_f32', 'v_exp_f32', 'v_add_f32', 'v_max', 'v_cvt_pk', 'v_rcp', 'v_rsq', 'v_permlane')
                    if ab == 'store': L = [x for x in L if x.kind != 'vmst']
                    elif ab == 'exp':
                        for x in L:
                            if x.kind == 'trans':
                                x.txt = 'v_mov_b32 ' + x.txt.split(None, 1)[1]; x.kind = 'valu'
                    elif ab == 'perm': L = [x for x in L if x.kind != 'perm']
                    elif ab == 'cvt': L = [x for x in L if not op(x).startswith('v_cvt_pk')]
                    elif ab == 'cvtmov':
                        for x in L:
                            if op(x).startswith('v_cvt_pk'):
                                a_ = x.txt.split(None, 1)[1].split(', ')
                                x.txt = f"v_mov_b32 {a_[0]}, {a_[1]}"
                    elif ab == 'ds128': L = [x for x in L if op(x) != 'ds_read_b128']
                    elif ab == 'tr': L = [x for x in L if not op(x).startswith('ds_read_b64_tr')]
                    elif ab == 'mfma': L = [x for x in L if x.kind != 'mfma']
                    elif ab == 'fl': L = [x for x in L if not op(x).startswith(fl)]
                    elif ab == 'mulf': L = [x for x in L if not op(x).startswith(('v_mul_f32', 'v_fma_f32', 'v_add_f32', 'v_max'))]
                    elif ab == 'nop': NONOP.append(1)
                    print('ablation', ab, n0, '->', len(L), file=sys.stderr)
        L, vm, lg = finalize(L, vm0=vm0, lg0=lg0)
        if TIMEG == 'ev':
            ev0 = int([a for a in sys.argv if a.startswith('--ev=')][0].split('=')[1])
            L2 = []; ev = 0; k = 1
            for ins in L:
                isev = ('vmcnt' in ins.txt and ins.kind == 'wait') or ins.kind == 'bar'
                if isev and ev0 <= ev < ev0 + 4:
                    L2.append(Ins(f"s_memtime {TSR[k]}", 'salu')); k += 1
                    L2.append(ins)
                    L2.append(Ins(f"s_memtime {TSR[k]}", 'salu')); k += 1
                else: L2.append(ins)
                if isev: ev += 1
            L = L2
        out += L
        if DEBUG == 'x1':
            P = Prog(); P.raw('s_waitcnt vmcnt(0) lgkmcnt(0)', 'raw')
            dump_lds(P, WREG)
            out += insert_nops(P.L)
    if TIME:
        P = Prog()
        if '--tend' in sys.argv:
            P.raw(f's_memtime {TSR[2]}', 'raw')
            P.raw('s_waitcnt vmcnt(0)', 'raw')
            P.raw(f's_memtime {TSR[1]}', 'raw')
            if '--rt' in sys.argv:
                P.raw(f's_memrealtime {TSR[2]}', 'raw')
                P.raw('s_waitcnt lgkmcnt(0)', 'raw')
                P.raw(f's_mov_b32 {TSR[3][0]}, s3', 'raw')
        P.raw('s_waitcnt lgkmcnt(0)', 'raw')
        P.s('s_lshl_b32', sT0, sWG, 2); P.s('s_add_u32', sT0, sT0, sWave)
        P.s('s_lshl_b32', sT0, sT0, 6)
        P.v('v_mov_b32', V(0), 0)
        for k in range(9):
            P.v('v_mov_b32', V(20 + k), TSR[k][0])
            P.raw(f"buffer_store_dword v{20+k}, v0, {sDbg}, {sT0} offen offset:{4*k}", 'raw')
        out += insert_nops(P.L)
    if PROBE:
        P = Prog()
        P.raw('s_waitcnt vmcnt(0) lgkmcnt(0)', 'raw')
        P.raw("s_memrealtime s[86:87]", 'raw')
        P.raw('s_waitcnt lgkmcnt(0)', 'raw')
        P.raw("s_sub_u32 s84, s86, s98", 'raw')
        P.raw(f"s_cmp_gt_u32 s84, {PROBE}", 'raw'); P.raw("s_cbranch_scc0 L_END", 'raw')
        P.raw("L_SPIN:", 'raw')
        P.raw("s_memrealtime s[88:89]", 'raw')
        P.raw('s_waitcnt lgkmcnt(0)', 'raw')
        P.raw("s_sub_u32 s84, s88, s86", 'raw')
        P.raw("s_cmp_lt_u32 s84, 1500", 'raw'); P.raw("s_cbranch_scc1 L_SPIN", 'raw')
        out += P.L
    if ENC:
        P = Prog()
        P.raw('s_waitcnt vmcnt(0) lgkmcnt(0)', 'raw')
        if ENC[0] == 'end':
            P.raw(('s_memrealtime' if ENC[2] == 'r' else 's_memtime') + " s[96:97]", 'raw')
        P.raw("s_memrealtime s[86:87]", 'raw')
        P.raw('s_waitcnt lgkmcnt(0)', 'raw')
        P.raw("s_sub_u32 s84, s96, " + ('s98' if ENC[2] == 'r' else 's100'), 'raw')
        if ENC[3] >= 0: P.raw(f"s_lshl_b32 s84, s84, {ENC[3]}", 'raw')
        else: P.raw(f"s_lshr_b32 s84, s84, {-ENC[3]}", 'raw')
        P.raw("L_SPIN:", 'raw')
        P.raw("s_memrealtime s[88:89]", 'raw')
        P.raw('s_waitcnt lgkmcnt(0)', 'raw')
        P.raw("s_sub_u32 s90, s88, s86", 'raw')
        P.raw("s_cmp_lt_u32 s90, s84", 'raw'); P.raw("s_cbranch_scc1 L_SPIN", 'raw')
        out += P.L
    if '--delay' in sys.argv:
        P = Prog()
        P.raw("s_mov_b32 s88, 300", 'raw')
        P.raw("L_DELAY:", 'raw')
        for _ in range(16): P.raw("v_fma_f32 v20, v20, v21, v22", 'raw')
        P.raw("s_sub_u32 s88, s88, 1", 'raw'); P.raw("s_cmp_lg_u32 s88, 0", 'raw'); P.raw("s_cbranch_scc1 L_DELAY", 'raw')
        out += P.L
    if DBGCLK:
        P = Prog()
        P.raw('s_waitcnt vmcnt(0) lgkmcnt(0)', 'raw')
        P.raw("s_memtime s[84:85]", 'raw'); P.raw("s_memrealtime s[86:87]", 'raw')
        P.raw('s_waitcnt lgkmcnt(0)', 'raw')
        P.raw("s_sub_u32 s84, s84, s100", 'raw'); P.raw("s_sub_u32 s86, s86, s98", 'raw')
        P.raw("s_and_b32 s88, s2, 63", 'raw'); P.raw("s_cmp_eq_u32 s88, 0", 'raw'); P.raw("s_cbranch_scc0 L_END", 'raw')
        P.raw("s_cmp_eq_u32 s20, 0", 'raw'); P.raw("s_cbranch_scc0 L_END", 'raw')
        P.raw("s_lshr_b32 s88, s2, 6", 'raw'); P.raw("s_lshl_b32 s88, s88, 4", 'raw')
        P.raw("v_mov_b32 v20, s84", 'raw'); P.raw("v_mov_b32 v21, s86", 'raw'); P.raw("v_mov_b32 v22, s98", 'raw'); P.raw("v_mov_b32 v23, s100", 'raw')
        P.raw("v_mov_b32 v24, s88", 'raw')
        P.raw("s_mov_b64 exec, 1", 'raw')
        P.raw("global_store_dwordx4 v24, v[20:23], s[96:97]", 'raw')
        out += P.L
    out.append(Ins("L_END:", 'label'))
    out.append(Ins("s_endpgm", 'raw'))
    hdr = open('orig.s').read()
    head = hdr[:hdr.index('; @launch')]
    txt = head + f"; @launch grid=(256,1,1) block=(256,1,1) lds={LDS_TOTAL}\n"
    txt += '.amdgcn_target "amdgcn-amd-amdhsa--gfx950"\n.text\n.globl standalone__video_video_swin__vision_kernel\n.p2align 8\n'
    txt += '.type standalone__video_video_swin__vision_kernel,@function\nstandalone__video_video_swin__vision_kernel:\n'
    for ins in out:
        txt += (ins.txt if ins.kind == 'label' else '  ' + ins.txt) + '\n'
    txt += """.section .rodata,"a"
.p2align 6
.amdhsa_kernel standalone__video_video_swin__vision_kernel
  .amdhsa_next_free_vgpr 512
  .amdhsa_next_free_sgpr 102
  .amdhsa_accum_offset 256
  .amdhsa_group_segment_fixed_size 0
  .amdhsa_kernarg_size 64
  .amdhsa_user_sgpr_count 2
  .amdhsa_user_sgpr_kernarg_segment_ptr 1
  .amdhsa_system_sgpr_workgroup_id_x 1
.end_amdhsa_kernel
"""
    o = [a for a in sys.argv[1:] if not a.startswith('--')]
    open(o[0] if o else 'out.s', 'w').write(txt)
    print("instructions:", len(out), file=sys.stderr)

WINDOW = 700
TSTAMP = {0: 2, 1: 3, 3: 4, 5: 5, 7: 6, 9: 7, 12: 8}
BAR2_TILE = 1
if __name__ == '__main__': main()
```
